```python
import torch

def _softmax(x, axis=-1):
    return torch.softmax(x, dim=axis)
def _gelu(x):
    return torch.nn.functional.gelu(x, approximate="tanh")
def _silu(x):
    return torch.nn.functional.silu(x)
def _sigmoid(x):
    return torch.sigmoid(x)
def _layernorm(x, axis=-1, eps=1e-5):
    m = x.mean(dim=axis, keepdim=True)
    v = x.var(dim=axis, keepdim=True, unbiased=False)
    return (x - m) / torch.sqrt(v + eps)
def _scatter_add(tgt, idx, src, axis=0):
    return tgt.clone().index_add_(axis, idx, src)
def _segment_sum(src, seg, n):
    out = torch.zeros((n,) + src.shape[1:], dtype=src.dtype)
    return out.index_add_(0, seg, src)
def _pad(x, pw):
    flat = tuple(v for pair in reversed(pw) for v in pair)
    return torch.nn.functional.pad(x, flat)

kernel_name = 'recurrent_scan__ssm_conv_s4__mixer_s_mlp__prompt'

def setup_inputs():

    _w = (lambda a: (lambda t: t.to(torch.bfloat16) if t.is_floating_point() else t)(torch.as_tensor(a)))
    def _A_setup():
        B, L, D, N = 1, 2048, 512, 128
        A_re = -(lambda _x: torch.exp(torch.as_tensor(_x)))((lambda *s: torch.randn(*s, dtype=torch.bfloat16) * 3.2)(D, N))
        A_im = torch.pi * (lambda *s: torch.randn(*s, dtype=torch.bfloat16) * 0.05)(D, N)
        B_re = (lambda *s: torch.randn(*s, dtype=torch.bfloat16) * 0.1)(D, N)
        B_im = (lambda *s: torch.randn(*s, dtype=torch.bfloat16) * 0.1)(D, N)
        C_re = (lambda *s: torch.randn(*s, dtype=torch.bfloat16) * 0.1)(D, N)
        C_im = (lambda *s: torch.randn(*s, dtype=torch.bfloat16) * 0.1)(D, N)
        log_dt = (lambda *s: torch.randn(*s, dtype=torch.bfloat16) * 0.05)(D) * 0.5 - 4.0
        Dskip = (lambda *s: torch.randn(*s, dtype=torch.bfloat16) * 0.05)(D)
        return {
            "u": _w((lambda *s: torch.randn(*s, dtype=torch.bfloat16) * 0.05)(B, L, D)),
            "A_re": _w(A_re),
            "A_im": _w(A_im),
            "B_re": _w(B_re),
            "B_im": _w(B_im),
            "C_re": _w(C_re),
            "C_im": _w(C_im),
            "log_dt": _w(log_dt),
            "Dskip": _w(Dskip),
        }
    _A_in = _A_setup()

    def _B_setup():
        B, S, D, F = 1, 2048, 512, 1376
        return {
            "x":  _w((lambda *s: torch.randn(*s, dtype=torch.bfloat16) * 0.05)(B, S, D)),
            "w1": _w((lambda *s: torch.randn(*s, dtype=torch.bfloat16) * 3.2)(D, D) * (D ** -0.5)),
            "w2": _w((lambda *s: torch.randn(*s, dtype=torch.bfloat16) * 3.2)(D, D) * (D ** -0.5)),
            "w3": _w((lambda *s: torch.randn(*s, dtype=torch.bfloat16) * 3.2)(D, F) * (D ** -0.5)),
            "w4": _w((lambda *s: torch.randn(*s, dtype=torch.bfloat16) * 1.6)(F, D) * (F ** -0.5)),
        }
    _B_in = _B_setup()

    return {
        "A_u": _A_in["u"],
        "A_A_re": _A_in["A_re"],
        "A_A_im": _A_in["A_im"],
        "A_B_re": _A_in["B_re"],
        "A_B_im": _A_in["B_im"],
        "A_C_re": _A_in["C_re"],
        "A_C_im": _A_in["C_im"],
        "A_log_dt": _A_in["log_dt"],
        "A_Dskip": _A_in["Dskip"],
        "B_x": _B_in["x"],
        "B_w1": _B_in["w1"],
        "B_w2": _B_in["w2"],
        "B_w3": _B_in["w3"],
        "B_w4": _B_in["w4"],
    }

def reference(A_u, A_A_re, A_A_im, A_B_re, A_B_im, A_C_re, A_C_im, A_log_dt, A_Dskip, B_x, B_w1, B_w2, B_w3, B_w4):
    def _A_ref(u, A_re, A_im, B_re, B_im, C_re, C_im, log_dt, Dskip):
        Bsz, L, D = u.shape
        dt = torch.exp(log_dt)[:, None]
        A = A_re + 1j * A_im
        Bc = B_re + 1j * B_im
        Cc = C_re + 1j * C_im
        logdA = dt * A
        dB = dt * Bc
        l = (lambda x, dt: x.to(dt))(torch.arange(L), A_re.dtype)
        P = torch.exp(logdA[:, :, None] * l[None, None, :])
        K = torch.einsum("dn,dnl,dn->dl", Cc, P, dB).real
        L2 = 2 * L
        Kp = _pad(K, ((0, 0), (0, L)))
        up = (lambda x, *d: x.permute(*d))(u, 0, 2, 1)
        up = _pad(up, ((0, 0), (0, 0), (0, L)))
        Kf = (lambda x, axes=(-2,-1): torch.fft.rfft2(x.float(), dim=axes))(Kp[:, None, :], axes=(-2, -1))
        Uf = (lambda x, axes=(-2,-1): torch.fft.rfft2(x.float(), dim=axes))(up[:, :, None, :], axes=(-2, -1))
        Yf = Uf * Kf[None, :, :, :]
        y = (lambda x, s, axes=(-2,-1): torch.fft.irfft2(x, s=s, dim=axes).to(torch.bfloat16))(Yf, (1, L2), axes=(-2, -1))[:, :, 0, :L]
        y = (lambda x, *d: x.permute(*d))(y, 0, 2, 1) + u * Dskip[None, None, :]
        return y

    def _B_ref(x, w1, w2, w3, w4):
        B, S, D = x.shape
        h = _gelu(_layernorm(x, axis=-1) @ w1)
        c = D // 4
        g0 = _pad(h[:, :, 0*c:1*c], ((0, 0), (1, 0), (0, 0)))[:, :S, :]
        g1 = _pad(h[:, :, 1*c:2*c], ((0, 0), (0, 1), (0, 0)))[:, 1:, :]
        g2 = _pad(h[:, :, 2*c:3*c], ((0, 0), (2, 0), (0, 0)))[:, :S, :]
        g3 = _pad(h[:, :, 3*c:   ], ((0, 0), (0, 2), (0, 0)))[:, 2:, :]
        hs = torch.concatenate([g0, g1, g2, g3], axis=-1) @ w2
        x1 = x + hs
        h2 = _gelu(_layernorm(x1, axis=-1) @ w3) @ w4
        return x1 + h2

    x = A_u
    xn = _layernorm(x, axis=-1)
    s = _A_ref(xn, A_A_re, A_A_im, A_B_re, A_B_im, A_C_re, A_C_im, A_log_dt, A_Dskip)
    g = _silu(_B_ref(xn, B_w1, B_w2, B_w3, B_w4))
    return x + s * g
```

```python
import re

TRANS = ('v_exp_f32', 'v_log_f32', 'v_rcp_f32', 'v_rsq_f32', 'v_sqrt_f32', 'v_sin_f32', 'v_cos_f32')

def vr(a, n=1):
    return f'v{a}' if n == 1 else f'v[{a}:{a+n-1}]'
def sr(a, n=1):
    return f's{a}' if n == 1 else f's[{a}:{a+n-1}]'

_reg = re.compile(r'(?<![\w.])(-?)(?:abs\()?([vs])(?:(\d+)|\[(\d+):(\d+)\])')
def regs_of(tok):
    out = set()
    tok = tok.strip()
    if tok == 'vcc': return {('s', 106), ('s', 107)}
    if tok == 'exec': return {('s', 126), ('s', 127)}
    if tok == 'm0': return {('s', 124)}
    m = _reg.match(tok)
    if m:
        k = m.group(2)
        if m.group(3) is not None: out.add((k, int(m.group(3))))
        else:
            for i in range(int(m.group(4)), int(m.group(5)) + 1): out.add((k, i))
    return out

class Ins:
    __slots__ = ('text', 'op', 'wr', 'rd', 'kind', 'srcc', 'ab', 'passes', 'states', 'data')
    def __init__(self, text):
        self.text = text
        t = text.split(';')[0].strip()
        self.wr = set(); self.rd = set(); self.srcc = set(); self.ab = set(); self.data = set(); self.passes = 0; self.states = 1
        if not t or t.endswith(':') or t.startswith('.'):
            self.op = ''; self.kind = 'label'; self.states = 0; return
        parts = t.split(None, 1)
        op = parts[0]; self.op = op
        ops = []
        if len(parts) > 1:
            cur = ''; depth = 0
            for ch in parts[1]:
                if ch == '[': depth += 1
                if ch == ']': depth -= 1
                if ch == ',' and depth == 0: ops.append(cur); cur = ''
                else: cur += ch
            ops.append(cur)
            ops = [o.strip().split()[0] if o.strip() else '' for o in ops]
        R = [regs_of(o) for o in ops]
        if op == 's_nop':
            self.kind = 'nop'; self.states = int(ops[0], 0) + 1
        elif op.startswith('v_mfma'):
            self.kind = 'mfma'; self.wr = R[0]; self.ab = R[1] | R[2]; self.srcc = R[3]; self.rd = self.ab | self.srcc
            self.passes = 8 if '32x32' in op else 4
        elif op.startswith('v_'):
            self.kind = 'valu'
            if op.startswith('v_cmp'):
                self.wr = R[0]; self.rd = set().union(*R[1:])
            elif op.startswith('v_permlane') :
                self.wr = R[0] | R[1]; self.rd = R[0] | R[1]
            elif op.startswith(('v_readfirstlane', 'v_readlane')):
                self.wr = R[0]; self.rd = set().union(*R[1:])
            else:
                self.wr = R[0]; self.rd = set().union(*R[1:]) if len(R) > 1 else set()
                if op.startswith(('v_fmac', 'v_dot2c', 'v_writelane')) or 'dpp' in op: self.rd |= R[0]
                if op.startswith('v_cndmask') and len(R) == 3: self.rd |= regs_of('vcc')
        elif op.startswith('ds_'):
            self.kind = 'ds'
            if op.startswith(('ds_read', 'ds_add_rtn', 'ds_bpermute', 'ds_swizzle')):
                self.wr = R[0]; self.rd = set().union(*R[1:])
            else:
                self.rd = set().union(*R)
        elif op.startswith(('buffer_', 'global_')):
            self.kind = 'vmem'
            if ' lds' in t:
                self.rd = set().union(*R) | regs_of('m0'); self.kind = 'dma'
            elif 'load' in op:
                self.wr = R[0]; self.rd = set().union(*R[1:])
            else:
                self.rd = set().union(*R) if R else set()
                if 'x4' in op or 'x3' in op: self.data = R[0] if op.startswith('buffer_') else R[1]
        elif op.startswith('s_'):
            self.kind = 'salu'
            if op.startswith(('s_cmp', 's_cbranch', 's_branch', 's_waitcnt', 's_barrier', 's_sleep', 's_setprio', 's_endpgm', 's_setpc', 's_bitcmp')):
                self.rd = set().union(*R) if R else set()
            else:
                self.wr = R[0] if R else set(); self.rd = set().union(*R[1:]) if len(R) > 1 else set()
                if op.startswith(('s_addk', 's_mulk')): self.rd |= R[0]
        else:
            raise ValueError('unknown instr ' + text)

def need(p, c):
    n = 0
    pv = {r for r in p.wr if r[0] == 'v'}; ps = {r for r in p.wr if r[0] == 's'}
    if p.kind == 'valu':
        isdot = p.op.startswith('v_dot')
        if c.kind == 'mfma' and pv & c.rd: n = max(n, 3 if isdot else 2)
        if c.kind == 'valu':
            if p.op in TRANS or p.op.replace('_e64', '') in TRANS:
                if pv & c.rd: n = max(n, 1)
            if c.op.startswith(('v_readfirstlane', 'v_readlane')) and pv & c.rd: n = max(n, 1)
            if (c.op.startswith('v_permlane') or 'dpp' in c.op) and pv & c.rd: n = max(n, 2)
            if ps & c.rd: n = max(n, 4 if c.op.startswith(('v_readlane', 'v_writelane')) else 2)
            if 'sdwa' in p.text or 'src0_sel' in p.text:
                if pv & c.rd: n = max(n, 1)
        if isdot and (pv & (c.rd | c.wr)):
            same = (c.op == p.op) and not (pv & (c.rd - c.wr))
            if not same: n = max(n, 3)
        if c.kind in ('vmem', 'dma') and ps & c.rd: n = max(n, 5)
        if c.kind == 'salu' and ps & c.rd: n = max(n, 1)
        if c.op.startswith('s_cbranch_vcc') and ps & regs_of('vcc'): n = max(n, 5)
    if p.kind == 'mfma':
        big = 12 if p.passes == 8 else 8
        if c.kind == 'mfma':
            if p.wr & c.ab: n = max(n, big)
            if p.wr & c.srcc and not (p.wr == c.srcc and p.passes == c.passes): n = max(n, 10 if p.passes == 8 else 6)
            if p.wr & c.wr and not (p.wr == c.srcc): n = max(n, big)
        elif c.kind in ('valu', 'ds', 'vmem', 'dma'):
            if p.wr & (c.rd | c.wr): n = max(n, big)
            if p.srcc & c.wr: n = max(n, 7 if p.passes == 8 else 3)
    if p.kind == 'vmem' and p.data and (p.data & c.wr): n = max(n, 2)
    if p.kind == 'salu' and ('s', 124) in p.wr and c.kind == 'dma': n = max(n, 1)
    return n

class Asm:
    def __init__(self):
        self.L = []; self.nlab = 0
        self.vmq = []; self.lgq = []
    def __call__(self, text):
        for line in text.split('\n'):
            if line.strip(): self.L.append(line.strip())
    def label(self, base='L'):
        self.nlab += 1; return f'{base}_{self.nlab}'
    def vm(self, text, tag=None):
        self(text); self.vmq.append(tag)
    def lg(self, text, tag=None):
        self(text); self.lgq.append(tag)
    def _wait(self, q, tags, name, mx):
        if not isinstance(tags, list): tags = [tags]
        idx = [i for i, t in enumerate(q) if t in tags]
        if not idx: return None
        n = len(q) - 1 - idx[-1]
        del q[:idx[-1] + 1]
        return min(n, mx)
    def wvm(self, tags):
        n = self._wait(self.vmq, tags, 'vmcnt', 63)
        if n is not None: self(f's_waitcnt vmcnt({n})')
    def wlg(self, tags):
        n = self._wait(self.lgq, tags, 'lgkmcnt', 15)
        if n is not None: self(f's_waitcnt lgkmcnt({n})')
    def vm0(self):
        self('s_waitcnt vmcnt(0)'); self.vmq = []
    def lg0(self):
        self('s_waitcnt lgkmcnt(0)'); self.lgq = []
    def reset(self):
        self.vmq = []; self.lgq = []
    def finalize(self):
        out = []; hist = []
        npad = 0
        for t in self.L:
            c = Ins(t)
            if c.kind == 'label':
                out.append(t); continue
            req = 0; dist = 0
            for p in reversed(hist):
                k = need(p, c) - dist
                if k > req: req = k
                dist += p.states
                if dist >= 12: break
            while req > 0:
                k = min(req, 16)
                nop = Ins(f's_nop {k-1}'); out.append(f's_nop {k-1}'); hist.append(nop); req -= k; npad += 1
            out.append(t); hist.append(c)
            if len(hist) > 40: hist = hist[-20:]
        return out, npad
```

```python
import sys, math, struct
from asmlib import *
NAME = 'recurrent_scan__ssm_conv_s4__mixer_s_mlp__prompt'

def f2u(x): return struct.unpack('<I', struct.pack('<f', x))[0]
def hx(x): return hex(f2u(x))

class Cfg:
    stamps = False
    pk = True
    pk3 = False
    poll_step = 3
    conv_sched = {6: 1, 7: 1, 8: 1, 9: 1, 10: 1, 11: 1, 12: 2}
    gbound = 200000
    lbound = 1000000
cfg = Cfg()

W0, X0, S0 = 0, 65536, 131072
S_KF, S_XT, S_STP, S_CS1, S_ST, S_ST3, S_TMP3, S_CNT = 0, 17408, 25600, 27648, 28672, 29248, 29760, 30784
CN = {n: S_CNT + 4 * i for i, n in enumerate(
    ['S', 'D1', 'W', 'F1', 'D2', 'F2', 'X0', 'X1', 'X2', 'X3', 'T0', 'T1', 'T2', 'T3', 'B', 'STAT', 'FU', 'FS', 'F3', 'D4a', 'D4b'])}
SLOT = 12288
U0 = W0 + 4 * SLOT
USZ = 4608
KCOPY = 4160
WS_FLAG = 0x1000
WS_CFLAG = 0x8000
WS_H, WS_X1, WS_H2, WS_UT, WS_ST, WS_STAMP = 0x100000, 0x300000, 0x500000, 0xB00000, 0xD00000, 0x1000000
H2SZ = 22528
sW, sJ, sC, sIDX, sDEL = 3, 4, 5, 6, 7
SX, SW1, SW2, SW3, SW4, SWS, SOUT = 8, 12, 16, 20, 24, 28, 32
sEP = 68
sT = 70
sK = 80
sRET = 88
STAMP_REGS = [90, 92, 94, 96, 98, 100] + list(range(36, 68, 2))
EPS = 1e-5
LOG2E = math.log2(math.e)
GA = 2 * math.sqrt(2 / math.pi) * LOG2E
GB = GA * 0.044715
ALPHA = GB ** (1 / 3)
GK = GA / ALPHA

a = Asm()
vL, vS, vOne, vT = 0, 1, 2, 3

class Stamps:
    def __init__(self): self.names = {'A': [], 'B': []}
    def put(self, role, name):
        if not cfg.stamps: return
        i = len(self.names[role]); self.names[role].append(name)
        r = STAMP_REGS[i + 1]
        a(f's_memtime s[{r}:{r+1}]')
    def flush(self, role):
        if not cfg.stamps: return
        a('s_waitcnt lgkmcnt(0)')
        a('v_mov_b32 v4, 0')
        n = len(self.names[role]) + 1
        for i in range(n): a(f'v_writelane_b32 v4, s{STAMP_REGS[i]}, {i}')
        a(f'v_writelane_b32 v4, s69, 63')
        a('v_lshlrev_b32 v5, 2, v0')
        a(f's_lshl_b32 s{sT}, s2, 11'); a(f's_lshl_b32 s{sT+1}, s{sW}, 8'); a(f's_add_u32 s{sT}, s{sT}, s{sT+1}')
        a(f's_add_u32 s{sT}, s{sT}, {WS_STAMP + (1024 if role == "B" else 0)}')
        a(f'buffer_store_dword v4, v5, s[{SWS}:{SWS+3}], s{sT} offen')
st = Stamps()

def srd(d, b, n):
    a(f's_mov_b32 s{d}, s{b}'); a(f's_mov_b32 s{d+1}, s{b+1}'); a(f's_mov_b32 s{d+2}, {n}'); a(f's_mov_b32 s{d+3}, 0x20000')

def signal(cn):
    a('s_mov_b64 exec, 1'); a.lg(f'ds_add_u32 v{vS}, v{vOne} offset:{CN[cn]}'); a('s_mov_b64 exec, -1')

def spin(cn, target, sleep=0, treg=None):
    L = a.label('SP'); E = a.label('SPE')
    a(f's_mov_b32 s{sT+9}, {cfg.lbound}')
    a(f'{L}:')
    off = CN[cn] if isinstance(cn, str) else cn
    a(f'ds_read_b32 v{vT}, v{treg if treg is not None else vS} offset:{off}')
    a('s_waitcnt lgkmcnt(0)')
    a(f'v_readfirstlane_b32 s{sT+8}, v{vT}')
    a(f's_cmp_ge_u32 s{sT+8}, {target}')
    a(f's_cbranch_scc1 {E}')
    if sleep: a(f's_sleep {sleep}')
    a(f's_sub_u32 s{sT+9}, s{sT+9}, 1')
    a(f's_cbranch_scc0 {L}')
    a(f'{E}:')
    a.lgq = []

def publish(cn, soff):
    E = a.label('PB')
    a.vm0()
    a('s_mov_b64 exec, 1')
    a(f'ds_add_rtn_u32 v{vT}, v{vS}, v{vOne} offset:{CN[cn]}')
    a.lg0()
    a(f'v_readfirstlane_b32 s{sT+8}, v{vT}')
    a(f's_cmp_eq_u32 s{sT+8}, 3')
    a(f's_cbranch_scc0 {E}')
    a(f'v_mov_b32 v{vT}, s{sEP}')
    a(f'buffer_store_dword v{vT}, off, s[{SWS}:{SWS+3}], s{soff} sc1')
    a(f'{E}:')
    a('s_mov_b64 exec, -1')

def poll2(soff, v):
    L = a.label('PL'); E = a.label('PLE')
    a(f's_mov_b32 s{sT+9}, {cfg.gbound}')
    a('s_mov_b64 exec, 1')
    a(f'{L}:')
    a(f'buffer_load_dwordx2 v[{v}:{v+1}], off, s[{SWS}:{SWS+3}], s{soff} sc1')
    a('s_waitcnt vmcnt(0)')
    a(f'v_xor_b32 v{v}, s{sEP}, v{v}'); a(f'v_xor_b32 v{v+1}, s{sEP}, v{v+1}'); a(f'v_or_b32 v{v}, v{v}, v{v+1}')
    a(f'v_readfirstlane_b32 s{sT+8}, v{v}')
    a(f's_cmp_eq_u32 s{sT+8}, 0')
    a(f's_cbranch_scc1 {E}')
    a(f's_sub_u32 s{sT+9}, s{sT+9}, 1')
    a(f's_cbranch_scc0 {L}')
    a(f'{E}:')
    a('s_mov_b64 exec, -1')
    a.vmq = []

def poll32(soff, v, va, sleep=2):
    L = a.label('PC'); E = a.label('PCE')
    a(f'v_lshrrev_b32 v{va}, 3, v{vL}'); a(f'v_lshlrev_b32 v{va}, 7, v{va}')
    a(f'v_and_b32 v{v}, 7, v{vL}'); a(f'v_lshl_add_u32 v{va}, v{v}, 2, v{va}')
    a(f's_mov_b32 s{sT+9}, {cfg.gbound}')
    a('s_mov_b32 exec_lo, -1'); a('s_mov_b32 exec_hi, 0')
    a(f'{L}:')
    a(f'buffer_load_dword v{v}, v{va}, s[{SWS}:{SWS+3}], s{soff} offen sc1')
    a('s_waitcnt vmcnt(0)')
    a(f'v_cmp_ne_u32 vcc, s{sEP}, v{v}')
    a(f's_cbranch_vccz {E}')
    a(f's_sleep {sleep}')
    a(f's_sub_u32 s{sT+9}, s{sT+9}, 1')
    a(f's_cbranch_scc0 {L}')
    a(f'{E}:')
    a('s_mov_b64 exec, -1')
    a.vmq = []

def gelu_ops(p, t, dst, pk):
    o = []
    if pk:
        o.append(f'v_pk_fma_f32 v[{t}:{t+1}], v[{p}:{p+1}], v[{p}:{p+1}], s[{sK}:{sK+1}]')
        o.append(f'v_pk_mul_f32 v[{t}:{t+1}], v[{t}:{t+1}], v[{p}:{p+1}]')
    else:
        for i in range(2): o.append(f'v_fma_f32 v{t+i}, v{p+i}, v{p+i}, s{sK}')
        for i in range(2): o.append(f'v_mul_f32 v{t+i}, v{t+i}, v{p+i}')
    for i in range(2): o.append(f'v_exp_f32 v{t+i}, -v{t+i}')
    if pk: o.append(f'v_pk_fma_f32 v[{t}:{t+1}], v[{t}:{t+1}], s[{sK+2}:{sK+3}], s[{sK+2}:{sK+3}]')
    else:
        for i in range(2): o.append(f'v_fma_f32 v{t+i}, v{t+i}, s{sK+2}, s{sK+2}')
    for i in range(2): o.append(f'v_rcp_f32 v{t+i}, v{t+i}')
    if pk: o.append(f'v_pk_mul_f32 v[{t}:{t+1}], v[{t}:{t+1}], v[{p}:{p+1}]')
    else:
        for i in range(2): o.append(f'v_mul_f32 v{t+i}, v{t+i}, v{p+i}')
    o.append(f'v_cvt_pk_bf16_f32 v{dst}, v{t}, v{t+1}')
    return o

def interleave(lists):
    out = []; n = max(len(l) for l in lists)
    for i in range(n):
        for l in lists:
            if i < len(l): out.append(l[i])
    return out

def padd(d, x, y, n):
    for i in range(0, n, 2): a(f'v_pk_add_f32 v[{d+i}:{d+i+1}], v[{x+i}:{x+i+1}], v[{y+i}:{y+i+1}]')

def prologue():
    if cfg.stamps:
        a(f's_memtime s[{STAMP_REGS[0]}:{STAMP_REGS[0]+1}]')
        a('s_memrealtime s[78:79]')
    a('s_load_dwordx16 s[36:51], s[0:1], 0')
    a('s_load_dwordx8 s[56:63], s[0:1], 80')
    a('s_load_dwordx2 s[66:67], s[0:1], 128')
    a('s_load_dwordx2 s[52:53], s[0:1], 64')
    a('s_load_dwordx2 s[64:65], s[0:1], 112')
    a('s_cmp_ge_u32 s2, 256'); a('s_cbranch_scc1 L_end')
    a('v_lshrrev_b32 v3, 6, v0')
    a('v_and_b32 v0, 63, v0')
    a(f'v_readfirstlane_b32 s{sW}, v3')
    a(f's_lshr_b32 s{sJ}, s2, 3'); a(f's_and_b32 s{sJ}, s{sJ}, 7')
    a(f's_and_b32 s{sC}, s2, 7'); a(f's_lshl_b32 s{sC}, s{sC}, 2'); a(f's_lshr_b32 s{sT}, s2, 6'); a(f's_add_u32 s{sC}, s{sC}, s{sT}')
    a(f's_lshl_b32 s{sIDX}, s{sC}, 3')
    a(f's_lshr_b32 s{sT}, s{sJ}, 2'); a(f's_add_u32 s{sDEL}, s{sT}, 1')
    a(f's_sub_u32 s{sT}, 0, s{sDEL}')
    a(f's_bitcmp1_b32 s{sJ}, 1'); a(f's_cselect_b32 s{sDEL}, s{sDEL}, s{sT}')
    a(f'v_mov_b32 v{vS}, {S0}'); a(f'v_mov_b32 v{vOne}, 1')
    a(f's_mov_b32 s{sK}, {hx(GK)}'); a(f's_mov_b32 s{sK+1}, {hx(GK)}')
    a(f's_mov_b32 s{sK+2}, {hx(ALPHA)}'); a(f's_mov_b32 s{sK+3}, {hx(ALPHA)}')
    a(f's_mov_b32 s{sK+4}, 0x3f803f80')
    a(f's_cmp_ge_u32 s{sW}, 4'); a('s_cbranch_scc1 L_B')

def common_srds():
    a('s_waitcnt lgkmcnt(0)')
    if cfg.stamps: a('s_mov_b32 s69, s78')
    srd(SX, 36, 2097152); srd(SW1, 56, 524288); srd(SWS, 66, 268435456)
    a(f's_load_dword s{sEP}, s[66:67], 0')

def wdma(srdn, n, tag0, vW):
    for i in range(n):
        a('s_addk_i32 m0, 1024'); a(f's_addk_i32 s{sT}, 8192')
        a.vm(f'buffer_load_dwordx4 v{vW}, s[{srdn}:{srdn+3}], s{sT} offen lds', (tag0, i))

def role_A():
    vW, vTA0, vTA1, vTB0, vTB1, vL16, vCX = 4, 5, 6, 7, 8, 9, 10
    vDW, vDR = 11, 12
    XF, W2F, ACC = 128, 192, 64
    acc = lambda th, nt: ACC + 32 * th + 16 * nt
    a('v_lshrrev_b32 v16, 4, v0')
    a('v_and_b32 v17, 15, v0')
    a('v_xor_b32 v17, v17, v16'); a('v_lshlrev_b32 v17, 4, v17')
    a(f's_lshl_b32 s{sT}, s{sC}, 6'); a(f's_add_u32 s{sT}, s{sT}, s{sDEL}'); a(f's_lshl_b32 s{sT}, s{sT}, 10')
    a(f's_lshl_b32 s{sT+1}, s{sW}, 8'); a(f's_add_u32 s{sT}, s{sT}, s{sT+1}')
    a(f'v_lshl_add_u32 v18, v16, 10, s{sT}')
    for m in range(4):
        if m == 0: a('v_add_u32 v20, v18, v17')
        else:
            a(f'v_xor_b32 v19, {64*m}, v17'); a(f'v_add_u32 v19, {4096*m}, v19'); a(f'v_add_u32 v{20+m}, v18, v19')
    a('v_add_u32 v24, 0x4000, v20')
    a(f's_mov_b32 s{sT+2}, 0x4000'); a(f's_mov_b32 s{sT+3}, 0x8000'); a(f's_mov_b32 s{sT+4}, 0xc000')
    a('v_and_b32 v17, 1, v16'); a('v_lshlrev_b32 v17, 2, v17'); a('v_and_b32 v18, 7, v0'); a('v_xor_b32 v17, v17, v18')
    a('v_lshrrev_b32 v18, 3, v0'); a('v_lshlrev_b32 v18, 10, v18'); a(f'v_lshl_add_u32 v{vW}, v17, 4, v18')
    a(f's_lshl_b32 s{sT+5}, s{sW}, 14')
    common_srds()
    a(f's_add_u32 m0, s{sT+5}, {X0 - 1024}')
    for i in range(16):
        m, blk = i & 3, i >> 2
        v = 24 if (m == 0 and blk > 0) else 20 + m
        b = blk - 1 if (m == 0 and blk > 0) else blk
        so = '0' if b == 0 else f's{sT+1+b}'
        a('s_addk_i32 m0, 1024')
        a.vm(f'buffer_load_dwordx4 v{v}, s[{SX}:{SX+3}], {so} offen lds', ('x', i))
    a(f's_lshl_b32 s{sT+6}, s{sW}, 17'); a(f's_lshl_b32 s{sT+7}, s{sJ}, 7'); a(f's_add_u32 s{sT+6}, s{sT+6}, s{sT+7}')
    a(f's_sub_u32 s{sT+6}, s{sT+6}, 8192')
    a(f's_mov_b32 s{sT}, s{sT+6}')
    a(f's_add_u32 m0, s{sT+5}, {W0 - 1024 + (1 << 32) if W0 < 1024 else W0 - 1024}')
    wdma(SW1, 16, 'w1', vW)
    srd(SW2, 58, 524288); srd(SW4, 62, 1409024)
    a(f'v_lshlrev_b32 v{vL16}, 4, v0')
    a('v_bfe_u32 v17, v0, 2, 2')
    a('v_and_b32 v18, 3, v0'); a('v_lshlrev_b32 v18, 3, v18')
    a('v_and_b32 v19, 1, v16'); a('v_lshl_add_u32 v18, v19, 5, v18')
    a('v_lshrrev_b32 v19, 1, v17'); a('v_lshl_add_u32 v18, v19, 6, v18')
    a('v_lshl_add_u32 v18, v17, 7, v18')
    a('v_lshrrev_b32 v19, 5, v0')
    a(f'v_lshl_add_u32 v{vCX}, v19, 10, v18')
    a(f's_lshl_b32 s{sT}, s{sW}, 5')
    a(f'v_xor_b32 v{vTA0}, s{sT}, v{vCX}'); a(f'v_add_u32 v{vTA0}, s{sT+5}, v{vTA0}')
    a(f'v_xor_b32 v{vTA1}, 64, v{vTA0}')
    a(f'v_lshl_add_u32 v18, v19, 9, v18'); a(f'v_xor_b32 v18, s{sT}, v18'); a(f'v_add_u32 v18, s{sT+5}, v18')
    a(f'v_add_u32 v{vTB0}, {X0}, v18'); a(f'v_xor_b32 v{vTB1}, 64, v{vTB0}')
    a(f'v_add_u32 v{vDW}, s{sT+5}, v{vL16}')
    for s in range(1, 4): a(f'v_xor_b32 v{vDR+s-1}, {s << 14}, v{vDW}')
    a('v_and_b32 v17, 31, v0'); a('v_and_b32 v18, 15, v0'); a('v_xor_b32 v18, v18, v19'); a('v_lshlrev_b32 v18, 4, v18')
    a('v_lshl_add_u32 v18, v17, 8, v18'); a(f'v_add_u32 v18, s{sT+5}, v18'); a(f'v_add_u32 v32, {X0}, v18')
    for ks in range(1, 8): a(f'v_xor_b32 v{32+ks}, {ks << 5}, v32')
    for i in range(40, 46): a(f'v_mov_b32 v{i}, 0')
    a('s_barrier')
    a('s_waitcnt lgkmcnt(0)')
    a(f's_add_u32 s{sEP}, s{sEP}, 1')
    st.put('A', 'issued')
    for th in range(2):
        a.wvm(('x', 8 * th + 7))
        for ks in range(8):
            a.lg(f'ds_read_b128 {vr(XF + 32*th + 4*ks, 4)}, v{32+ks} offset:{8192*th}', ('xf', th, ks))
        for ks in range(8):
            a.wlg(('xf', th, ks))
            for d in range(4):
                r = XF + 32*th + 4*ks + d
                a(f'v_dot2c_f32_bf16 v{40+2*th}, s{sK+4}, v{r}')
                a(f'v_dot2c_f32_bf16 v{41+2*th}, v{r}, v{r}')
            if th == 1 and ks == 7: pass
    st.put('A', 'x_landed')
    a(f's_mov_b32 s{sT}, s{sT+6}')
    a(f's_add_u32 m0, s{sT+5}, {X0 - 1024}')
    wdma(SW2, 16, 'w2', vW)
    a(f's_lshl_b32 s{sT}, s{sW}, 9')
    a(f'v_lshl_add_u32 v16, v0, 2, s{sT}'); a(f'v_add_u32 v16, v16, v{vS}')
    for th in range(2):
        a(f'v_permlane32_swap_b32 v{40+2*th}, v{41+2*th}')
        a(f'v_add_f32 v{40+2*th}, v{40+2*th}, v{41+2*th}')
        a.lg(f'ds_write_b32 v16, v{40+2*th} offset:{S_STP + 256*th}')
    a.lg0()
    signal('S')
    ring = lambda ks: W2F + 8 * (ks % 4)
    def rd(ks):
        a.wvm(('w1', 2 * ks + 1))
        for nt in range(2):
            for p in range(2):
                a.lg(f'ds_read_b64_tr_b16 {vr(ring(ks) + 4*nt + 2*p, 2)}, v{vTA0 + nt} offset:{2048*ks + 512*p}', ('wf', ks))
    rd(0)
    for ks in range(8):
        if ks + 1 < 8: rd(ks + 1)
        a.wlg(('wf', ks))
        for th in range(2):
            for nt in range(2):
                c = '0' if ks == 0 else vr(acc(th, nt), 16)
                a(f'v_mfma_f32_32x32x16_bf16 {vr(acc(th, nt), 16)}, {vr(ring(ks) + 4*nt, 4)}, {vr(XF + 32*th + 4*ks, 4)}, {c}')
                for d in range(2):
                    a(f'v_dot2c_f32_bf16 v{44+nt}, s{sK+4}, v{ring(ks) + 4*nt + 2*th + d}')
    st.put('A', 'g1_mfma')
    a('v_permlane32_swap_b32 v44, v45'); a('v_add_f32 v44, v44, v45')
    a(f's_lshl_b32 s{sT}, s{sW}, 4'); a(f'v_xor_b32 v16, s{sT}, v0')
    a(f's_lshl_b32 s{sT}, s{sW}, 8'); a(f'v_lshl_add_u32 v16, v16, 2, s{sT}'); a(f'v_add_u32 v16, v16, v{vS}')
    a.lg(f'ds_write_b32 v16, v44 offset:{S_CS1}')
    def dump(base_off):
        for th in range(2):
            for s in range(1, 4):
                for k in range(2):
                    r = acc(th, s >> 1) + 8 * (s & 1) + 4 * k
                    a.lg(f'ds_write_b128 v{vDW}, {vr(r, 4)} offset:{6144*th + 2048*(s-1) + 1024*k}')
    dump(0)
    a.lg0(); signal('D1')
    spin('STAT', 1)
    a('v_and_b32 v16, 31, v0'); a(f'v_lshl_add_u32 v17, v16, 3, v{vS}')
    a(f's_lshl_b32 s{sT}, s{sDEL}, 3'); a(f'v_add_u32 v18, s{sT}, v17')
    for th in range(2): a.lg(f'ds_read_b64 v[{46+2*th}:{47+2*th}], v18 offset:{S_ST + 16 + 256*th}')
    for th in range(2): a.lg(f'ds_read_b64 v[{50+2*th}:{51+2*th}], v17 offset:{S_ST + 16 + 256*th}')
    a.lg0()
    for th in range(2):
        r = 47 + 2 * th
        a(f'v_mul_f32 v18, v{r}, v{r}')
        a(f'v_mov_b32 v19, {hx(1 + EPS)}')
        a(f'v_fmac_f32 v19, {hx(-EPS)}, v18')
        a('v_rsq_f32 v19, v19')
        a(f'v_mul_f32 v{r}, s{sK+2}, v{r}')
        a(f'v_mul_f32 v{r}, v{r}, v19')
    a('v_lshrrev_b32 v19, 5, v0'); a(f's_lshl_b32 s{sT}, s{sW}, 6'); a(f'v_lshl_add_u32 v18, v19, 4, s{sT}'); a(f'v_add_u32 v18, v18, v{vS}')
    spin('D1', 4)
    st.put('A', 'g1_sync')
    P = XF
    CSR = XF + 48
    for w2 in range(4):
        for k in range(2): a.lg(f'ds_read_b128 {vr(CSR + 8*w2 + 4*k, 4)}, v18 offset:{S_CS1 + 256*w2 + 32*k}', 'cs')
    def rdpart(th):
        for s in range(1, 4):
            for k in range(2):
                a.lg(f'ds_read_b128 {vr(P + 24*th + 8*(s-1) + 4*k, 4)}, v{vDR+s-1} offset:{6144*th + 2048*(s-1) + 1024*k}', ('pt', th))
    rdpart(0)
    a.wlg('cs')
    rdpart(1)
    padd(CSR, CSR, CSR + 8, 8); padd(CSR + 16, CSR + 16, CSR + 24, 8); padd(CSR, CSR, CSR + 16, 8)
    a(f's_add_u32 s{sT}, s{sIDX}, s{sJ}'); a(f's_lshl_b32 s{sT}, s{sT}, 13'); a(f's_lshl_b32 s{sT+1}, s{sW}, 10')
    a(f's_add_u32 s{sT}, s{sT}, s{sT+1}'); a(f's_add_u32 s{sT}, s{sT}, {WS_H}')
    for th in range(2):
        a.wlg(('pt', th))
        if th == 1: signal('W')
        o = acc(th, 0); p = P + 24 * th
        padd(o, o, p, 8); padd(p + 8, p + 8, p + 16, 8); padd(o, o, p + 8, 8)
        m = 46 + 2 * th
        chains = []
        for i in range(0, 8, 2):
            ch = [f'v_pk_fma_f32 v[{o+i}:{o+i+1}], v[{CSR+i}:{CSR+i+1}], v[{m}:{m+1}], v[{o+i}:{o+i+1}] op_sel_hi:[1,0,1] neg_lo:[0,1,0] neg_hi:[0,1,0]',
                  f'v_pk_mul_f32 v[{o+i}:{o+i+1}], v[{o+i}:{o+i+1}], v[{m}:{m+1}] op_sel:[0,1] op_sel_hi:[1,1]']
            ch += gelu_ops(o + i, p + i, 56 + 4 * th + i // 2, True)
            chains.append(ch)
        for x in interleave(chains): a(x)
        if th == 1: a(f's_addk_i32 s{sT}, 4096')
        a.vm(f'buffer_store_dwordx4 {vr(56 + 4*th, 4)}, v{vL16}, s[{SWS}:{SWS+3}], s{sT} offen sc1', 'hst')
    st.put('A', 'h_stored')
    a(f's_lshl_b32 s{sT}, s{sW}, 5'); a(f'v_lshl_add_u32 v18, v19, 3, s{sT}'); a('v_lshl_add_u32 v18, v16, 7, v18'); a(f'v_add_u32 v18, v18, v{vS}')
    for th in range(2):
        for k in range(2): a.lg(f'ds_read_b64 v[{20+4*th+2*k}:{21+4*th+2*k}], v18 offset:{S_XT + 4096*th + 16*k}', 'xt')
    for ks in range(8):
        a.wvm(('w2', 2 * ks + 1))
        for nt in range(2):
            for p in range(2):
                a.lg(f'ds_read_b64_tr_b16 {vr(W2F + 8*ks + 4*nt + 2*p, 2)}, v{vTB0 + nt} offset:{2048*ks + 1024*p}', 'w2f')
        if ks == 1:
            a.wlg('xt')
            for th in range(2):
                o = acc(th, 0); m = 50 + 2 * th
                for d in range(4):
                    a(f'v_lshlrev_b32 v{o+2*d}, 16, v{20+4*th+d}'); a(f'v_and_b32 v{o+2*d+1}, 0xffff0000, v{20+4*th+d}')
                for i in range(8):
                    a(f'v_sub_f32 v{o+i}, v{o+i}, v{m}'); a(f'v_mul_f32 v{o+i}, v{o+i}, v{m+1}')
                for i in range(8, 16): a(f'v_mov_b32 v{o+i}, 0')
    sF = sT + 2
    a(f's_lshl_b32 s{sF+1}, s{sC}, 9'); a(f's_add_u32 s{sF+1}, s{sF+1}, {WS_FLAG}')
    a(f's_lshl_b32 s{sF}, s{sJ}, 2'); a(f's_add_u32 s{sF}, s{sF}, s{sF+1}')
    a(f's_lshl_b32 s{sT}, s{sW}, 3'); a(f's_add_u32 s{sF+1}, s{sF+1}, s{sT}')
    publish('F1', sF)
    st.put('A', 'h_flag')
    poll2(sF + 1, 16)
    st.put('A', 'h_seen')
    sPB = sT + 4
    a(f's_lshl_b32 s{sPB}, s{sW}, 1'); a(f's_add_u32 s{sPB}, s{sPB}, s{sIDX}')
    a(f's_lshl_b32 s{sT}, s{sPB}, 13'); a(f's_add_u32 s{sT}, s{sT}, {WS_H}')
    for th in range(2):
        for p in range(2):
            a(f's_add_u32 s{sT+1}, s{sT}, {8192*p + 4096*th}')
            for r in range(4):
                ks = 4 * p + r
                a.vm(f'buffer_load_dwordx4 {vr(XF + 32*th + 4*ks, 4)}, v{vL16}, s[{SWS}:{SWS+3}], s{sT+1} offen offset:{1024*r} sc1', ('h', th, ks))
    a(f'v_add_u32 v{vDW}, {X0}, v{vDW}')
    for s in range(3): a(f'v_add_u32 v{vDR+s}, {X0}, v{vDR+s}')
    for th in range(2):
        for ks in range(8):
            a.wvm(('h', th, ks))
            for nt in range(2):
                c = '0' if (ks == 0 and nt == 1) else vr(acc(th, nt), 16)
                a(f'v_mfma_f32_32x32x16_bf16 {vr(acc(th, nt), 16)}, {vr(W2F + 8*ks + 4*nt, 4)}, {vr(XF + 32*th + 4*ks, 4)}, {c}')
    st.put('A', 'g2_mfma')
    dump(0)
    a.lg0(); signal('D2')
    a('v_bfe_u32 v16, v0, 4, 1'); a('v_and_b32 v17, 15, v0'); a('v_lshlrev_b32 v17, 4, v17')
    a('v_lshl_add_u32 v17, v16, 11, v17'); a('v_lshl_add_u32 v17, v19, 8, v17')
    a(f's_add_u32 s{sT}, s{sIDX}, s{sJ}'); a(f's_lshl_b32 s{sT}, s{sT}, 13'); a(f's_lshl_b32 s{sT+1}, s{sW}, 9')
    a(f's_add_u32 s{sT}, s{sT}, s{sT+1}'); a(f's_add_u32 s{sT}, s{sT}, {WS_X1}')
    spin('D2', 4)
    rdpart(0); rdpart(1)
    for th in range(2):
        a.wlg(('pt', th))
        o = acc(th, 0); p = P + 24 * th
        padd(o, o, p, 8); padd(p + 8, p + 8, p + 16, 8); padd(o, o, p + 8, 8)
        for i in range(4): a(f'v_cvt_pk_bf16_f32 v{56+4*th+i}, v{o+2*i}, v{o+2*i+1}')
        if th == 1: a(f's_addk_i32 s{sT}, 4096')
        a.vm(f'buffer_store_dwordx4 {vr(56 + 4*th, 4)}, v17, s[{SWS}:{SWS+3}], s{sT} offen sc1', 'x1st')
    st.put('A', 'x1_stored')
    a(f's_addk_i32 s{sF}, 128'); a(f's_addk_i32 s{sF+1}, 128')
    publish('F2', sF)
    poll2(sF + 1, 16)
    spin('F2', 4)
    st.put('A', 'x1_seen')
    a(f's_lshl_b32 s{sT}, s{sPB}, 13'); a(f's_add_u32 s{sT}, s{sT}, {WS_X1}')
    a(f's_lshl_b32 s{sT+6}, s{sW}, 12')
    for tau in range(4):
        for p in range(2):
            a(f's_add_u32 m0, s{sT+6}, {X0 + 16384*tau + 2048*p}')
            a(f's_add_u32 s{sT+1}, s{sT}, {8192*p + 2048*tau}')
            for kk in range(2):
                a.vm(f'buffer_load_dwordx4 v{vL16}, s[{SWS}:{SWS+3}], s{sT+1} offen offset:{1024*kk} sc1 lds', ('x1', tau))
    for tau in range(4):
        a.wvm(('x1', tau)); signal(f'X{tau}')
    st.put('A', 'x1_landed')
    a(f's_lshl_b32 s{sT}, s{sW}, 2'); a(f'v_add_u32 v16, s{sT}, v{vS}')
    spin(CN['X0'], 4, treg=16)
    a('v_mov_b32 v40, 0'); a('v_mov_b32 v41, 0')
    for ks in range(16):
        a.lg(f'ds_read_b128 {vr(XF + 4*ks, 4)}, v{vDW} offset:{1024*ks}', ('s3', ks))
        if ks == 11:
            pass
    for ks in range(16):
        a.wlg(('s3', ks))
        for d in range(4):
            r = XF + 4 * ks + d
            a(f'v_dot2c_f32_bf16 v40, s{sK+4}, v{r}'); a(f'v_dot2c_f32_bf16 v41, v{r}, v{r}')
    a('v_permlane32_swap_b32 v40, v41'); a('v_add_f32 v40, v40, v41')
    a('v_mov_b32 v41, v40')
    a('v_permlane16_swap_b32 v40, v41'); a('v_add_f32 v40, v40, v41')
    a('v_mov_b32 v41, v40')
    a('v_permlane32_swap_b32 v40, v41')
    a(f'v_mul_f32 v40, {hx(1/512)}, v40'); a(f'v_mul_f32 v41, {hx(1/512)}, v41')
    a('v_fma_f32 v41, -v40, v40, v41'); a('v_max_f32 v41, 0, v41'); a(f'v_add_f32 v41, {hx(EPS)}, v41')
    a('v_rsq_f32 v41, v41'); a(f'v_mul_f32 v41, s{sK+2}, v41')
    a(f's_lshl_b32 s{sT}, s{sW}, 7'); a('v_and_b32 v17, 15, v0'); a(f'v_lshl_add_u32 v17, v17, 3, s{sT}'); a(f'v_add_u32 v17, v17, v{vS}')
    a.lg(f'ds_write_b64 v17, v[40:41] offset:{S_ST3}')
    a.lg0()
    a('s_mov_b64 exec, 1'); a.lg(f'ds_add_u32 v16, v{vOne} offset:{CN["T0"]}'); a('s_mov_b64 exec, -1')
    st.put('A', 'st3')
    W4F, ACC4, RING = 80, 48, 16
    a(f's_lshl_b32 s{sT+7}, s{sW}, 2'); a(f's_add_u32 s{sT+7}, s{sT+7}, {4 * (B_BAR_BEFORE_STEPS + 14)}')
    spin('B', f's{sT+7}', sleep=1)
    st.put('A', 'w4_go')
    a(f's_mul_i32 s{sT+6}, s{sW}, {SLOT}')
    a(f'v_add_u32 v{vTA0}, s{sT+6}, v{vCX}'); a(f'v_xor_b32 v{vTA1}, 64, v{vTA0}')
    a(f's_mul_i32 s{sT}, s{sW}, {22*16*1024}'); a(f's_cmp_eq_u32 s{sW}, 3'); a(f's_cselect_b32 s{sT+1}, 16384, 0')
    a(f's_sub_u32 s{sT}, s{sT}, s{sT+1}'); a(f's_lshl_b32 s{sT+1}, s{sJ}, 7'); a(f's_add_u32 s{sT}, s{sT}, s{sT+1}')
    a(f's_sub_u32 s{sT}, s{sT}, 8192')
    def w4issue(ks):
        a(f's_add_u32 m0, s{sT+6}, {(2048*(ks % 6) - 1024) & 0xffffffff}')
        for i in range(2):
            a('s_addk_i32 m0, 1024'); a(f's_addk_i32 s{sT}, 8192')
            a.vm(f'buffer_load_dwordx4 v{vW}, s[{SW4}:{SW4+3}], s{sT} offen lds', ('w4', ks))
    for ks in range(6): w4issue(ks)
    for ks in range(22):
        a.wvm(('w4', ks))
        for nt in range(2):
            for p in range(2):
                a.lg(f'ds_read_b64_tr_b16 {vr(W4F + 8*ks + 4*nt + 2*p, 2)}, v{vTA0 + nt} offset:{2048*(ks % 6) + 512*p}', ('w4f', ks))
        if ks >= 1 and ks + 5 < 22:
            a.wlg(('w4f', ks - 1)); w4issue(ks + 5)
    a.lg0()
    st.put('A', 'w4_done')
    a(f's_addk_i32 s{sF+1}, 128')
    poll2(sF + 1, 16)
    st.put('A', 'h2_seen')
    a(f's_mul_i32 s{sT}, s{sPB}, {H2SZ}'); a(f's_add_u32 s{sT}, s{sT}, {WS_H2}')
    cur = [None]
    def h2issue(f):
        th, ks = divmod(f, 22); p, i = divmod(ks, 11)
        off = H2SZ * p + 11264 * th + 1024 * i
        if cur[0] is None or not (0 <= off - cur[0] < 4096):
            cur[0] = off; a(f's_add_u32 s{sT+1}, s{sT}, {off}')
        a.vm(f'buffer_load_dwordx4 {vr(RING + 4*(f % 8), 4)}, v{vL16}, s[{SWS}:{SWS+3}], s{sT+1} offen offset:{off - cur[0]} sc1', ('h2', f))
    for f in range(8): h2issue(f)
    a(f's_lshl_b32 s{sT+6}, s{sW}, 13'); a(f's_add_u32 s{sT+6}, s{sT+6}, {X0}'); a(f'v_add_u32 v{vDW}, s{sT+6}, v{vL16}')
    spin('F3', 4)
    for f in range(44):
        th, ks = divmod(f, 22)
        a.wvm(('h2', f))
        for nt in range(2):
            c = '0' if ks == 0 else vr(ACC4 + 16*nt, 16)
            a(f'v_mfma_f32_32x32x16_bf16 {vr(ACC4 + 16*nt, 16)}, {vr(W4F + 8*ks + 4*nt, 4)}, {vr(RING + 4*(f % 8), 4)}, {c}')
        if f + 8 < 44: h2issue(f + 8)
        if ks == 21:
            for q in range(8): a.lg(f'ds_write_b128 v{vDW}, {vr(ACC4 + 4*q, 4)} offset:{32768*th + 1024*q}')
            a.lg0(); signal('D4a' if th == 0 else 'D4b')
            st.put('A', f'g4_{th}')
    st.flush('A')
    a('s_endpgm')

B_BAR_BEFORE_STEPS = 2
class BBar:
    n = 0
def bbar(sleep=0):
    BBar.n += 1
    signal('B'); spin('B', 4 * BBar.n, sleep=sleep)

def cmul(d, x, y):
    return [f'v_pk_mul_f32 v[{d}:{d+1}], v[{x}:{x+1}], v[{y}:{y+1}] op_sel:[0,0] op_sel_hi:[0,1]',
            f'v_pk_fma_f32 v[{d}:{d+1}], v[{x}:{x+1}], v[{y}:{y+1}], v[{d}:{d+1}] op_sel:[1,1,0] op_sel_hi:[1,0,1] neg_lo:[0,1,0]']

def role_B():
    a('L_B:')
    a.reset()
    a(f's_sub_u32 s{sW}, s{sW}, 4')
    vL16 = 4
    a(f'v_lshlrev_b32 v{vL16}, 4, v0')
    a('v_lshlrev_b32 v5, 7, v0')
    a(f'v_lshl_add_u32 v6, v0, 2, v{vS}'); a('v_mov_b32 v7, 0')
    a.lg(f'ds_write_b32 v6, v7 offset:{S_CNT}')
    a(f's_cmp_lg_u32 s{sW}, 3'); a('s_cbranch_scc1 L_nocode')
    a(f's_getpc_b64 s[{sT+2}:{sT+3}]')
    a('L_pc:')
    a(f's_sub_u32 s{sT+2}, s{sT+2}, L_pc-{NAME}_kernel'); a(f's_subb_u32 s{sT+3}, s{sT+3}, 0')
    a(f's_and_b32 s{sT}, s{sJ}, 3'); a(f's_lshl_b32 s{sT}, s{sT}, 13'); a(f'v_add_u32 v6, s{sT}, v5')
    a(f'v_min_u32 v6, L_codeend-{NAME}_kernel-4, v6')
    a(f'global_load_dword v7, v6, s[{sT+2}:{sT+3}]')
    a('L_nocode:')
    sD = sT + 4
    a(f's_lshl_b32 s{sD}, s{sJ}, 5'); a(f's_add_u32 s{sD}, s{sD}, s{sC}'); a(f's_lshl_b32 s{sD}, s{sD}, 1')
    a(f's_lshr_b32 s{sT}, s{sW}, 1'); a(f's_add_u32 s{sD}, s{sD}, s{sT}')
    a(f's_lshl_b32 s{sT}, s{sD}, 8'); a(f's_and_b32 s{sT+1}, s{sW}, 1'); a(f's_lshl_b32 s{sT+1}, s{sT+1}, 7'); a(f's_add_u32 s{sT}, s{sT}, s{sT+1}')
    a(f'v_lshl_add_u32 v8, v0, 1, s{sT}')
    a(f's_lshl_b32 s{sT}, s{sD}, 1'); a(f'v_mov_b32 v9, s{sT}')
    a('v_lshrrev_b32 v10, 3, v0'); a('v_and_b32 v11, 7, v0'); a('v_lshlrev_b32 v11, 4, v11'); a('v_lshl_add_u32 v10, v10, 10, v11')
    common_srds()
    srd(SW2, 58, 524288); srd(SW3, 60, 1409024); srd(SW4, 62, 1409024); srd(SOUT, 64, 2097152)
    L0, L1, L2, LE = a.label('TC'), a.label('TC'), a.label('TC'), a.label('TC')
    a(f's_cmp_eq_u32 s{sW}, 1'); a(f's_cbranch_scc1 {L1}')
    a(f's_cmp_eq_u32 s{sW}, 2'); a(f's_cbranch_scc1 {L2}')
    a(f's_cmp_eq_u32 s{sW}, 3'); a(f's_cbranch_scc1 {L0}')
    a(f's_add_u32 s{sT}, s{sIDX}, s{sJ}'); a(f's_lshl_b32 s{sT}, s{sT}, 13')
    a(f'buffer_load_dword v7, v5, s[{SX}:{SX+3}], s{sT} offen')
    a(f's_branch {LE}')
    a(f'{L1}:')
    a(f's_lshl_b32 s{sT}, s2, 11'); a('s_mov_b64 exec, 0xffff')
    a(f'buffer_load_dword v7, v5, s[{SW1}:{SW1+3}], s{sT} offen')
    a(f'buffer_load_dword v6, v5, s[{SW2}:{SW2+3}], s{sT} offen')
    a('s_mov_b64 exec, -1')
    a(f's_branch {LE}')
    a(f'{L2}:')
    a(f's_mul_i32 s{sT}, s2, 5504'); a('s_mov_b32 exec_hi, 0x7ff')
    a(f'buffer_load_dword v7, v5, s[{SW3}:{SW3+3}], s{sT} offen')
    a('s_mov_b64 exec, -1')
    a(f's_branch {LE}')
    a(f'{L0}:')
    a(f's_mul_i32 s{sT}, s2, 5504'); a('s_mov_b32 exec_hi, 0x7ff')
    a(f'buffer_load_dword v6, v5, s[{SW4}:{SW4+3}], s{sT} offen')
    a('s_mov_b64 exec, -1')
    a(f'{LE}:')
    for i in range(6): a.vm(f'global_load_ushort v{20+i}, v8, s[{38+2*i}:{39+2*i}]', 'par')
    a.vm('global_load_ushort v26, v9, s[50:51]', 'par')
    a.vm('global_load_ushort v27, v9, s[52:53]', 'par')
    sXR = sT + 5
    a(f's_cmp_lt_i32 s{sDEL}, 0'); a(f's_cselect_b32 s{sXR}, 62, 0'); a(f's_and_b32 s{sT}, s{sW}, 1'); a(f's_add_u32 s{sXR}, s{sXR}, s{sT}')
    a(f's_lshl_b32 s{sT}, s{sC}, 6'); a(f's_add_u32 s{sT}, s{sT}, s{sXR}'); a(f's_lshl_b32 s{sT}, s{sT}, 10')
    a.vm(f'buffer_load_dwordx4 v[12:15], v{vL16}, s[{SX}:{SX+3}], s{sT} offen', 'par')
    a(f's_lshl_b32 s{sT}, s{sC}, 16'); a(f's_lshl_b32 s{sT+1}, s{sW}, 14'); a(f's_add_u32 s{sT}, s{sT}, s{sT+1}')
    a(f's_lshl_b32 s{sT+1}, s{sJ}, 7'); a(f's_add_u32 s{sT}, s{sT}, s{sT+1}')
    a(f's_lshl_b32 s{sT+1}, s{sW}, 11'); a(f's_add_u32 m0, s{sT+1}, {S0 + S_XT}')
    a.vm(f'buffer_load_dwordx4 v10, s[{SX}:{SX+3}], s{sT} offen lds', 'xt')
    a('s_addk_i32 m0, 1024'); a(f's_addk_i32 s{sT}, 8192')
    a.vm(f'buffer_load_dwordx4 v10, s[{SX}:{SX+3}], s{sT} offen lds', 'xt')
    a('s_barrier')
    a('s_waitcnt lgkmcnt(0)')
    a(f's_add_u32 s{sEP}, s{sEP}, 1')
    st.put('B', 'issued')
    a.wvm('par')
    st.put('B', 'par')
    a('v_mov_b32 v16, 0'); a('v_mov_b32 v17, 0')
    for d in range(4):
        a(f'v_dot2c_f32_bf16 v16, s{sK+4}, v{12+d}'); a(f'v_dot2c_f32_bf16 v17, v{12+d}, v{12+d}')
    a('v_permlane32_swap_b32 v16, v17'); a('v_add_f32 v16, v16, v17')
    a('v_mov_b32 v17, v16'); a('v_permlane16_swap_b32 v16, v17'); a('v_add_f32 v16, v16, v17')
    for sh in (8, 4, 2, 1): a(f'v_add_f32_dpp v16, v16, v16 row_ror:{sh} row_mask:0xf bank_mask:0xf')
    a('v_mov_b32 v17, v16'); a('v_permlane32_swap_b32 v16, v17')
    def finstat(m):
        a(f'v_mul_f32 v{m}, {hx(1/512)}, v{m}'); a(f'v_mul_f32 v{m+1}, {hx(1/512)}, v{m+1}')
        a(f'v_fma_f32 v{m+1}, -v{m}, v{m}, v{m+1}'); a(f'v_max_f32 v{m+1}, 0, v{m+1}'); a(f'v_add_f32 v{m+1}, {hx(EPS)}, v{m+1}')
        a(f'v_rsq_f32 v{m+1}, v{m+1}')
    finstat(16)
    a(f's_lshl_b32 s{sT}, s{sXR}, 3'); a(f'v_add_u32 v18, s{sT}, v{vS}')
    a.lg(f'ds_write_b64 v18, v[16:17] offset:{S_ST + 16}')
    for i in range(8): a(f'v_lshlrev_b32 v{20+i}, 16, v{20+i}')
    a(f'v_mul_f32 v26, {hx(LOG2E)}, v26'); a('v_exp_f32 v26, v26')
    a('v_cvt_pk_bf16_f32 v26, v26, v26'); a('v_and_b32 v26, 0xffff0000, v26')
    for i in range(4): a(f'v_mul_f32 v{20+i}, v26, v{20+i}')
    a(f'v_mul_f32 v20, {hx(LOG2E)}, v20'); a(f'v_mul_f32 v21, {hx(1/(2*math.pi))}, v21')
    E = {1: 30, 8: 32, 256: 34}
    for l, r in E.items():
        a(f'v_mul_f32 v28, {hx(l)}, v20'); a(f'v_mul_f32 v29, {hx(l)}, v21')
        a('v_exp_f32 v28, v28'); a('v_fract_f32 v29, v29')
        a(f'v_cos_f32 v{r}, v29'); a(f'v_sin_f32 v{r+1}, v29')
        a(f'v_mul_f32 v{r}, v{r}, v28'); a(f'v_mul_f32 v{r+1}, v{r+1}, v28')
    YV, XV = 64, 128
    PK = 192
    FY, FX = 224, 96
    FX = 64
    a(f's_mul_i32 s{sT+6}, s{sW}, 4352'); a(f's_add_u32 s{sT+6}, s{sT+6}, {S0 + S_KF}')
    a(f'v_lshl_add_u32 v36, v0, 2, s{sT+6}')
    a('v_and_b32 v37, 15, v0'); a('v_mul_u32_u24 v37, 272, v37'); a('v_lshrrev_b32 v38, 5, v0'); a('v_lshl_add_u32 v37, v38, 4, v37')
    a(f'v_add_u32 v37, s{sT+6}, v37')
    a(f'v_mov_b32 v{YV}, 1.0'); a(f'v_mov_b32 v{YV+1}, 0'); a(f'v_mov_b32 v{YV+2}, v32'); a(f'v_mov_b32 v{YV+3}, v33')
    his0 = list(range(9)) + [256, 258, 260, 262, 264]
    his1 = [512, 516, 520, 768, 772, 776, 1024, 1032, 1280, 1288, 1536, 1544, 1792, 1800]
    xi = {h: XV + 2 * i for i, h in enumerate(his0 + his1)}
    xchain = cmul(xi[0], 24, 22)
    for h in range(1, 9): xchain += cmul(xi[h], xi[h-1], 30)
    ych = cmul(YV+4, YV+2, YV+2) + cmul(YV+6, YV+4, YV+2) + cmul(YV+8, YV+4, YV+4)
    for j in range(5, 32): ych += cmul(YV + 2*j, YV + 2*(j-4), YV + 8)
    head, rest = ych[:6], ych[6:]
    grp = []
    for g in range(0, len(rest), 8):
        blk = rest[g:g+8]; grp += blk[0::2] + blk[1::2]
    x2 = []
    for lvl in ([256, 258, 260, 262, 264], [512, 516, 520], [768, 772, 776], [1024, 1032], [1280, 1288], [1536, 1544], [1792, 1800]):
        blk = []
        for h in lvl: blk += cmul(xi[h], xi[h-256], 34)
        x2 += blk[0::2] + blk[1::2]
    for x in interleave([head + grp, xchain + x2]): a(x)
    def batch(rows_src, neg, F):
        for b in range(2):
            for r in range(16):
                row = 16 * b + r
                if row in rows_src:
                    s = rows_src[row]
                    a(f'v_cvt_pk_bf16_f32 v{PK + row}, v{s}, {"-" if neg else ""}v{s+1}')
                    a.lg(f'ds_write_b32 v36, v{PK + row} offset:{272*r}')
            a(f's_mov_b32 exec_lo, {"0x0000ffff" if b == 0 else "0xffff0000"}'); a('s_mov_b32 exec_hi, exec_lo')
            for ks in range(8): a.lg(f'ds_read_b128 {vr(F + 4*ks, 4)}, v37 offset:{32*ks}')
            a('s_mov_b64 exec, -1')
    batch({j: YV + 2*j for j in range(32)}, False, FY)
    rowof = lambda v, half: (v & 3) + 8 * (v >> 2) + 4 * half
    xrows = {rowof(v, 0): xi[h] for v, h in enumerate(his0)}
    xrows.update({rowof(v, 1): xi[h] for v, h in enumerate(his1)})
    batch(xrows, True, FX)
    a.lg0()
    KD = 40
    for ks in range(8):
        a(f'v_mfma_f32_32x32x16_bf16 {vr(KD, 16)}, {vr(FX + 4*ks, 4)}, {vr(FY + 4*ks, 4)}, {"0" if ks == 0 else vr(KD, 16)}')
    a(f'v_add_u32 v36, s{sT+6}, v{vL16}')
    a(f's_xor_b32 s{sT}, s{sW}, 1'); a(f's_mul_i32 s{sT}, s{sT}, 4352'); a(f's_add_u32 s{sT}, s{sT}, {S0 + S_KF}')
    a(f'v_add_u32 v37, s{sT}, v{vL16}')
    for q in range(4): a.lg(f'ds_write_b128 v36, {vr(KD + 4*q, 4)} offset:{1024*q}')
    a.wvm('xt')
    a.lg0(); bbar()
    for q in range(4): a.lg(f'ds_read_b128 {vr(64 + 4*q, 4)}, v37 offset:{1024*q}')
    a.lg0(); bbar()
    padd(KD, KD, 64, 16)
    a('s_mov_b64 exec, 1'); a(f'v_add_f32 v{KD}, v{KD}, v27'); a('s_mov_b64 exec, -1')
    a(f's_lshr_b32 s{sT}, s{sW}, 1'); a(f's_mul_i32 s{sT+7}, s{sT}, {2*KCOPY}'); a(f's_add_u32 s{sT+7}, s{sT+7}, {S0 + S_KF}')
    a('v_and_b32 v36, 31, v0'); a('v_lshlrev_b32 v36, 4, v36'); a(f's_add_u32 s{sT}, s{sT+7}, {4080 - 512*7}'); a(f'v_sub_u32 v36, s{sT}, v36')
    def expand(seg, vals, tmp):
        for i in range(4): a(f'v_cvt_pk_bf16_f32 v{tmp+i}, v{vals[7-2*i]}, v{vals[6-2*i]}')
        for i in range(4): a(f'v_cvt_pk_bf16_f32 v{tmp+4+i}, v{vals[8-2*i]}, v{vals[7-2*i]}')
        a.lg(f'ds_write_b128 v36, {vr(tmp, 4)} offset:{512*(7-seg)}')
        a.lg(f'ds_write_b128 v36, {vr(tmp+4, 4)} offset:{512*(7-seg) + KCOPY}')
    LX1, LXE = a.label('EX'), a.label('EX')
    a(f's_bitcmp1_b32 s{sW}, 0'); a(f's_cbranch_scc1 {LX1}')
    a('s_mov_b32 exec_lo, -1'); a('s_mov_b32 exec_hi, 0')
    expand(0, [KD + i for i in range(9)], 64)
    expand(1, [KD + 9 + k for k in (0, 0, 1, 2, 2, 2, 3, 4, 4)], 72)
    a('s_mov_b64 exec, 1')
    a(f'v_mov_b32 v37, s{sT+7}')
    for i in range(80, 88): a(f'v_mov_b32 v{i}, 0')
    a(f'v_cvt_pk_bf16_f32 v84, v{KD}, v80')
    a.lg('ds_write_b128 v37, v[80:83] offset:4096'); a.lg('ds_write_b128 v37, v[80:83] offset:4112')
    a.lg(f'ds_write_b128 v37, v[84:87] offset:{4096 + KCOPY}'); a.lg(f'ds_write_b128 v37, v[80:83] offset:{4112 + KCOPY}')
    a('s_mov_b32 exec_lo, 0'); a('s_mov_b32 exec_hi, -1')
    expand(2, [KD + k for k in (0, 0, 0, 1, 1, 1, 2, 2, 2)], 88)
    expand(3, [KD + 3 + k for k in (0, 0, 0, 1, 1, 1, 2, 2, 2)], 96)
    a(f's_branch {LXE}')
    a(f'{LX1}:')
    a('s_mov_b32 exec_lo, 0'); a('s_mov_b32 exec_hi, -1')
    a('v_and_b32 v37, 1, v0'); a('v_cmp_eq_u32 vcc, 1, v37')
    for s in range(4):
        lo, hi = KD + 6 + 2*s, KD + 7 + 2*s
        a(f'v_cndmask_b32 v38, v{lo}, v{hi}, vcc')
        expand(4 + s, [lo, lo, lo, lo, 38, hi, hi, hi, hi], 64 + 8*s)
    a(f'{LXE}:')
    a('s_mov_b64 exec, -1')
    st.put('B', 'kgen')
    spin('S', 4)
    st.put('B', 'S_seen')
    a('v_and_b32 v16, 31, v0'); a('v_lshrrev_b32 v17, 5, v0'); a('v_lshlrev_b32 v16, 2, v16'); a('v_lshl_add_u32 v16, v17, 8, v16')
    a(f'v_add_u32 v16, {S0 + S_STP}, v16')
    a('v_add_u32 v17, 1024, v16')
    for w2 in range(4): a.lg(f'ds_read2_b32 v[{20+2*w2}:{21+2*w2}], v{16 + (w2 >> 1)} offset0:{128*(w2 & 1)} offset1:{128*(w2 & 1) + 32}')
    a('v_lshrrev_b32 v18, 4, v0'); a('v_bfe_u32 v19, v0, 2, 2'); a('v_lshl_add_u32 v19, v18, 3, v19'); a('v_lshlrev_b32 v19, 7, v19')
    a('v_and_b32 v28, 3, v0'); a('v_lshl_add_u32 v19, v28, 3, v19'); a(f's_lshl_b32 s{sT}, s{sW}, 5'); a(f's_add_u32 s{sT}, s{sT}, {S0}')
    a(f'v_add_u32 v19, s{sT}, v19')
    for o in range(2):
        for p in range(2): a.lg(f'ds_read_b64_tr_b16 v[{64+4*o+2*p}:{65+4*o+2*p}], v19 offset:{S_XT + 4096*o + 512*p}')
    a.lg0()
    padd(20, 20, 22, 2); padd(24, 24, 26, 2); padd(20, 20, 24, 2)
    finstat(20)
    a(f's_lshl_b32 s{sT}, s{sDEL}, 3'); a(f's_add_u32 s{sT}, s{sT}, {S0}'); a(f'v_lshl_add_u32 v16, v0, 3, s{sT}')
    a.lg(f'ds_write_b64 v16, v[20:21] offset:{S_ST + 16}')
    a.lg0()
    signal('STAT')
    a(f'v_lshl_add_u32 v16, v18, 6, v{vS}')
    for o in range(2):
        for k in range(4): a.lg(f'ds_read_b128 {vr(72 + 16*o + 4*k, 4)}, v16 offset:{S_ST + 16 + 256*o + 16*k}', ('ms', o))
    a('v_and_b32 v17, 15, v0'); a('v_lshlrev_b32 v17, 12, v17'); a('v_lshl_add_u32 v17, v18, 4, v17')
    a(f's_lshl_b32 s{sT}, s{sJ}, 18'); a(f's_lshl_b32 s{sT+1}, s{sW}, 16'); a(f's_add_u32 s{sT}, s{sT}, s{sT+1}')
    a(f's_lshl_b32 s{sT+1}, s{sC}, 7'); a(f's_add_u32 s{sT}, s{sT}, s{sT+1}'); a(f's_add_u32 s{sT}, s{sT}, {WS_UT}')
    for o in range(2):
        a.wlg(('ms', o))
        for d in range(4):
            a(f'v_lshlrev_b32 v{104+2*d}, 16, v{64+4*o+d}'); a(f'v_and_b32 v{105+2*d}, 0xffff0000, v{64+4*o+d}')
        for i in range(8): a(f'v_sub_f32 v{104+i}, v{104+i}, v{72+16*o+2*i}')
        for i in range(8): a(f'v_mul_f32 v{104+i}, v{104+i}, v{73+16*o+2*i}')
        for d in range(4): a(f'v_cvt_pk_bf16_f32 v{112+4*o+d}, v{104+2*d}, v{105+2*d}')
        a.vm(f'buffer_store_dwordx4 {vr(112 + 4*o, 4)}, v17, s[{SWS}:{SWS+3}], s{sT} offen offset:{64*o} sc1')
    st.put('B', 'u_stored')
    sCF, sCP = sT + 2, sT + 3
    a(f's_lshl_b32 s{sCP}, s{sJ}, 10'); a(f's_add_u32 s{sCP}, s{sCP}, {WS_CFLAG}')
    a(f's_lshr_b32 s{sT}, s{sC}, 3'); a(f's_lshl_b32 s{sT}, s{sT}, 7'); a(f's_and_b32 s{sT+1}, s{sC}, 7'); a(f's_lshl_b32 s{sT+1}, s{sT+1}, 2')
    a(f's_add_u32 s{sCF}, s{sT}, s{sT+1}'); a(f's_add_u32 s{sCF}, s{sCF}, s{sCP}')
    vD, vTR, ONES, CS, CACC, vCU, vCT, TRING, UF = 5, 8, 12, 16, 28, 9, 60, 44, 224
    for m in range(3):
        a(f's_mul_i32 s{sT}, s{sW}, 192'); a(f's_add_u32 s{sT}, s{sT}, {64*m}')
        a(f'v_add_u32 v20, s{sT}, v0')
        a('v_mul_u32_u24 v21, 2979, v20'); a('v_lshrrev_b32 v21, 16, v21')
        a('v_mul_u32_u24 v22, 22, v21'); a('v_sub_u32 v22, v20, v22')
        a('v_mul_u32_u24 v21, 2752, v21'); a(f'v_lshl_add_u32 v{vD+m}, v22, 4, v21')
        if m == 2:
            a('v_cmp_lt_u32 vcc, 703, v20'); a('v_mov_b32 v21, 0x80000000'); a(f'v_cndmask_b32 v{vD+m}, v{vD+m}, v21, vcc')
    a('v_lshrrev_b32 v20, 5, v0'); a('v_bfe_u32 v21, v0, 2, 3'); a('v_lshl_add_u32 v20, v20, 4, v21')
    a('v_mul_u32_u24 v20, 352, v20'); a('v_and_b32 v21, 3, v0'); a('v_lshl_add_u32 v20, v21, 3, v20')
    a(f's_lshl_b32 s{sT}, s{sW}, 5'); a(f'v_add_u32 v{vTR}, s{sT}, v20')
    for i in range(4): a(f'v_mov_b32 v{ONES+i}, s{sK+4}')
    a(f's_lshr_b32 s{sT}, s{sW}, 1'); a(f's_mul_i32 s{sT+6}, s{sT}, {USZ}'); a(f's_add_u32 s{sT+6}, s{sT+6}, {U0}')
    a('v_and_b32 v20, 15, v0'); a('v_lshrrev_b32 v21, 4, v0'); a('v_lshlrev_b32 v21, 4, v21')
    a('v_lshl_add_u32 v22, v20, 5, v21'); a(f's_add_u32 s{sT}, s{sT+6}, 480'); a(f'v_add_u32 v{vCU}, s{sT}, v22')
    a('v_add_u32 v22, 1, v20'); a('v_lshrrev_b32 v23, 1, v22'); a('v_lshlrev_b32 v23, 2, v23'); a('v_sub_u32 v21, v21, v23')
    a('v_and_b32 v22, 1, v22'); a(f'v_mul_u32_u24 v22, {KCOPY}, v22'); a('v_add_u32 v21, v21, v22')
    for m in range(4):
        a(f's_add_u32 s{sT}, s{sT+7}, {4064 - 512*(2*m+1)}'); a(f'v_add_u32 v{vCT+m}, s{sT}, v21')
    for i in range(16): a(f'v_mov_b32 v{CACC+i}, 0')
    publish('FU', sCF)
    st.put('B', 'u_flag')
    spin('W', 4)
    st.put('B', 'W_free')
    sW3 = sT + 5
    a(f's_mul_i32 s{sW3}, s{sJ}, 352'); a(f's_cmp_ge_u32 s{sJ}, 6'); a(f's_cselect_b32 s{sT}, 32, 0'); a(f's_sub_u32 s{sW3}, s{sW3}, s{sT}')
    sM3 = sK + 5
    a(f's_mul_i32 s{sM3}, s{sW}, 3072')
    def w3issue(ch):
        a(f's_add_u32 m0, s{sM3}, {SLOT * (ch & 3)}')
        for m in range(3):
            if m: a('s_addk_i32 m0, 1024')
            a.vm(f'buffer_load_dwordx4 v{vD+m}, s[{SW3}:{SW3+3}], s{sW3} offen lds', ('w3', ch))
        a(f's_add_u32 s{sW3}, s{sW3}, {32*2752}')
    for ch in range(3): w3issue(ch)
    a(f'v_add_u32 v20, s{sT+6}, v{vL16}')
    a('s_mov_b32 exec_lo, -1'); a('s_mov_b32 exec_hi, 0'); a.lg(f'ds_write_b128 v20, {vr(CACC, 4)}'); a('s_mov_b64 exec, -1')
    assert BBar.n == B_BAR_BEFORE_STEPS
    W3F = 64
    nconv = 0
    for i in range(16):
        a.wvm([('w3', i)] + (['u'] if i == min(cfg.conv_sched) else []))
        a.lg0(); bbar()
        if i + 3 < 16: w3issue(i + 3)
        for m in range(3):
            for p in range(2):
                a.lg(f'ds_read_b64_tr_b16 {vr(W3F + 12*i + 4*m + 2*p, 2)}, v{vTR} offset:{SLOT*(i & 3) + 128*m + 2816*p}')
        a.lg0()
        for m in range(3):
            a(f'v_mfma_f32_16x16x32_bf16 {vr(CS + 4*m, 4)}, {vr(W3F + 12*i + 4*m, 4)}, {vr(ONES, 4)}, {"0" if i == 0 else vr(CS + 4*m, 4)}')
        if i == cfg.poll_step:
            st.put('B', 'u_poll')
            saved = list(a.vmq)
            poll32(sCP, TRING, TRING + 1)
            st.put('B', 'u_seen')
            a(f's_lshl_b32 s{sT}, s{sD}, 12'); a(f's_and_b32 s{sT+1}, s{sW}, 1'); a(f's_lshl_b32 s{sT+1}, s{sT+1}, 11')
            a(f's_add_u32 s{sT}, s{sT}, s{sT+1}'); a(f's_add_u32 s{sT}, s{sT}, {WS_UT}')
            a(f's_add_u32 s{sT+1}, s{sT+1}, s{sT+6}'); a(f's_add_u32 m0, s{sT+1}, 512')
            for k in range(2): a.vm(f'buffer_load_dwordx4 v{vL16}, s[{SWS}:{SWS+3}], s{sT} offen offset:{1024*k} sc1 lds', 'u')
        for _ in range(cfg.conv_sched.get(i, 0)):
            a(f's_call_b64 s[{sRET}:{sRET+1}], L_conv'); nconv += 1
            if nconv == 8:
                st.put('B', 'conv_done')
                a('s_nop 7')
                a('v_and_b32 v56, 15, v0'); a('v_lshrrev_b32 v57, 4, v0'); a('v_lshlrev_b32 v57, 3, v57'); a('v_lshl_add_u32 v56, v56, 5, v57')
                a(f's_lshl_b32 s{sT}, s{sD}, 12'); a(f's_add_u32 s{sT}, s{sT}, {WS_ST}')
                a(f's_and_b32 s{sT+1}, s{sW}, 1'); a(f's_lshl_b32 s{sT+1}, s{sT+1}, 9')
                for k, q in enumerate((0, 3, 4, 7)):
                    for d in range(2): a(f'v_cvt_pk_bf16_f32 v{TRING+2*k+d}, v{CACC+4*k+2*d}, v{CACC+4*k+2*d+1}')
                    a(f's_xor_b32 s{sT+8}, s{sT+1}, {512*q}'); a(f's_add_u32 s{sT+8}, s{sT+8}, s{sT}')
                    a.vm(f'buffer_store_dwordx2 v[{TRING+2*k}:{TRING+2*k+1}], v56, s[{SWS}:{SWS+3}], s{sT+8} offen sc1', 'sst')
    assert nconv == 8
    signal('B'); BBar.n += 1
    a(f's_addk_i32 s{sCF}, 512'); a(f's_addk_i32 s{sCP}, 512')
    publish('FS', sCF)
    st.put('B', 'w3_done')
    ACC3, FR, GT, MS, vX1, vH2, vS3, PKD = 28, 52, 6, 10, 5, 12, 13, 14
    a(f'v_add_u32 v{vX1}, {X0}, v{vL16}')
    a('v_lshrrev_b32 v6, 5, v0'); a('v_and_b32 v7, 15, v0'); a('v_lshl_add_u32 v6, v6, 5, v7'); a('v_lshlrev_b32 v6, 4, v6')
    a('v_bfe_u32 v8, v0, 4, 1'); a(f'v_lshl_add_u32 v{vH2}, v8, 3, v6')
    a(f'v_lshl_add_u32 v{vS3}, v7, 3, v{vS}')
    sH2 = sT + 5
    a(f's_add_u32 s{sH2}, s{sIDX}, s{sJ}'); a(f's_mul_i32 s{sH2}, s{sH2}, {H2SZ}'); a(f's_add_u32 s{sH2}, s{sH2}, {WS_H2}')
    a(f's_lshl_b32 s{sT}, s{sW}, 10'); a(f's_add_u32 s{sH2}, s{sH2}, s{sT}')
    sH2c, sZ = sT + 6, sT + 7
    a(f's_add_u32 s{sH2c}, s{sH2}, 8192'); a(f's_cmp_eq_u32 s{sW}, 3'); a(f's_cselect_b32 s{sH2c}, 0x80000000, s{sH2c}')
    a(f's_or_b32 s{sT}, s{sJ}, 2'); a(f's_lshl_b32 s{sT}, s{sT}, 2'); a(f's_add_u32 s{sT}, s{sT}, s{sW}')
    a(f's_cmp_eq_u32 s{sT}, {7*4+2}'); a(f's_cselect_b32 s{sZ}, 0, -1')
    a('s_setprio 2')
    def epi3(tau):
        o = []
        A3 = ACC3 + 12 * (tau & 1)
        for m in range(3):
            chains = []
            for k in range(2):
                p = A3 + 4*m + 2*k; c = CS + 4*m + 2*k
                if cfg.pk3:
                    ch = [f'v_pk_fma_f32 v[{p}:{p+1}], v[{c}:{c+1}], v[{MS}:{MS+1}], v[{p}:{p+1}] op_sel_hi:[1,0,1] neg_lo:[0,1,0] neg_hi:[0,1,0]',
                          f'v_pk_mul_f32 v[{p}:{p+1}], v[{p}:{p+1}], v[{MS}:{MS+1}] op_sel:[0,1] op_sel_hi:[1,1]']
                else:
                    ch = [f'v_fma_f32 v{p+i}, -v{c+i}, v{MS}, v{p+i}' for i in range(2)] + [f'v_mul_f32 v{p+i}, v{p+i}, v{MS+1}' for i in range(2)]
                ch += gelu_ops(p, GT + 2*k, PKD + k, cfg.pk3)
                chains.append(ch)
            o += interleave(chains)
            if m == 2:
                o += [f'v_and_b32 v{PKD+k}, s{sZ}, v{PKD+k}' for k in range(2)]
            off = 11264 * (tau >> 1) + 256 * (tau & 1) + (4096 if m == 1 else 0)
            base = sH2c if m == 2 else sH2
            o.append(f's_add_u32 s{sT}, s{base}, {off}')
            o.append(('vm', f'buffer_store_dwordx2 v[{PKD}:{PKD+1}], v{vH2}, s[{SWS}:{SWS+3}], s{sT} offen sc1'))
        return o
    def emit(x):
        if isinstance(x, tuple): a.vm(x[1])
        else: a(x)
    for tau in range(4):
        spin(f'X{tau}', 4)
        if tau == 0: st.put('B', 'g3_start')
        pend = []
        if tau > 0:
            spin(f'T{tau-1}', 1)
            a(f'ds_read_b64 v[{MS}:{MS+1}], v{vS3} offset:{S_ST3 + 128*(tau-1)}')
            a.lgq.append('ms')
            pend = epi3(tau - 1)
        def rdf(ks): a.lg(f'ds_read_b128 {vr(FR + 4*(ks % 3), 4)}, v{vX1} offset:{16384*tau + 1024*ks}', ('f', ks))
        rdf(0); rdf(1)
        per = -(-len(pend) // 45) if pend else 0
        for ks in range(16):
            a.wlg(('f', ks))
            for m in range(3):
                A3 = ACC3 + 12 * (tau & 1) + 4 * m
                a(f'v_mfma_f32_16x16x32_bf16 {vr(A3, 4)}, {vr(W3F + 12*ks + 4*m, 4)}, {vr(FR + 4*(ks % 3), 4)}, {"0" if ks == 0 else vr(A3, 4)}')
                if m == 0 and ks + 2 < 16: rdf(ks + 2)
                if ks >= 1:
                    for _ in range(per):
                        if pend: emit(pend.pop(0))
        while pend: emit(pend.pop(0))
    st.put('B', 'g3_mfma')
    spin('T3', 1)
    a(f'ds_read_b64 v[{MS}:{MS+1}], v{vS3} offset:{S_ST3 + 128*3}'); a.lg0()
    for x in epi3(3): emit(x)
    a('s_setprio 0')
    st.put('B', 'h2_stored')
    X1R, XR, SR_, Z = 64, 80, 96, 112
    a('v_and_b32 v20, 15, v0'); a('v_lshrrev_b32 v21, 4, v0')
    a('v_lshrrev_b32 v22, 5, v0'); a('v_lshlrev_b32 v22, 9, v22'); a('v_lshl_add_u32 v22, v20, 4, v22')
    a('v_and_b32 v23, 1, v21'); a('v_lshl_add_u32 v22, v23, 3, v22')
    a(f's_and_b32 s{sT}, s{sW}, 1'); a(f's_lshl_b32 s{sT+8}, s{sT}, 14'); a(f's_lshr_b32 s{sT+1}, s{sW}, 1')
    a(f's_lshl_b32 s{sT+9}, s{sJ}, 1'); a(f's_add_u32 s{sT+9}, s{sT+9}, s{sT+1}'); a(f's_lshl_b32 s{sT+9}, s{sT+9}, 10')
    a(f's_add_u32 s{sT+8}, s{sT+8}, s{sT+9}'); a(f's_add_u32 s{sT+8}, s{sT+8}, {X0}'); a(f'v_add_u32 v22, s{sT+8}, v22')
    for th in range(2):
        for h in range(2): a.lg(f'ds_read_b64 v[{32+4*th+2*h}:{33+4*th+2*h}], v22 offset:{32768*th + 256*h}')
    a('v_lshlrev_b32 v23, 7, v20'); a('v_lshl_add_u32 v23, v21, 4, v23')
    a(f's_lshl_b32 s{sT+8}, s{sT}, 11'); a(f's_lshl_b32 s{sT+9}, s{sT+1}, 6'); a(f's_add_u32 s{sT+8}, s{sT+8}, s{sT+9}'); a(f's_add_u32 s{sT+8}, s{sT+8}, {S0}')
    a(f'v_add_u32 v23, s{sT+8}, v23')
    for th in range(2): a.lg(f'ds_read_b128 {vr(40 + 4*th, 4)}, v23 offset:{S_XT + 4096*th}')
    a.lg0()
    sF3 = sT + 5
    a(f's_lshl_b32 s{sF3}, s{sC}, 9'); a(f's_lshl_b32 s{sT+8}, s{sJ}, 2'); a(f's_add_u32 s{sF3}, s{sF3}, s{sT+8}'); a(f's_add_u32 s{sF3}, s{sF3}, {WS_FLAG + 256}')
    publish('F3', sF3)
    st.put('B', 'h2_flag')
    poll32(sCP, 24, 25)
    st.put('B', 's_seen')
    a('v_lshrrev_b32 v24, 3, v0'); a('v_and_b32 v25, 7, v0'); a('v_lshlrev_b32 v25, 4, v25'); a('v_lshl_add_u32 v24, v24, 12, v25')
    a(f's_lshl_b32 s{sT+8}, s{sJ}, 18'); a(f's_lshl_b32 s{sT+9}, s{sW}, 16'); a(f's_add_u32 s{sT+8}, s{sT+8}, s{sT+9}')
    a(f's_lshl_b32 s{sT+9}, s{sC}, 7'); a(f's_add_u32 s{sT+8}, s{sT+8}, s{sT+9}'); a(f's_add_u32 s{sT+8}, s{sT+8}, {WS_ST}')
    a(f's_lshl_b32 s{sT+9}, s{sW}, 11'); a(f's_add_u32 m0, s{sT+9}, {S0 + S_KF}')
    a.vm(f'buffer_load_dwordx4 v24, s[{SWS}:{SWS+3}], s{sT+8} offen sc1 lds')
    a('s_addk_i32 m0, 1024'); a(f's_add_u32 s{sT+8}, s{sT+8}, 0x8000')
    a.vm(f'buffer_load_dwordx4 v24, s[{SWS}:{SWS+3}], s{sT+8} offen sc1 lds')
    def unpack(dst, src, n):
        for d in range(n):
            a(f'v_lshlrev_b32 v{dst+2*d}, 16, v{src+d}'); a(f'v_and_b32 v{dst+2*d+1}, 0xffff0000, v{src+d}')
    unpack(X1R, 32, 8); unpack(XR, 40, 8)
    a('v_bfe_u32 v24, v0, 2, 2'); a('v_lshl_add_u32 v24, v21, 3, v24'); a('v_lshlrev_b32 v24, 7, v24')
    a('v_and_b32 v25, 3, v0'); a('v_lshl_add_u32 v24, v25, 3, v24')
    a(f's_lshl_b32 s{sT+8}, s{sT+1}, 12'); a(f's_lshl_b32 s{sT+9}, s{sT}, 5'); a(f's_add_u32 s{sT+8}, s{sT+8}, s{sT+9}'); a(f's_add_u32 s{sT+8}, s{sT+8}, {S0}')
    a(f'v_add_u32 v24, s{sT+8}, v24')
    a('v_lshlrev_b32 v25, 4, v20'); a('v_lshl_add_u32 v25, v21, 10, v25')
    a(f's_lshl_b32 s{sT+8}, s{sT+1}, 12'); a(f's_lshl_b32 s{sT+9}, s{sT}, 8'); a(f's_add_u32 s{sT+8}, s{sT+8}, s{sT+9}'); a(f's_add_u32 s{sT+8}, s{sT+8}, {X0}')
    a(f'v_add_u32 v25, s{sT+8}, v25')
    a('v_lshlrev_b32 v26, 10, v20'); a('v_lshl_add_u32 v26, v21, 4, v26')
    sO = sT + 5
    a(f's_lshl_b32 s{sO}, s{sC}, 16'); a(f's_lshl_b32 s{sT+8}, s{sT}, 14'); a(f's_add_u32 s{sO}, s{sO}, s{sT+8}')
    a(f's_lshl_b32 s{sT+8}, s{sJ}, 7'); a(f's_add_u32 s{sO}, s{sO}, s{sT+8}'); a(f's_lshl_b32 s{sT+8}, s{sT+1}, 6'); a(f's_add_u32 s{sO}, s{sO}, s{sT+8}')
    a.vm0(); bbar()
    for th in range(2):
        for p in range(2): a.lg(f'ds_read_b64_tr_b16 v[{32+4*th+2*p}:{33+4*th+2*p}], v24 offset:{S_KF + 512*p + 64*th}')
    a.lg0()
    unpack(SR_, 32, 8)
    a(f's_mov_b32 s{sK+6}, {hx(-LOG2E)}'); a(f's_mov_b32 s{sK+7}, {hx(-LOG2E)}')
    st.put('B', 'prep')
    for th in range(2):
        spin('D4a' if th == 0 else 'D4b', 4)
        for w2 in range(4):
            for h in range(2): a.lg(f'ds_read_b128 {vr(Z + 8*w2 + 4*h, 4)}, v25 offset:{32768*th + 8192*w2 + 512*h}', ('z', w2))
        z = X1R + 8 * th
        for w2 in range(4):
            a.wlg(('z', w2)); padd(z, z, Z + 8*w2, 8)
        t = Z
        for i in range(0, 8, 2): a(f'v_pk_mul_f32 v[{t+i}:{t+i+1}], v[{z+i}:{z+i+1}], s[{sK+6}:{sK+7}]')
        for i in range(8): a(f'v_exp_f32 v{t+i}, v{t+i}')
        for i in range(0, 8, 2): a(f'v_pk_add_f32 v[{t+i}:{t+i+1}], v[{t+i}:{t+i+1}], 1.0 op_sel_hi:[1,0]')
        for i in range(0, 8, 2): a(f'v_pk_mul_f32 v[{z+i}:{z+i+1}], v[{z+i}:{z+i+1}], v[{SR_+8*th+i}:{SR_+8*th+i+1}]')
        for i in range(8): a(f'v_rcp_f32 v{t+i}, v{t+i}')
        for i in range(0, 8, 2): a(f'v_pk_fma_f32 v[{z+i}:{z+i+1}], v[{z+i}:{z+i+1}], v[{t+i}:{t+i+1}], v[{XR+8*th+i}:{XR+8*th+i+1}]')
        for i in range(4): a(f'v_cvt_pk_bf16_f32 v{48+4*th+i}, v{z+2*i}, v{z+2*i+1}')
        if th == 1: a(f's_add_u32 s{sO}, s{sO}, 0x8000')
        a.vm(f'buffer_store_dwordx4 {vr(48 + 4*th, 4)}, v26, s[{SOUT}:{SOUT+3}], s{sO} offen')
        st.put('B', f'out{th}')
    LE2 = a.label('EP')
    a(f's_add_u32 s{sT}, s2, s{sW}'); a(f's_cmp_lg_u32 s{sT}, 0'); a(f's_cbranch_scc1 {LE2}')
    a('s_mov_b64 exec, 1'); a(f'v_mov_b32 v{vT}, s{sEP}')
    a(f'buffer_store_dword v{vT}, off, s[{SWS}:{SWS+3}], 0 sc1')
    a('s_mov_b64 exec, -1')
    a(f'{LE2}:')
    st.flush('B')
    a('L_end:')
    a('s_endpgm')
    a('L_conv:')
    a.reset()
    LP1 = a.label('CV')
    a(f's_bitcmp1_b32 s{sW}, 0'); a(f's_cbranch_scc1 {LP1}')
    for part, qs in enumerate(((0, 3, 4, 7), (1, 2, 5, 6))):
        if part: a(f'{LP1}:')
        a.reset()
        imax = max(qs)
        def ld(i):
            t = TRING + 4 * (i % 4); o = 128 if i % 2 == 0 else 0
            a.lg(f'ds_read2_b32 v[{t}:{t+1}], v{vCT + i//2} offset0:{o} offset1:{o+1}', ('T', i))
            a.lg(f'ds_read2_b32 v[{t+2}:{t+3}], v{vCT + i//2} offset0:{o+2} offset1:{o+3}', ('T', i))
            jq = imax - i
            a.lg(f'ds_read_b128 {vr(UF + 4*jq, 4)}, v{vCU} offset:{512*jq}', ('T', i))
        order = list(range(imax, -1, -1))
        for i in order[:4]: ld(i)
        for n, i in enumerate(order):
            a.wlg(('T', i))
            for k, q in reversed(list(enumerate(qs))):
                if q >= i:
                    a(f'v_mfma_f32_16x16x32_bf16 {vr(CACC + 4*k, 4)}, {vr(TRING + 4*(i % 4), 4)}, {vr(UF + 4*(q - i), 4)}, {vr(CACC + 4*k, 4)}')
            if n + 4 < len(order): ld(order[n + 4])
        a(f'v_subrev_u32 v{vCU}, 64, v{vCU}')
        for m in range(4): a(f'v_subrev_u32 v{vCT+m}, 64, v{vCT+m}')
        a(f's_setpc_b64 s[{sRET}:{sRET+1}]')
    a('L_codeend:')

def build(path):
    prologue(); role_A(); role_B()
    body, npad = a.finalize()
    K = NAME + '_kernel'
    hdr = open('cdna_kernels/' + NAME + '.s.ref').read().split('; Override launch geometry')[0]
    o = hdr + '; @launch grid=(256,1,1) block=(512,1,1) lds=163840\n'
    o += f'.amdgcn_target "amdgcn-amd-amdhsa--gfx950"\n.text\n.globl {K}\n.p2align 8\n.type {K},@function\n{K}:\n'
    o += '\n'.join(('' if l.endswith(':') else '  ') + l for l in body) + '\n'
    o += f'''.section .rodata,"a"
.p2align 6
.amdhsa_kernel {K}
  .amdhsa_next_free_vgpr 256
  .amdhsa_next_free_sgpr 102
  .amdhsa_accum_offset 256
  .amdhsa_group_segment_fixed_size 0
  .amdhsa_kernarg_size 136
  .amdhsa_user_sgpr_count 2
  .amdhsa_user_sgpr_kernarg_segment_ptr 1
  .amdhsa_system_sgpr_workgroup_id_x 1
.end_amdhsa_kernel
'''
    open(path, 'w').write(o)
    import json
    json.dump(st.names, open(path + '.stamps.json', 'w'))
    print('instrs', len(body), 'pads', npad)

if __name__ == '__main__':
    out = sys.argv[1]
    for kv in sys.argv[2:]:
        k, v = kv.split('='); setattr(cfg, k, eval(v))
    build(out)
```

```python
import re

TRANS = ('v_exp_f32', 'v_log_f32', 'v_rcp_f32', 'v_rsq_f32', 'v_sqrt_f32', 'v_sin_f32', 'v_cos_f32')

def vr(a, n=1):
    return f'v{a}' if n == 1 else f'v[{a}:{a+n-1}]'
def sr(a, n=1):
    return f's{a}' if n == 1 else f's[{a}:{a+n-1}]'

_reg = re.compile(r'(?<![\w.])(-?)(?:abs\()?([vs])(?:(\d+)|\[(\d+):(\d+)\])')
def regs_of(tok):
    out = set()
    tok = tok.strip()
    if tok == 'vcc': return {('s', 106), ('s', 107)}
    if tok == 'exec': return {('s', 126), ('s', 127)}
    if tok == 'm0': return {('s', 124)}
    m = _reg.match(tok)
    if m:
        k = m.group(2)
        if m.group(3) is not None: out.add((k, int(m.group(3))))
        else:
            for i in range(int(m.group(4)), int(m.group(5)) + 1): out.add((k, i))
    return out

class Ins:
    __slots__ = ('text', 'op', 'wr', 'rd', 'kind', 'srcc', 'ab', 'passes', 'states', 'data')
    def __init__(self, text):
        self.text = text
        t = text.split(';')[0].strip()
        self.wr = set(); self.rd = set(); self.srcc = set(); self.ab = set(); self.data = set(); self.passes = 0; self.states = 1
        if not t or t.endswith(':') or t.startswith('.'):
            self.op = ''; self.kind = 'label'; self.states = 0; return
        parts = t.split(None, 1)
        op = parts[0]; self.op = op
        ops = []
        if len(parts) > 1:
            cur = ''; depth = 0
            for ch in parts[1]:
                if ch == '[': depth += 1
                if ch == ']': depth -= 1
                if ch == ',' and depth == 0: ops.append(cur); cur = ''
                else: cur += ch
            ops.append(cur)
            ops = [o.strip().split()[0] if o.strip() else '' for o in ops]
        R = [regs_of(o) for o in ops]
        if op == 's_nop':
            self.kind = 'nop'; self.states = int(ops[0], 0) + 1
        elif op.startswith('v_mfma'):
            self.kind = 'mfma'; self.wr = R[0]; self.ab = R[1] | R[2]; self.srcc = R[3]; self.rd = self.ab | self.srcc
            self.passes = 8 if '32x32' in op else 4
        elif op.startswith('v_'):
            self.kind = 'valu'
            if op.startswith('v_cmp'):
                self.wr = R[0]; self.rd = set().union(*R[1:])
            elif op.startswith('v_permlane') :
                self.wr = R[0] | R[1]; self.rd = R[0] | R[1]
            elif op.startswith(('v_readfirstlane', 'v_readlane')):
                self.wr = R[0]; self.rd = set().union(*R[1:])
            else:
                self.wr = R[0]; self.rd = set().union(*R[1:]) if len(R) > 1 else set()
                if op.startswith(('v_fmac', 'v_dot2c', 'v_writelane')) or 'dpp' in op: self.rd |= R[0]
                if op.startswith('v_cndmask') and len(R) == 3: self.rd |= regs_of('vcc')
        elif op.startswith('ds_'):
            self.kind = 'ds'
            if op.startswith(('ds_read', 'ds_add_rtn', 'ds_bpermute', 'ds_swizzle')):
                self.wr = R[0]; self.rd = set().union(*R[1:])
            else:
                self.rd = set().union(*R)
                if 'addtid' in op: self.rd |= regs_of('m0')
        elif op.startswith(('buffer_', 'global_')):
            self.kind = 'vmem'
            if ' lds' in t:
                self.rd = set().union(*R) | regs_of('m0'); self.kind = 'dma'
            elif 'load' in op:
                self.wr = R[0]; self.rd = set().union(*R[1:])
            else:
                self.rd = set().union(*R) if R else set()
                if 'x4' in op or 'x3' in op: self.data = R[0] if op.startswith('buffer_') else R[1]
        elif op.startswith('s_'):
            self.kind = 'salu'
            if op.startswith(('s_cmp', 's_cbranch', 's_branch', 's_waitcnt', 's_barrier', 's_sleep', 's_setprio', 's_endpgm', 's_setpc', 's_bitcmp')):
                self.rd = set().union(*R) if R else set()
            else:
                self.wr = R[0] if R else set(); self.rd = set().union(*R[1:]) if len(R) > 1 else set()
                if op.startswith(('s_addk', 's_mulk')): self.rd |= R[0]
        else:
            raise ValueError('unknown instr ' + text)

def need(p, c):
    n = 0
    pv = {r for r in p.wr if r[0] == 'v'}; ps = {r for r in p.wr if r[0] == 's'}
    if p.kind == 'valu':
        isdot = p.op.startswith('v_dot')
        if c.kind == 'mfma' and pv & c.rd: n = max(n, 3 if isdot else 2)
        if c.kind == 'valu':
            if p.op in TRANS or p.op.replace('_e64', '') in TRANS:
                if pv & c.rd: n = max(n, 1)
            if c.op.startswith(('v_readfirstlane', 'v_readlane')) and pv & c.rd: n = max(n, 1)
            if (c.op.startswith('v_permlane') or 'dpp' in c.op) and pv & c.rd: n = max(n, 2)
            if ps & c.rd: n = max(n, 4 if c.op.startswith(('v_readlane', 'v_writelane')) else 2)
            if 'sdwa' in p.text or 'src0_sel' in p.text:
                if pv & c.rd: n = max(n, 1)
        if isdot and (pv & (c.rd | c.wr)):
            same = (c.op == p.op) and not (pv & (c.rd - c.wr))
            if not same: n = max(n, 3)
        if c.kind in ('vmem', 'dma') and ps & c.rd: n = max(n, 5)
        if c.kind == 'salu' and ps & c.rd: n = max(n, 1)
        if c.op.startswith('s_cbranch_vcc') and ps & regs_of('vcc'): n = max(n, 5)
    if p.kind == 'mfma':
        big = 12 if p.passes == 8 else 8
        if c.kind == 'mfma':
            if p.wr & c.ab: n = max(n, big)
            if p.wr & c.srcc and not (p.wr == c.srcc and p.passes == c.passes): n = max(n, 10 if p.passes == 8 else 6)
            if p.wr & c.wr and not (p.wr == c.srcc): n = max(n, big)
        elif c.kind in ('valu', 'ds', 'vmem', 'dma'):
            if p.wr & (c.rd | c.wr): n = max(n, big)
            if p.srcc & c.wr: n = max(n, 7 if p.passes == 8 else 3)
    if p.kind == 'vmem' and p.data and (p.data & c.wr): n = max(n, 2)
    if p.kind == 'salu' and ('s', 124) in p.wr and (c.kind == 'dma' or 'addtid' in c.op): n = max(n, 1)
    return n

class Asm:
    def __init__(self):
        self.L = []; self.nlab = 0
        self.vmq = []; self.lgq = []; self.seen = {'par', 'fst', 'none'}
    def __call__(self, text):
        for line in text.split('\n'):
            if line.strip(): self.L.append(line.strip())
    def label(self, base='L'):
        self.nlab += 1; return f'{base}_{self.nlab}'
    def vm(self, text, tag=None):
        self(text); self.vmq.append(tag); self.seen.add(tag)
    def lg(self, text, tag=None):
        self(text); self.lgq.append(tag); self.seen.add(tag)
    def _wait(self, q, tags, name, mx):
        if not isinstance(tags, list): tags = [tags]
        assert any(t in self.seen for t in tags), tags
        idx = [i for i, t in enumerate(q) if t in tags]
        if not idx: return None
        n = len(q) - 1 - idx[-1]
        del q[:idx[-1] + 1]
        return min(n, mx)
    def wvm(self, tags):
        n = self._wait(self.vmq, tags, 'vmcnt', 63)
        if n is not None: self(f's_waitcnt vmcnt({n})')
    def wlg(self, tags):
        n = self._wait(self.lgq, tags, 'lgkmcnt', 15)
        if n is not None: self(f's_waitcnt lgkmcnt({n})')
    def vm0(self):
        self('s_waitcnt vmcnt(0)'); self.vmq = []
    def lg0(self):
        self('s_waitcnt lgkmcnt(0)'); self.lgq = []
    def reset(self):
        self.vmq = []; self.lgq = []
    def finalize(self):
        out = []; hist = []
        npad = 0
        for t in self.L:
            c = Ins(t)
            if c.kind == 'label':
                out.append(t); continue
            req = 0; dist = 0
            for p in reversed(hist):
                k = need(p, c) - dist
                if k > req: req = k
                dist += p.states
                if dist >= 12: break
            while req > 0:
                k = min(req, 16)
                nop = Ins(f's_nop {k-1}'); out.append(f's_nop {k-1}'); hist.append(nop); req -= k; npad += 1
            out.append(t); hist.append(c)
            if len(hist) > 40: hist = hist[-20:]
        return out, npad
```

```python
import sys, math, struct, json
from asmlib import *
NAME = 'recurrent_scan__ssm_conv_s4__mixer_s_mlp__prompt'
def f2u(x): return struct.unpack('<I', struct.pack('<f', x))[0]
def hx(x): return hex(f2u(x))

class Cfg:
    stamps = False
    laa = 9
    la3 = 2
    la4 = 4
    poll_step = 4
    conv_steps = (6, 7, 8, 9)
    psleep = 0
    csleep = 8
    cpoll = 'vec'
    touch_nt = ''
    out_fl = ''
    clean = True
    rot4 = 2
    force_slow = False
    hx = 'sc1'
    pump1 = (0, 4)
    gbound = 200000
    lbound = 1000000
cfg = Cfg()

S0, W0, X0 = 0, 32768, 98304
S_KF, S_XT, S_STP, S_CS1, S_ST, S_ST3, S_CNT = 0, 17408, 25600, 27648, 28672, 29248, 30784
CN = {n: S_CNT + 4 * i for i, n in enumerate(
    ['S', 'D1', 'W', 'D2', 'R2', 'Q2', 'X0', 'XB', 'XA', 'B', 'STAT', 'FF', 'FU', 'FS', 'D4a', 'D4b', 'MODE', 'CF', 'CU', 'CS', 'CS4', 'W3I', 'FI', 'FR'])}
U0, USZ, KCOPY = W0, 4608, 4160
CX0 = W0 + 16384
WS_FLAG = 0x10000
WS_CFLAG = 0x8000
WS_XS = 0x40000
WS_H, WS_X1, WS_H2, WS_UT, WS_ST, WS_W3, WS_W4, WS_STAMP = 0x100000, 0x300000, 0x500000, 0xA80000, 0xCC0000, 0xF00000, 0x1080000, 0x1400000
UPS, SRS = 8320, 4224
H2C, FMT = 2 * 88 * 1024, 196608
sW, sJ, sC, sIDX, sDEL = 3, 4, 5, 6, 7
SX, SW1, SW2, SW3, SWS, SOUT = 8, 12, 16, 20, 28, 32
sMODE, sFL, sCFO = 24, 25, 26
sEP = 68
sT = 70
sK = 80
sRET, sWSP, sST = 88, 90, 94
EPS = 1e-5
LOG2E = math.log2(math.e)
GA = 2 * math.sqrt(2 / math.pi) * LOG2E
GB = GA * 0.044715
ALPHA = GB ** (1 / 3)
GK = GA / ALPHA
WS = f's[{SWS}:{SWS+3}]'

a = Asm()
vL, vS, vOne, vT = 0, 1, 2, 3

class Stamps:
    def __init__(self): self.names = {'A': [], 'B': []}
    def put(self, role, name):
        if not cfg.stamps: return
        i = len(self.names[role]); self.names[role].append(name)
        if i > 0: a(f'v_writelane_b32 v{vOne}, s{sST + 2*((i-1) & 1)}, {i + 1}')
        r = sST + 2 * (i & 1)
        a(f's_memtime s[{r}:{r+1}]')
    def flush(self, role):
        if not cfg.stamps: return
        a('s_waitcnt lgkmcnt(0)')
        i = len(self.names[role])
        a(f'v_writelane_b32 v{vOne}, s{sST + 2*((i-1) & 1)}, {i + 1}')
        a(f'v_writelane_b32 v{vOne}, s98, 1')
        a(f'v_writelane_b32 v{vOne}, s100, 63')
        a('v_lshlrev_b32 v5, 2, v0')
        a(f's_lshl_b32 s{sT}, s2, 11'); a(f's_lshl_b32 s{sT+1}, s{sW}, 8'); a(f's_add_u32 s{sT}, s{sT}, s{sT+1}')
        a(f's_add_u32 s{sT}, s{sT}, {WS_STAMP + (1024 if role == "B" else 0)}')
        a(f'buffer_store_dword v{vOne}, v5, {WS}, s{sT} offen sc1')
st = Stamps()

def S(dst, terms, const=0):
    first = True
    for r, m in terms:
        t = dst if first else sT + 9
        if m == 1: src = f's{r}'
        else:
            if m & (m - 1) == 0: a(f's_lshl_b32 s{t}, s{r}, {m.bit_length()-1}')
            else: a(f's_mul_i32 s{t}, s{r}, {m}')
            src = f's{t}'
        if first:
            if m == 1:
                if const: a(f's_add_u32 s{dst}, {src}, {const & 0xffffffff}'); const = 0
                elif r != dst: a(f's_mov_b32 s{dst}, {src}')
            first = False
        else: a(f's_add_u32 s{dst}, s{dst}, {src}')
    if const: a(f's_add_u32 s{dst}, s{dst}, {const & 0xffffffff}')

def srd(d, b, n):
    a(f's_mov_b32 s{d}, s{b}'); a(f's_mov_b32 s{d+1}, s{b+1}'); a(f's_mov_b32 s{d+2}, {n}'); a(f's_mov_b32 s{d+3}, 0x20000')

def signal(cn):
    a('s_mov_b64 exec, 1'); a.lg(f'ds_add_u32 v{vS}, v{vOne} offset:{CN[cn]}'); a('s_mov_b64 exec, -1')

def spin(cn, target, sleep=0):
    L = a.label('SP'); E = a.label('SPE')
    a(f's_mov_b32 s{sT+9}, {cfg.lbound}')
    a(f'{L}:')
    a(f'ds_read_b32 v{vT}, v{vS} offset:{CN[cn]}')
    a('s_waitcnt lgkmcnt(0)')
    a(f'v_readfirstlane_b32 s{sT+8}, v{vT}')
    a(f's_cmp_ge_u32 s{sT+8}, {target}')
    a(f's_cbranch_scc1 {E}')
    if sleep: a(f's_sleep {sleep}')
    a(f's_sub_u32 s{sT+9}, s{sT+9}, 1')
    a(f's_cbranch_scc0 {L}')
    a(f'{E}:')
    a.lgq = []

def publish_col(cn, off, tag=None):
    E = a.label('PB')
    if tag is None: a.vm0()
    else: a.wvm(tag)
    a('s_mov_b64 exec, 1')
    a(f'ds_add_rtn_u32 v{vT}, v{vS}, v{vOne} offset:{CN[cn]}')
    a.lg0()
    a(f'v_readfirstlane_b32 s{sT+8}, v{vT}')
    a(f's_cmp_eq_u32 s{sT+8}, 3')
    a(f's_cbranch_scc0 {E}')
    a(f'v_mov_b32 v{vT}, s{sEP}')
    a(f'buffer_store_dword v{vT}, off, {WS}, s{sCFO} offset:{off} sc1')
    a(f'{E}:')
    a('s_mov_b64 exec, -1')

def flag(sown, off, tag, release):
    LS, LE = a.label('FS'), a.label('FE')
    a.wvm(tag)
    a(f'v_mov_b32 v{vT}, s{sEP}')
    a('s_mov_b64 exec, 1')
    a(f's_cmp_lg_u32 s{sMODE}, 1'); a(f's_cbranch_scc1 {LS}')
    a(f'buffer_store_dword v{vT}, off, {WS}, s{sown} offset:{off}')
    a(f's_branch {LE}')
    a(f'{LS}:')
    if release: a('buffer_wbl2 sc1'); a('s_waitcnt vmcnt(0)')
    a(f'buffer_store_dword v{vT}, off, {WS}, s{sown} offset:{off} sc1')
    a(f'{LE}:')
    a('s_mov_b64 exec, -1')
    a.vmq.append('flag')

def pollc(sbase, off, nl, vl4, v, sleep=None):
    L = a.label('PL'); E = a.label('PLE'); LF = a.label('PLF')
    sleep = cfg.psleep if sleep is None else sleep
    a(f's_mov_b32 s{sT+9}, {cfg.gbound}')
    a(f's_mov_b64 exec, {hex((1 << nl) - 1)}')
    a(f'{L}:')
    a(f'buffer_load_dword v{v}, v{vl4}, {WS}, s{sbase} offen offset:{off} sc1')
    a('s_waitcnt vmcnt(0)')
    a(f'v_cmp_ne_u32 vcc, s{sEP}, v{v}')
    a(f's_cbranch_vccz {E}')
    if sleep: a(f's_sleep {sleep}')
    a(f's_sub_u32 s{sT+9}, s{sT+9}, 1')
    a(f's_cbranch_scc0 {L}')
    a(f'{E}:')
    a('s_mov_b64 exec, -1')
    a(f's_cmp_eq_u32 s{sMODE}, 1'); a(f's_cbranch_scc1 {LF}')
    a('buffer_inv sc1'); a('s_waitcnt vmcnt(0)')
    a(f'{LF}:')
    a.vmq = []

def poll32(off, cn, v, va):
    L = a.label('PC'); E = a.label('PCE'); LS = a.label('PCS')
    a(f's_cmp_lg_u32 s{sW}, 0'); a(f's_cbranch_scc1 {LS}')
    S(sT + 8, [(sJ, 2048)], WS_CFLAG + off)
    a(f's_mov_b32 s{sT+9}, {cfg.gbound}')
    if cfg.cpoll == 'vec':
        a(f'v_lshrrev_b32 v{va}, 3, v{vL}'); a(f'v_lshlrev_b32 v{va}, 7, v{va}')
        a(f'v_and_b32 v{v}, 7, v{vL}'); a(f'v_lshl_add_u32 v{va}, v{v}, 2, v{va}')
        a('s_mov_b32 exec_hi, 0')
        a(f'{L}:')
        a(f'buffer_load_dword v{v}, v{va}, {WS}, s{sT+8} offen sc1')
        a('s_waitcnt vmcnt(0)')
        a(f'v_cmp_ne_u32 vcc, s{sEP}, v{v}')
        a(f's_cbranch_vccz {E}')
    else:
        a(f's_add_u32 s92, s{sWSP}, s{sT+8}'); a(f's_addc_u32 s93, s{sWSP+1}, 0')
        a(f'{L}:')
        for k in range(4): a(f's_load_dwordx8 s[{36+8*k}:{43+8*k}], s[92:93], {128*k} glc')
        a('s_waitcnt lgkmcnt(0)')
        for k in range(16): a(f's_xor_b64 s[{36+2*k}:{37+2*k}], s[{36+2*k}:{37+2*k}], s[{sEP}:{sEP+1}]')
        for k in range(1, 16): a(f's_or_b64 s[36:37], s[36:37], s[{36+2*k}:{37+2*k}]')
        a(f's_cbranch_scc0 {E}')
    a(f's_sleep {cfg.csleep}')
    a(f's_sub_u32 s{sT+9}, s{sT+9}, 1')
    a(f's_cbranch_scc0 {L}')
    a(f'{E}:')
    signal(cn)
    a(f'{LS}:')
    spin(cn, 1, sleep=1)

def gelu_ops(p, t, dst, pk):
    o = []
    if pk:
        o.append(f'v_pk_fma_f32 v[{t}:{t+1}], v[{p}:{p+1}], v[{p}:{p+1}], s[{sK}:{sK+1}]')
        o.append(f'v_pk_mul_f32 v[{t}:{t+1}], v[{t}:{t+1}], v[{p}:{p+1}]')
    else:
        for i in range(2): o.append(f'v_fma_f32 v{t+i}, v{p+i}, v{p+i}, s{sK}')
        for i in range(2): o.append(f'v_mul_f32 v{t+i}, v{t+i}, v{p+i}')
    for i in range(2): o.append(f'v_exp_f32 v{t+i}, -v{t+i}')
    if pk: o.append(f'v_pk_fma_f32 v[{t}:{t+1}], v[{t}:{t+1}], s[{sK+2}:{sK+3}], s[{sK+2}:{sK+3}]')
    else:
        for i in range(2): o.append(f'v_fma_f32 v{t+i}, v{t+i}, s{sK+2}, s{sK+2}')
    for i in range(2): o.append(f'v_rcp_f32 v{t+i}, v{t+i}')
    if pk: o.append(f'v_pk_mul_f32 v[{t}:{t+1}], v[{t}:{t+1}], v[{p}:{p+1}]')
    else:
        for i in range(2): o.append(f'v_mul_f32 v{t+i}, v{t+i}, v{p+i}')
    o.append(f'v_cvt_pk_bf16_f32 v{dst}, v{t}, v{t+1}')
    return o

def interleave(lists):
    out = []; n = max(len(l) for l in lists)
    for i in range(n):
        for l in lists:
            if i < len(l): out.append(l[i])
    return out

def padd(d, x, y, n, pk=True):
    if pk:
        for i in range(0, n, 2): a(f'v_pk_add_f32 v[{d+i}:{d+i+1}], v[{x+i}:{x+i+1}], v[{y+i}:{y+i+1}]')
    else:
        for i in range(n): a(f'v_add_f32 v{d+i}, v{x+i}, v{y+i}')

def unpack(dst, src, n):
    for d in range(n):
        a(f'v_lshlrev_b32 v{dst+2*d}, 16, v{src+d}'); a(f'v_and_b32 v{dst+2*d+1}, 0xffff0000, v{src+d}')

def finstat(m):
    a(f'v_mul_f32 v{m}, {hx(1/512)}, v{m}'); a(f'v_mul_f32 v{m+1}, {hx(1/512)}, v{m+1}')
    a(f'v_fma_f32 v{m+1}, -v{m}, v{m}, v{m+1}'); a(f'v_max_f32 v{m+1}, 0, v{m+1}'); a(f'v_add_f32 v{m+1}, {hx(EPS)}, v{m+1}')
    a(f'v_rsq_f32 v{m+1}, v{m+1}')

def M32(d, x, y, c): a(f'v_mfma_f32_32x32x16_bf16 {vr(d, 16)}, {vr(x, 4)}, {vr(y, 4)}, {"0" if c is None else vr(c, 16)}')
def M16(d, x, y, c): a(f'v_mfma_f32_16x16x32_bf16 {vr(d, 4)}, {vr(x, 4)}, {vr(y, 4)}, {"0" if c is None else vr(c, 4)}')

def HXF(): return 'sc1' if cfg.hx == 'sc1' else ''

def consts():
    a(f's_mov_b32 s{sK}, {hx(GK)}'); a(f's_mov_b32 s{sK+1}, {hx(GK)}')
    a(f's_mov_b32 s{sK+2}, {hx(ALPHA)}'); a(f's_mov_b32 s{sK+3}, {hx(ALPHA)}')
    a(f's_mov_b32 s{sK+4}, 0x3f803f80')
    S(sFL, [(sC, 1024)], WS_FLAG)
    a(f's_lshr_b32 s{sT}, s{sC}, 3'); a(f's_and_b32 s{sT+1}, s{sC}, 7')
    S(sCFO, [(sJ, 2048), (sT, 128), (sT + 1, 4)], WS_CFLAG)

sD = sT + 4
def prologue():
    if cfg.stamps:
        a('s_memtime s[98:99]'); a('s_memrealtime s[100:101]')
    a('s_load_dwordx16 s[36:51], s[0:1], 0')
    a('s_load_dwordx8 s[56:63], s[0:1], 80')
    a(f's_load_dwordx2 s[{sWSP}:{sWSP+1}], s[0:1], 128')
    a('s_load_dwordx2 s[52:53], s[0:1], 64')
    a('s_load_dwordx2 s[64:65], s[0:1], 112')
    a('s_cmp_ge_u32 s2, 256'); a('s_cbranch_scc1 L_exit')
    a('v_lshrrev_b32 v3, 6, v0')
    a('v_and_b32 v0, 63, v0')
    a(f'v_readfirstlane_b32 s{sW}, v3')
    a(f's_lshr_b32 s{sJ}, s2, 3'); a(f's_and_b32 s{sJ}, s{sJ}, 7')
    a('v_lshlrev_b32 v5, 7, v0')
    a(f's_cmp_lg_u32 s{sW}, 0'); a('s_cbranch_scc1 L_nocode')
    a(f's_getpc_b64 s[{sT+2}:{sT+3}]')
    a('L_pc:')
    a(f's_and_b32 s{sT}, s{sJ}, 3'); a(f's_lshl_b32 s{sT}, s{sT}, 13'); a(f'v_add_u32 v6, s{sT}, v5')
    a(f'v_min_u32 v6, L_codeend-L_pc-4, v6')
    a(f'global_load_dword v47, v6, s[{sT+2}:{sT+3}]')
    a('L_nocode:')
    a(f's_and_b32 s{sC}, s2, 7'); a(f's_lshl_b32 s{sC}, s{sC}, 2'); a(f's_lshr_b32 s{sT}, s2, 6'); a(f's_add_u32 s{sC}, s{sC}, s{sT}')
    a(f's_lshl_b32 s{sIDX}, s{sC}, 3')
    a(f's_lshr_b32 s{sT}, s{sJ}, 2'); a(f's_add_u32 s{sDEL}, s{sT}, 1')
    a(f's_sub_u32 s{sT}, 0, s{sDEL}')
    a(f's_bitcmp1_b32 s{sJ}, 1'); a(f's_cselect_b32 s{sDEL}, s{sDEL}, s{sT}')
    a(f'v_mov_b32 v{vS}, {S0}'); a(f'v_mov_b32 v{vOne}, 1')
    a(f's_cmp_lt_u32 s{sW}, 4'); a('s_cbranch_scc1 L_A')
    a('s_setprio 3')
    a(f's_sub_u32 s{sW}, s{sW}, 4')
    a(f's_lshr_b32 s{sT}, s{sW}, 1'); S(sD, [(sJ, 64), (sC, 2), (sT, 1)])
    a(f's_and_b32 s{sT+1}, s{sW}, 1'); S(sT, [(sD, 256), (sT + 1, 128)])
    a(f'v_lshl_add_u32 v8, v0, 1, s{sT}')
    a(f's_lshl_b32 s{sT}, s{sD}, 1'); a(f'v_mov_b32 v9, s{sT}')
    S(sT, [(sIDX, 4), (sJ, 4), (sW, 1)])
    a(f's_lshl_b32 s{sT+1}, s{sT}, 11'); a(f'v_add_u32 v6, s{sT+1}, v5')
    a(f's_lshl_b32 s{sT+1}, s{sT}, 9'); a(f'v_add_u32 v7, s{sT+1}, v5')
    a(f'v_lshlrev_b32 v10, 2, v0'); a('v_mov_b32 v11, 0')
    a(f'ds_write_b32 v10, v11 offset:{S_CNT}')
    a('s_waitcnt lgkmcnt(0)')
    nt = cfg.touch_nt
    a('s_mov_b64 exec, 0xffff')
    a(f'global_load_dword v44, v6, s[36:37] {nt}')
    a('s_mov_b64 exec, 0xf')
    a('global_load_dword v45, v7, s[56:57]')
    a('s_mov_b64 exec, -1')
    for i in range(6): a(f'global_load_ushort v{20+i}, v8, s[{38+2*i}:{39+2*i}] {nt}')
    a('global_load_ushort v26, v9, s[50:51]')
    a('global_load_ushort v27, v9, s[52:53]')
    a('s_setprio 1')
    a('s_branch L_B')
    a('L_exit:')
    a('s_endpgm')
    a('L_A:')

def role_A():
    vW, vTA0, vTA1, vTB0, vTB1, vL16, vL4 = 4, 5, 6, 7, 8, 9, 10
    vDW, vDR, vH = 11, 12, 15
    XF, WF, ACC, CSA = 128, 192, 64, 16
    acc = lambda th, nt: ACC + 32 * th + 16 * nt
    s16W, sOWN, sPB, sTH, sFO, sFP = sT + 5, sT + 2, sT + 4, sT + 6, sT + 3, sT + 7
    sOA, sOB, sFS, sFD = 54, 55, 52, 53
    sEND, sROT, sB2 = 27, sK + 5, sK + 6
    a('v_lshrrev_b32 v16, 4, v0'); a('v_and_b32 v17, 15, v0')
    a('v_xor_b32 v17, v17, v16'); a('v_lshlrev_b32 v17, 4, v17')
    S(sT, [(sC, 65536), (sDEL, 1024), (sW, 256)])
    a(f'v_lshl_add_u32 v18, v16, 10, s{sT}')
    for m in range(4):
        if m == 0: a('v_add_u32 v20, v18, v17')
        else:
            a(f'v_xor_b32 v19, {64*m}, v17'); a(f'v_add_u32 v19, {4096*m}, v19'); a(f'v_add_u32 v{20+m}, v18, v19')
    a('v_add_u32 v24, 0x4000, v20')
    a(f's_mov_b32 s{sT+2}, 0x4000'); a(f's_mov_b32 s{sT+3}, 0x8000'); a(f's_mov_b32 s{sT+4}, 0xc000')
    a(f's_lshl_b32 s{s16W}, s{sW}, 14')
    a(f's_add_u32 m0, s{s16W}, {X0 - 1024}')
    a(f'v_lshlrev_b32 v{vL16}, 4, v0')
    a('s_waitcnt lgkmcnt(0)')
    srd(SX, 36, 2097152)
    def dmaX(i):
        m, blk = i & 3, i >> 2
        v = 24 if (m == 0 and blk > 0) else 20 + m
        b = blk - 1 if (m == 0 and blk > 0) else blk
        so = '0' if b == 0 else f's{sT+1+b}'
        a('s_addk_i32 m0, 1024')
        a.vm(f'buffer_load_dwordx4 v{v}, s[{SX}:{SX+3}], {so} offen lds', ('x', i))
    for i in range(cfg.laa): dmaX(i)
    a(f's_load_dword s{sEP}, s[{sWSP}:{sWSP+1}], 0')
    st.put('A', 'x_issued')
    srd(SW1, 56, 524288); srd(SW2, 58, 524288); srd(SWS, sWSP, 268435456)
    a(f's_cmp_ge_u32 s{sW}, 2'); a(f's_cselect_b32 s{SW3}, s62, s60'); a(f's_cselect_b32 s{SW3+1}, s63, s61')
    a(f's_mov_b32 s{SW3+2}, 1409024'); a(f's_mov_b32 s{SW3+3}, 0x20000')
    consts()
    a(f'v_lshlrev_b32 v{vL4}, 2, v0')
    a('v_and_b32 v17, 1, v16'); a('v_lshlrev_b32 v17, 2, v17'); a('v_and_b32 v18, 7, v0'); a('v_xor_b32 v17, v17, v18')
    a('v_lshrrev_b32 v18, 3, v0'); a('v_lshlrev_b32 v18, 10, v18'); a(f'v_lshl_add_u32 v{vW}, v17, 4, v18')
    a('v_bfe_u32 v25, v0, 2, 2')
    a('v_and_b32 v26, 3, v0'); a('v_lshlrev_b32 v26, 3, v26')
    a('v_and_b32 v19, 1, v16'); a('v_lshl_add_u32 v27, v19, 5, v26')
    a('v_lshrrev_b32 v19, 1, v25'); a('v_lshl_add_u32 v18, v19, 6, v27')
    a('v_lshl_add_u32 v18, v25, 7, v18')
    a(f's_lshl_b32 s{sT}, s{sW}, 5')
    a(f'v_xor_b32 v18, s{sT}, v18'); a(f'v_add_u32 v18, s{s16W}, v18')
    a(f'v_lshrrev_b32 v{vH}, 5, v0')
    a(f'v_lshl_add_u32 v{vTA0}, v{vH}, 10, v18'); a(f'v_add_u32 v{vTA0}, {W0}, v{vTA0}'); a(f'v_xor_b32 v{vTA1}, 64, v{vTA0}')
    a(f'v_lshl_add_u32 v18, v{vH}, 9, v18')
    a(f'v_add_u32 v{vTB0}, {X0}, v18'); a(f'v_xor_b32 v{vTB1}, 64, v{vTB0}')
    a(f'v_add_u32 v{vDW}, s{s16W}, v{vL16}')
    for s_ in range(1, 4):
        a(f'v_xor_b32 v{vDR+s_-1}, {s_ << 14}, v{vDW}'); a(f'v_add_u32 v{vDR+s_-1}, {W0}, v{vDR+s_-1}')
    a(f'v_add_u32 v{vDW}, {W0}, v{vDW}')
    a('v_and_b32 v17, 31, v0'); a('v_and_b32 v18, 15, v0'); a(f'v_xor_b32 v18, v18, v{vH}'); a('v_lshlrev_b32 v18, 4, v18')
    a('v_lshl_add_u32 v18, v17, 8, v18'); a(f'v_add_u32 v18, s{s16W}, v18'); a(f'v_add_u32 v32, {X0}, v18')
    for ks in range(1, 8): a(f'v_xor_b32 v{32+ks}, {ks << 5}, v32')
    for i in range(48, 52): a(f'v_mov_b32 v{i}, 0')
    for i in range(60, 64): a(f'v_mov_b32 v{i}, s{sK+4}')
    S(sOA, [(sW, 131072), (sJ, 128)]); a(f's_mov_b32 s{sOB}, s{sOA}')
    LF4, LFE = a.label('FM'), a.label('FM')
    a(f's_cmp_ge_u32 s{sW}, 2'); a(f's_cbranch_scc1 {LF4}')
    for m in range(3):
        a(f'v_add_u32 v18, {64*m}, v0'); a('v_mul_u32_u24 v19, 10923, v18'); a('v_lshrrev_b32 v19, 16, v19')
        a('v_mul_u32_u24 v17, 6, v19'); a('v_sub_u32 v18, v18, v17'); a('v_mul_u32_u24 v19, 2752, v19'); a(f'v_lshl_add_u32 v{28+m}, v18, 4, v19')
    a(f's_lshr_b32 s{sT}, s{sC}, 1'); a(f's_and_b32 s{sT+1}, s{sC}, 1')
    S(sFS, [(sT, 32*2752), (sJ, 352), (sT + 1, 192), (sW, 96)])
    a(f's_cmp_ge_u32 s{sJ}, 6'); a(f's_cselect_b32 s{sT}, 32, 0'); a(f's_sub_u32 s{sFS}, s{sFS}, s{sT}')
    a(f's_branch {LFE}')
    a(f'{LF4}:')
    a('v_lshrrev_b32 v18, 2, v0'); a('v_lshlrev_b32 v18, 10, v18'); a('v_lshl_add_u32 v28, v26, 1, v18')
    a('v_add_u32 v29, 0x4000, v28'); a('v_add_u32 v30, 0x8000, v28')
    S(sFS, [(sC, 48*1024), (sJ, 128), (sW, 64)], -128)
    a(f'{LFE}:')
    a('s_barrier')
    for i in range(cfg.laa, 16):
        a.wvm(('x', i - cfg.laa)); dmaX(i)
    Q = []
    def mkF(m):
        def f():
            a(f's_add_u32 m0, s{s16W}, {X0 + 1024*m}')
            a.vm(f'buffer_load_dwordx4 v{28+m}, s[{SW3}:{SW3+3}], s{sFS} offen lds', 'fmt')
        return f
    def mkW(srdn, so, base, tag, i):
        def f():
            a(f's_add_u32 m0, s{s16W}, {base + 1024*i}')
            if i: a(f's_addk_i32 s{so}, 8192')
            a.vm(f'buffer_load_dwordx4 v{vW}, s[{srdn}:{srdn+3}], s{so} offen lds', (tag, i))
        return f
    QA = [mkW(SW1, sOA, W0, 'w1', i) for i in range(16)]
    Q = QA[:1] + [mkF(m) for m in range(3)] + QA[1:] + [mkW(SW2, sOB, X0, 'w2', i) for i in range(16)]
    def pump(n=1):
        for _ in range(n):
            if Q: Q.pop(0)()
    a('s_waitcnt lgkmcnt(0)')
    a(f's_add_u32 s{sEP}, s{sEP}, 1'); a(f's_mov_b32 s{sEP+1}, s{sEP}')
    for th in range(2):
        a.wvm(('x', 8 * th + 7))
        st.put('A', f'x{th}')
        for ks in range(8):
            a.lg(f'ds_read_b128 {vr(XF + 32*th + 4*ks, 4)}, v{32+ks} offset:{8192*th}', ('xf', th, ks))
        for ks in range(8):
            if th == 0 and ks > 0: a.wvm(('x', 7 + ks))
            if th == 0 and ks == 1: a.lg0()
            if th == 0 or ks in cfg.pump1: pump()
            a.wlg(('xf', th, ks))
            for d in range(4):
                r = XF + 32*th + 4*ks + d
                a(f'v_dot2c_f32_bf16 v{48+2*th}, s{sK+4}, v{r}')
                a(f'v_dot2c_f32_bf16 v{49+2*th}, v{r}, v{r}')
    a(f's_lshl_b32 s{sT}, s{sW}, 9'); a(f'v_add_u32 v16, s{sT}, v{vL4}')
    for th in range(2):
        a(f'v_permlane32_swap_b32 v{48+2*th}, v{49+2*th}')
        a(f'v_add_f32 v{48+2*th}, v{48+2*th}, v{49+2*th}')
        a.lg(f'ds_write_b32 v16, v{48+2*th} offset:{S0 + S_STP + 256*th}')
    signal('S')
    st.put('A', 'S')
    a.wvm('fmt'); signal('FI')
    st.put('A', 'fmt_in')
    pump(3)
    a('v_and_b32 v16, 31, v0'); a(f'v_lshlrev_b32 v17, 2, v16'); a(f'v_add_u32 v17, {S0 + S_STP}, v17'); a('v_add_u32 v20, 1024, v17')
    spin('S', 4)
    for th in range(2):
        for w2 in range(4):
            o = 128 * (w2 & 1) + 64 * th
            a.lg(f'ds_read2_b32 v[{28+8*th+2*w2}:{29+8*th+2*w2}], v{17 if w2 < 2 else 20} offset0:{o} offset1:{o+32}', 'sp')
    mark = len(a.L)
    for th in range(2):
        q = 28 + 8 * th; m = 52 + 2 * th
        padd(q, q, q + 4, 4, False); padd(m, q, q + 2, 2, False)
        finstat(m)
        a(f'v_mul_f32 v18, v{m+1}, v{m+1}'); a(f'v_mov_b32 v19, {hx(1 + EPS)}'); a(f'v_fmac_f32 v19, {hx(-EPS)}, v18')
        a('v_rsq_f32 v19, v19')
        a(f'v_mul_f32 v{m+1}, s{sK+2}, v{m+1}'); a(f'v_mul_f32 v{m+1}, v{m+1}, v19')
    side = a.L[mark:]; del a.L[mark:]
    def rd(ks):
        a.wvm(('w1', 2 * ks + 1))
        for nt in range(2):
            for p in range(2):
                a.lg(f'ds_read_b64_tr_b16 {vr(WF + 8*ks + 4*nt + 2*p, 2)}, v{vTA0 + nt} offset:{2048*ks + 512*p}', ('wf', ks))
    rd(0)
    for ks in range(8):
        if ks + 1 < 8: rd(ks + 1)
        a.wlg(('wf', ks))
        for th in range(2):
            for nt in range(2):
                M32(acc(th, nt), WF + 8*ks + 4*nt, XF + 32*th + 4*ks, None if ks == 0 else acc(th, nt))
                for _ in range(3):
                    if side: a(side.pop(0))
            if len(Q) == 16: spin('FR', 4)
            pump()
    assert not side
    st.put('A', 'g1_mfma')
    def dumpw(th):
        return [f'ds_write_b128 v{vDW}, {vr(acc(th, s_ >> 1) + 8*(s_ & 1) + 4*k, 4)} offset:{6144*th + 2048*(s_-1) + 1024*k}' for s_ in range(1, 4) for k in range(2)]
    dw = dumpw(0) + dumpw(1)
    for ks in range(8):
        for nt in range(2):
            M32(CSA + 16*nt, 60, WF + 8*ks + 4*nt, None if ks == 0 else CSA + 16*nt)
            if dw and (ks > 0): a.lg(dw.pop(0))
        pump()
    while dw: a.lg(dw.pop(0))
    assert not Q
    a('s_mov_b32 exec_lo, 0'); a(f'v_mov_b32 v{CSA}, v{CSA+16}'); a('s_mov_b32 exec_lo, -1')
    a(f's_lshl_b32 s{sT}, s{sW}, 8'); a(f'v_add_u32 v48, s{sT}, v{vL4}')
    a.lg(f'ds_write_b32 v48, v{CSA} offset:{S0 + S_CS1}')
    signal('D1')
    st.put('A', 'dumped')
    a(f'v_lshl_add_u32 v22, v{vH}, 4, s{sT}')
    for s_ in range(1, 4): a(f'v_xor_b32 v{22+s_}, {256*s_}, v22')
    S(sOWN, [(sIDX, 8192), (sJ, 8192)])
    P, CSR = XF, XF + 48
    S(sT, [(sW, 1024), (sOWN, 1)], WS_H)
    spin('D1', 4)
    st.put('A', 'g1_sync')
    def rdpart(th):
        for s_ in range(1, 4):
            for k in range(2):
                a.lg(f'ds_read_b128 {vr(P + 24*th + 8*(s_-1) + 4*k, 4)}, v{vDR+s_-1} offset:{6144*th + 2048*(s_-1) + 1024*k}', ('pt', th))
    a('s_setprio 2')
    rdpart(0)
    for s_ in range(4):
        for k in range(2): a.lg(f'ds_read_b128 {vr(CSR + 8*s_ + 4*k, 4)}, v{22+s_} offset:{S0 + S_CS1 + 64*s_ + 32*k}', 'cs')
    a.wlg(('pt', 0))
    rdpart(1)
    signal('W')
    for th in range(2):
        a.wlg(('pt', th))
        o = acc(th, 0); p = P + 24 * th
        padd(o, o, p, 8); padd(p + 8, p + 8, p + 16, 8); padd(o, o, p + 8, 8)
        if th == 0:
            a.wlg('cs')
            padd(CSR, CSR, CSR + 8, 8); padd(CSR + 16, CSR + 16, CSR + 24, 8); padd(CSR, CSR, CSR + 16, 8)
        m = 52 + 2 * th
        chains = []
        for i in range(0, 8, 2):
            ch = [f'v_pk_fma_f32 v[{o+i}:{o+i+1}], v[{CSR+i}:{CSR+i+1}], v[{m}:{m+1}], v[{o+i}:{o+i+1}] op_sel_hi:[1,0,1] neg_lo:[0,1,0] neg_hi:[0,1,0]',
                  f'v_pk_mul_f32 v[{o+i}:{o+i+1}], v[{o+i}:{o+i+1}], v[{m}:{m+1}] op_sel:[0,1] op_sel_hi:[1,1]']
            ch += gelu_ops(o + i, p + i, 56 + 4 * th + i // 2, True)
            chains.append(ch)
        for x in interleave(chains): a(x)
        if th == 1: a(f's_addk_i32 s{sT}, 4096')
        a.vm(f'buffer_store_dwordx4 {vr(56 + 4*th, 4)}, v{vL16}, {WS}, s{sT} offen {HXF()}', 'hst')
    a('s_setprio 0')
    st.put('A', 'h_stored')
    S(sFO, [(sJ, 16), (sW, 4), (sFL, 1)]); S(sFP, [(sW, 32), (sFL, 1)])
    S(sPB, [(sW, 2), (sIDX, 1)]); a(f's_and_b32 s{sTH}, s{sJ}, 1')
    spin('MODE', 1); a(f's_mov_b32 s{sMODE}, s{sT+8}')
    flag(sFO, 0, 'hst', cfg.hx == 'plain')
    st.put('A', 'h_flag')
    for ks in range(8):
        for nt in range(2):
            for p in range(2):
                a.lg(f'ds_read_b64_tr_b16 {vr(WF + 8*ks + 4*nt + 2*p, 2)}, v{vTB0 + nt} offset:{2048*ks + 1024*p}', 'w2f')
    spin('STAT', 4)
    a('v_and_b32 v16, 31, v0')
    a(f's_lshl_b32 s{sT}, s{sTH}, 5'); a(f'v_add_u32 v20, s{sT}, v16'); a('v_xor_b32 v21, 32, v20')
    a(f's_lshl_b32 s{sT}, s{sW}, 11'); a(f'v_lshl_add_u32 v18, v{vH}, 3, s{sT}')
    for th in range(2):
        a(f'v_lshl_add_u32 v22, v{20+th}, 5, v18'); a(f'v_lshlrev_b32 v23, 3, v{20+th}')
        for k in range(2): a.lg(f'ds_read_b64 v[{24+4*th+2*k}:{25+4*th+2*k}], v22 offset:{S0 + S_XT + 16*k}', 'xt')
        a.lg(f'ds_read_b64 v[{50+2*th}:{51+2*th}], v23 offset:{S0 + S_ST + 16}', 'xt')
    for th in range(2):
        for i in range(8, 16): a(f'v_mov_b32 v{acc(th, 0)+i}, 0')
    a(f'v_add_u32 v{vDW}, {X0 - W0}, v{vDW}')
    for s_ in range(3): a(f'v_add_u32 v{vDR+s_}, {X0 - W0}, v{vDR+s_}')
    S(sT, [(sPB, 8192), (sTH, 4096)], WS_H)
    pollc(sFP, 0, 8, vL4, 44)
    st.put('A', 'h_seen')
    a('s_setprio 2')
    for th in range(2):
        if th: a(f's_xor_b32 s{sT}, s{sT}, 4096')
        for p in range(2):
            if p: a(f's_add_u32 s{sT+1}, s{sT}, 8192')
            for r in range(4):
                ks = 4 * p + r
                a.vm(f'buffer_load_dwordx4 {vr(XF + 32*th + 4*ks, 4)}, v{vL16}, {WS}, s{sT+p} offen offset:{1024*r} sc1', ('h', th, ks))
    a.lg0()
    for th in range(2):
        o = acc(th, 0); m = 50 + 2 * th
        unpack(o, 24 + 4*th, 4)
        for i in range(8): a(f'v_sub_f32 v{o+i}, v{o+i}, v{m}')
        for i in range(8): a(f'v_mul_f32 v{o+i}, v{o+i}, v{m+1}')
    a('v_bfe_u32 v16, v0, 4, 1'); a('v_and_b32 v17, 15, v0'); a('v_lshlrev_b32 v17, 4, v17')
    a('v_lshl_add_u32 v17, v16, 11, v17'); a(f'v_lshl_add_u32 v17, v{vH}, 8, v17')
    S(sT, [(sW, 512), (sOWN, 1), (sTH, 4096)], WS_X1)
    dw = []
    for th in range(2):
        if th: dw = dumpw(0)
        for ks in range(8):
            a.wvm(('h', th, ks))
            for nt in range(2):
                M32(acc(th, nt), WF + 8*ks + 4*nt, XF + 32*th + 4*ks, None if (ks == 0 and nt == 1) else acc(th, nt))
            if dw and ks >= 1: a.lg(dw.pop(0))
    st.put('A', 'g2_mfma')
    for x in dumpw(1): a.lg(x)
    signal('D2')
    spin('D2', 4)
    st.put('A', 'g2_sync')
    rdpart(0); rdpart(1)
    for th in range(2):
        a.wlg(('pt', th))
        o = acc(th, 0); p = P + 24 * th
        padd(o, o, p, 8, False); padd(p + 8, p + 8, p + 16, 8, False); padd(o, o, p + 8, 8, False)
        for i in range(4): a(f'v_cvt_pk_bf16_f32 v{56+4*th+i}, v{o+2*i}, v{o+2*i+1}')
        if th == 1: a(f's_xor_b32 s{sT}, s{sT}, 4096')
        a.vm(f'buffer_store_dwordx4 {vr(56 + 4*th, 4)}, v17, {WS}, s{sT} offen {HXF()}', 'x1st')
    st.put('A', 'x1_stored')
    a(f's_lshl_b32 s{sT}, s{sW}, 9'); a(f'v_add_u32 v16, s{sT}, v{vL4}')
    for th in range(2):
        o = acc(th, 0); q = 40 + 2 * th
        a(f'v_add_f32 v{q}, v{o}, v{o+1}'); a(f'v_mul_f32 v{q+1}, v{o}, v{o}')
        for i in range(1, 8):
            if i > 1: a(f'v_add_f32 v{q}, v{q}, v{o+i}')
            a(f'v_fmac_f32 v{q+1}, v{o+i}, v{o+i}')
    for th in range(2):
        q = 40 + 2 * th
        a(f'v_permlane32_swap_b32 v{q}, v{q+1}'); a(f'v_add_f32 v{q}, v{q}, v{q+1}')
        a.lg(f'ds_write_b32 v16, v{q} offset:{S0 + S_STP + 256*th}')
    signal('Q2')
    flag(sFO, 128, 'x1st', cfg.hx == 'plain')
    st.put('A', 'x1_flag')
    spin('Q2', 4)
    LQ = a.label('Q2')
    a(f's_cmp_ge_u32 s{sW}, 2'); a(f's_cbranch_scc1 {LQ}')
    a(f's_lshl_b32 s{sT}, s{sW}, 8'); a(f'v_add_u32 v16, s{sT}, v{vL4}'); a(f'v_add_u32 v16, {S0 + S_STP}, v16')
    a('ds_read2st64_b32 v[40:41], v16 offset0:0 offset1:2'); a('ds_read2st64_b32 v[42:43], v16 offset0:4 offset1:6')
    a(f's_xor_b32 s{sT+1}, s{sW}, s{sTH}'); a(f's_lshr_b32 s{sT}, s{sOWN}, 4'); S(sT, [(sT, 1), (sT + 1, 256)], WS_XS)
    a('s_waitcnt lgkmcnt(0)')
    a('v_add_f32 v40, v40, v41'); a('v_add_f32 v42, v42, v43'); a('v_add_f32 v40, v40, v42')
    a(f'buffer_store_dword v40, v{vL4}, {WS}, s{sT} offen sc1')
    a(f'{LQ}:')
    S(sT, [(sPB, 8192), (sTH, 2048)], WS_X1)
    a(f's_lshl_b32 s{sB2}, s{sW}, 12')
    pollc(sFP, 128, 8, vL4, 44)
    st.put('A', 'x1_seen')
    for k in range(4):
        for p in range(2):
            a(f's_add_u32 m0, s{sB2}, {X0 + 16384*k + 2048*p}')
            if p == 0: a(f's_xor_b32 s{sT+1}, s{sT}, {2048*k}')
            else: a(f's_addk_i32 s{sT+1}, 8192')
            for kk in range(2):
                a.vm(f'buffer_load_dwordx4 v{vL16}, {WS}, s{sT+1} offen offset:{1024*kk} sc1 lds', ('x1', k))
    LQ2 = a.label('Q2')
    a(f's_cmp_ge_u32 s{sW}, 2'); a(f's_cbranch_scc1 {LQ2}')
    S(sT, [(sJ, 8), (sW, 4), (sFL, 1)])
    flag(sT, 256, 'none', False)
    a.vmq.pop()
    a(f'{LQ2}:')
    a.wvm(('x1', 0)); signal('X0')
    a.wvm(('x1', 1)); signal('XB')
    a.wvm(('x1', 3)); signal('XA')
    a('s_setprio 0')
    st.put('A', 'x1_landed')
    a('v_and_b32 v16, 15, v0'); a('v_lshrrev_b32 v17, 4, v0'); a('v_lshlrev_b32 v16, 2, v16'); a('v_lshl_add_u32 v16, v17, 9, v16')
    a(f's_xor_b32 s{sT}, s{sW}, s{sTH}'); a(f's_lshr_b32 s{sT+1}, s{sT}, 1'); a(f's_and_b32 s{sT}, s{sT}, 1')
    S(sT, [(sT, 64), (sT + 1, 256), (sIDX, 512)], WS_XS)
    pollc(sFL, 256, 16, vL4, 44)
    for q in range(4): a.vm(f'buffer_load_dword v{40+q}, v16, {WS}, s{sT} offen offset:{128*(q & 1) + 2048*(q >> 1)} sc1', 'xs')
    if cfg.clean and cfg.hx == 'plain':
        S(sT, [(sW, 2048), (sOWN, 1)], WS_H)
        for k in range(2): a.vm(f'buffer_store_dwordx4 v[56:59], v{vL16}, {WS}, s{sT} offen offset:{1024*k} sc1')
    a.wvm('xs')
    a('v_add_f32 v40, v40, v42'); a('v_add_f32 v41, v41, v43')
    a('v_permlane32_swap_b32 v40, v41'); a('v_add_f32 v40, v40, v41')
    a('v_mov_b32 v41, v40')
    a('v_permlane16_swap_b32 v40, v41'); a('v_add_f32 v40, v40, v41')
    a('v_mov_b32 v41, v40')
    a('v_permlane32_swap_b32 v40, v41')
    finstat(40)
    a(f'v_mul_f32 v41, s{sK+2}, v41')
    a(f's_lshl_b32 s{sT}, s{sW}, 7'); a('v_and_b32 v17, 15, v0'); a(f'v_lshl_add_u32 v17, v17, 3, s{sT}')
    a.lg(f'ds_write_b64 v17, v[40:41] offset:{S0 + S_ST3}')
    signal('XA')
    LN = a.label('NX')
    a(f's_cmp_lg_u32 s{sW}, 0'); a(f's_cbranch_scc1 {LN}')
    signal('XB')
    a(f'{LN}:')
    st.put('A', 'st3')
    W4F, ACC4, RING = 80, 48, 16
    if cfg.rot4 == 1: a(f's_mov_b32 s{sROT}, 0')
    elif cfg.rot4 == 2: a(f's_mul_i32 s{sROT}, s{sTH}, 11')
    else:
        a(f's_and_b32 s{sROT}, s{sJ}, 3'); a(f's_mul_i32 s{sROT}, s{sROT}, 11'); a(f's_add_u32 s{sROT}, s{sROT}, 1'); a(f's_lshr_b32 s{sROT}, s{sROT}, 1')
    S(sT, [(sW, 22*2048), (sJ, FMT)], WS_W4)
    a(f's_cmp_eq_u32 s{sW}, 3'); a(f's_cselect_b32 s{sT+1}, 2048, 0'); a(f's_sub_u32 s{sT}, s{sT}, s{sT+1}')
    a(f's_add_u32 s{sEND}, s{sT}, {22*2048}')
    S(sT + 1, [(sROT, 2048), (sT, 1)])
    spin('W3I', 4, sleep=1)
    st.put('A', 'w4_go')
    for ks in range(22):
        if ks >= cfg.la4: a.wvm(('w4', ks - cfg.la4))
        for nt in range(2):
            a.vm(f'buffer_load_dwordx4 {vr(W4F + 8*ks + 4*nt, 4)}, v{vL16}, {WS}, s{sT+1} offen offset:{1024*nt} sc1', ('w4', ks))
        a(f's_addk_i32 s{sT+1}, 2048'); a(f's_cmp_eq_u32 s{sT+1}, s{sEND}'); a(f's_cselect_b32 s{sT+1}, s{sT}, s{sT+1}')
    st.put('A', 'w4_issued')
    poll32(1024, 'CS', 16, 17)
    st.put('A', 's_seen')
    a('v_lshrrev_b32 v16, 3, v0'); a('v_and_b32 v17, 7, v0'); a(f'v_mul_u32_u24 v16, {SRS}, v16'); a('v_lshl_add_u32 v16, v17, 4, v16')
    S(sT, [(sJ, 64*SRS), (sW, 16*SRS), (sC, 128)], WS_ST)
    a(f's_lshl_b32 s{sT+1}, s{sW}, 11'); a(f's_add_u32 m0, s{sT+1}, {S0 + S_KF}')
    a.vm(f'buffer_load_dwordx4 v16, {WS}, s{sT} offen sc1 lds')
    a('s_addk_i32 m0, 1024'); a(f's_add_u32 s{sT}, s{sT}, {8*SRS}')
    a.vm(f'buffer_load_dwordx4 v16, {WS}, s{sT} offen sc1 lds')
    S(sT, [(sC, H2C), (sW, 22*1024)], WS_H2)
    a(f's_lshl_b32 s{sROT}, s{sROT}, 10')
    a(f's_lshl_b32 s{sT+1}, s{sW}, 13'); a(f's_add_u32 s{sT+1}, s{sT+1}, {W0}'); a(f'v_add_u32 v{vDW}, s{sT+1}, v{vL16}')
    for th in range(2):
        if th: a(f's_add_u32 s{sT}, s{sT}, {88*1024}')
        a(f's_add_u32 s{sEND}, s{sT}, {22*1024}'); a(f's_add_u32 s{sT+1}, s{sT}, s{sROT}')
        pollc(sFP, 384 + 128*th, 8, vL4, 4, sleep=(2 if th == 0 else None))
        if th == 0: signal('CS4')
        st.put('A', f'h2{"ab"[th]}_seen')
        if th: a('s_setprio 2')
        def h2issue(ks):
            a.vm(f'buffer_load_dwordx4 {vr(RING + 4*(ks % 8), 4)}, v{vL16}, {WS}, s{sT+1} offen sc1', ('h2', ks))
            a(f's_addk_i32 s{sT+1}, 1024'); a(f's_cmp_eq_u32 s{sT+1}, s{sEND}'); a(f's_cselect_b32 s{sT+1}, s{sT}, s{sT+1}')
        for ks in range(8): h2issue(ks)
        if th: a.lg0()
        for ks in range(22):
            a.wvm(('h2', ks))
            for nt in range(2): M32(ACC4 + 16*nt, W4F + 8*ks + 4*nt, RING + 4*(ks % 8), None if ks == 0 else ACC4 + 16*nt)
            if ks + 8 < 22: h2issue(ks + 8)
        for q in range(8): a.lg(f'ds_write_b128 v{vDW}, {vr(ACC4 + 4*q, 4)} offset:{32768*th + 1024*q}')
        signal('D4a' if th == 0 else 'D4b')
        st.put('A', f'g4_{th}')
    st.flush('A')
    a('s_endpgm')

class BBar:
    n = 0
def bbar(sleep=0):
    BBar.n += 1
    signal('B'); spin('B', 4 * BBar.n, sleep=sleep)

def cmul(d, x, y):
    return [f'v_pk_mul_f32 v[{d}:{d+1}], v[{x}:{x+1}], v[{y}:{y+1}] op_sel:[0,0] op_sel_hi:[0,1]',
            f'v_pk_fma_f32 v[{d}:{d+1}], v[{x}:{x+1}], v[{y}:{y+1}], v[{d}:{d+1}] op_sel:[1,1,0] op_sel_hi:[1,0,1] neg_lo:[0,1,0]']

def role_B():
    a('L_B:')
    a.reset()
    a.vmq = ['par'] * 10
    st.put('B', 'issued')
    a(f's_load_dword s{sEP}, s[{sWSP}:{sWSP+1}], 0')
    vL16 = 4
    sXR, sSCR, sKF = sT + 5, sT + 6, sT + 7
    a('s_barrier')
    consts()
    srd(SX, 36, 2097152); srd(SWS, sWSP, 268435456); srd(SOUT, 64, 2097152)
    a(f'v_lshlrev_b32 v{vL16}, 4, v0')
    a('v_lshrrev_b32 v10, 1, v0'); a('v_and_b32 v11, 1, v0'); a('v_lshlrev_b32 v11, 4, v11'); a('v_lshl_add_u32 v10, v10, 10, v11')
    S(sSCR, [(sW, 4352)], S0 + S_KF)
    a(f's_cmp_lt_i32 s{sDEL}, 0'); a(f's_cselect_b32 s{sXR}, 64, -2'); a(f's_add_u32 s{sXR}, s{sXR}, s{sDEL}')
    S(sT, [(sC, 65536), (sXR, 1024)]); a(f'v_lshl_add_u32 v11, v0, 5, s{sT}')
    sFD = sT + 3
    LF4, LFE = a.label('FM'), a.label('FM')
    a('v_and_b32 v17, 3, v0'); a('v_lshlrev_b32 v17, 3, v17'); a('v_lshrrev_b32 v16, 5, v0')
    a(f's_cmp_ge_u32 s{sW}, 2'); a(f's_cbranch_scc1 {LF4}')
    a('v_bfe_u32 v19, v0, 2, 3'); a('v_lshl_add_u32 v18, v16, 4, v19'); a('v_mul_u32_u24 v18, 96, v18'); a('v_add_u32 v39, v18, v17')
    S(sFD, [(sW, 3072), (sJ, FMT), (sC, 6144)], WS_W3)
    a(f's_branch {LFE}')
    a(f'{LF4}:')
    a('v_bfe_u32 v19, v0, 2, 2'); a('v_lshl_add_u32 v18, v16, 3, v19'); a('v_lshl_add_u32 v18, v18, 6, v17')
    a('v_bfe_u32 v19, v0, 4, 1'); a('v_lshl_add_u32 v39, v19, 5, v18')
    S(sFD, [(sW, 1024), (sJ, FMT), (sC, 6144)], WS_W4 - 2048)
    a(f'{LFE}:')
    S(sT, [(sW, 16384)], X0); a(f'v_add_u32 v39, s{sT}, v39')
    a('v_and_b32 v37, 15, v0'); a('v_mul_u32_u24 v37, 272, v37'); a('v_lshrrev_b32 v38, 5, v0'); a('v_lshl_add_u32 v37, v38, 4, v37')
    a(f'v_add_u32 v37, s{sSCR}, v37')
    a('s_mov_b64 exec, 0xf'); a.vm('global_load_dword v46, v7, s[58:59]', 't2')
    a(f's_cmp_eq_u32 s{sW}, 0'); a(f's_cselect_b32 s{sT}, s{sFL}, 0x80000000')
    a('s_mov_b64 exec, 0x1f'); a.vm(f'buffer_load_dword v43, v5, {WS}, s{sT} offen sc1', 't2')
    a(f's_lshl_b32 s{sT+1}, s2, 7'); a(f's_add_u32 s{sT}, s{sT+1}, 0x80000'); a(f's_cmp_eq_u32 s{sW}, 1'); a(f's_cselect_b32 s{sT}, s{sT}, 0x80000000')
    a('s_mov_b64 exec, 0x7ff'); a('v_lshlrev_b32 v42, 21, v0'); a.vm(f'buffer_load_dword v42, v42, {WS}, s{sT} offen', 't2')
    a(f's_cmp_eq_u32 s{sW}, 2'); a(f's_cselect_b32 s{sT}, s{sT+1}, 0x80000000')
    a('s_mov_b64 exec, 1'); a.vm(f'buffer_load_dword v41, off, s[{SOUT}:{SOUT+3}], s{sT}', 't2'); a('s_mov_b64 exec, -1')
    a('s_waitcnt lgkmcnt(0)')
    a(f's_add_u32 s{sEP}, s{sEP}, 1'); a(f's_mov_b32 s{sEP+1}, s{sEP}')
    sXC = sT + 2
    a(f's_getreg_b32 s{sXC}, hwreg(HW_REG_XCC_ID, 0, 4)')
    if cfg.force_slow: a(f's_mov_b32 s{sXC}, s{sJ}')
    a(f's_lshl_b32 s{sXC}, s{sXC}, 28'); a(f's_add_u32 s{sXC}, s{sXC}, s{sEP}')
    S(sT, [(sJ, 4), (sFL, 1)])
    a(f's_cmp_eq_u32 s{sW}, 0'); a(f's_cselect_b32 s{sT}, s{sT}, 0x80000000')
    a(f'v_mov_b32 v{vT}, s{sXC}')
    a('s_mov_b64 exec, 1'); a.vm(f'buffer_store_dword v{vT}, off, {WS}, s{sT} offset:768 sc1', 't2'); a('s_mov_b64 exec, -1')
    a.wvm('par')
    st.put('B', 'par')
    for k in range(2): a.vm(f'buffer_load_dwordx4 {vr(12 + 4*k, 4)}, v11, s[{SX}:{SX+3}], 0 offen offset:{16*k}', 'xt')
    S(sT, [(sC, 65536), (sW, 32), (sJ, 128)])
    a(f's_lshl_b32 s{sT+1}, s{sW}, 11'); a(f's_add_u32 m0, s{sT+1}, {S0 + S_XT}')
    a.vm(f'buffer_load_dwordx4 v10, s[{SX}:{SX+3}], s{sT} offen lds', 'xt')
    a('s_addk_i32 m0, 1024'); a(f's_add_u32 s{sT}, s{sT}, 0x8000')
    a.vm(f'buffer_load_dwordx4 v10, s[{SX}:{SX+3}], s{sT} offen lds', 'xt')
    for i in range(8): a(f'v_lshlrev_b32 v{20+i}, 16, v{20+i}')
    a(f'v_mul_f32 v26, {hx(LOG2E)}, v26'); a('v_exp_f32 v26, v26')
    a('v_cvt_pk_bf16_f32 v26, v26, v26'); a('v_and_b32 v26, 0xffff0000, v26')
    for i in range(4): a(f'v_mul_f32 v{20+i}, v26, v{20+i}')
    a(f'v_mul_f32 v20, {hx(LOG2E)}, v20'); a(f'v_mul_f32 v21, {hx(1/(2*math.pi))}, v21')
    E = {1: 30, 8: 32, 256: 34}
    chains = []
    for n, (l, r) in enumerate(E.items()):
        t = 56 + 2 * n
        chains.append([f'v_mul_f32 v{t}, {hx(l)}, v20', f'v_mul_f32 v{t+1}, {hx(l)}, v21', f'v_exp_f32 v{t}, v{t}', f'v_fract_f32 v{t+1}, v{t+1}',
                       f'v_cos_f32 v{r}, v{t+1}', f'v_sin_f32 v{r+1}, v{t+1}', f'v_mul_f32 v{r}, v{r}, v{t}', f'v_mul_f32 v{r+1}, v{r+1}, v{t}'])
    for x in interleave(chains): a(x)
    YV, XV, PK, FY, FX = 64, 128, 192, 224, 64
    a(f'v_mov_b32 v{YV}, 1.0'); a(f'v_mov_b32 v{YV+1}, 0'); a(f'v_mov_b32 v{YV+2}, v32'); a(f'v_mov_b32 v{YV+3}, v33')
    his0 = list(range(9)) + [256, 258, 260, 262, 264]
    his1 = [512, 516, 520, 768, 772, 776, 1024, 1032, 1280, 1288, 1536, 1544, 1792, 1800]
    xi = {h: XV + 2 * i for i, h in enumerate(his0 + his1)}
    xchain = cmul(xi[0], 24, 22)
    for h in range(1, 9): xchain += cmul(xi[h], xi[h-1], 30)
    ych = cmul(YV+4, YV+2, YV+2) + cmul(YV+6, YV+4, YV+2) + cmul(YV+8, YV+4, YV+4)
    for j in range(5, 32): ych += cmul(YV + 2*j, YV + 2*(j-4), YV + 8)
    head, rest = ych[:6], ych[6:]
    grp = []
    for g in range(0, len(rest), 8):
        blk = rest[g:g+8]; grp += blk[0::2] + blk[1::2]
    x2 = []
    for lvl in ([256, 258, 260, 262, 264], [512, 516, 520], [768, 772, 776], [1024, 1032], [1280, 1288], [1536, 1544], [1792, 1800]):
        blk = []
        for h in lvl: blk += cmul(xi[h], xi[h-256], 34)
        x2 += blk[0::2] + blk[1::2]
    for x in interleave([head + grp, xchain + x2]): a(x)
    st.put('B', 'k1')
    a(f's_mov_b32 m0, s{sSCR}')
    def batch(rows_src, neg, F):
        for row in range(32):
            if row in rows_src:
                s_ = rows_src[row]
                a(f'v_cvt_pk_bf16_f32 v{PK + row}, v{s_}, {"-" if neg else ""}v{s_+1}')
        for b in range(2):
            for r in range(16):
                if 16 * b + r in rows_src: a.lg(f'ds_write_addtid_b32 v{PK + 16*b + r} offset:{272*r}')
            a(f's_mov_b32 exec_lo, {"0x0000ffff" if b == 0 else "0xffff0000"}'); a('s_mov_b32 exec_hi, exec_lo')
            for ks in range(8): a.lg(f'ds_read_b128 {vr(F + 4*ks, 4)}, v37 offset:{32*ks}')
            a('s_mov_b64 exec, -1')
    batch({j: YV + 2*j for j in range(32)}, False, FY)
    rowof = lambda v, half: (v & 3) + 8 * (v >> 2) + 4 * half
    xrows = {rowof(v, 0): xi[h] for v, h in enumerate(his0)}
    xrows.update({rowof(v, 1): xi[h] for v, h in enumerate(his1)})
    batch(xrows, True, FX)
    a.lg0()
    st.put('B', 'k2')
    KD, KP = 40, 240
    a.wvm('xt')
    for ks in range(8): M32(KD, FX + 4*ks, FY + 4*ks, None if ks == 0 else KD)
    a('v_mov_b32 v28, 0'); a('v_mov_b32 v29, 0')
    for d in range(8):
        a(f'v_lshlrev_b32 v30, 16, v{12+d}'); a(f'v_and_b32 v31, 0xffff0000, v{12+d}')
        a('v_add_f32 v28, v28, v30'); a('v_fmac_f32 v29, v30, v30'); a('v_add_f32 v28, v28, v31'); a('v_fmac_f32 v29, v31, v31')
    a('v_permlane16_swap_b32 v28, v29'); a('v_add_f32 v28, v28, v29')
    for sh in (8, 4, 2, 1): a(f'v_add_f32_dpp v28, v28, v28 row_ror:{sh} row_mask:0xf bank_mask:0xf')
    a('v_mov_b32 v29, v28'); a('v_permlane16_swap_b32 v28, v29')
    finstat(28)
    a(f's_lshl_b32 s{sT}, s{sXR}, 3'); a(f's_add_u32 s{sT}, s{sT}, {S0 + S_ST + 16}'); a('v_lshrrev_b32 v17, 5, v0'); a(f'v_lshl_add_u32 v18, v17, 3, s{sT}')
    a('s_mov_b32 exec_lo, 1'); a('s_mov_b32 exec_hi, 1'); a.lg(f'ds_write_b64 v18, v[28:29]'); a('s_mov_b64 exec, -1')
    a(f'v_add_u32 v36, s{sSCR}, v{vL16}')
    a(f's_xor_b32 s{sT}, s{sW}, 1'); S(sT, [(sT, 4352)], S0 + S_KF); a(f'v_add_u32 v37, s{sT}, v{vL16}')
    for q in range(4): a.lg(f'ds_write_b128 v36, {vr(KD + 4*q, 4)} offset:{1024*q}')
    signal('B'); BBar.n += 1
    XT, MSR, UT, UP, FR_ = 176, 184, 216, 224, 160
    a('v_and_b32 v16, 31, v0'); a('v_lshlrev_b32 v16, 2, v16'); a('v_lshl_add_u32 v16, v17, 8, v16')
    a(f'v_add_u32 v16, {S0 + S_STP}, v16'); a('v_add_u32 v17, 1024, v16')
    a('v_lshrrev_b32 v18, 4, v0'); a('v_bfe_u32 v19, v0, 2, 2'); a('v_lshl_add_u32 v19, v18, 3, v19'); a('v_lshlrev_b32 v19, 5, v19')
    a('v_and_b32 v20, 3, v0'); a('v_lshl_add_u32 v19, v20, 3, v19'); a(f's_lshl_b32 s{sT}, s{sW}, 11'); a(f'v_add_u32 v19, s{sT}, v19')
    for o in range(2):
        for p in range(2): a.lg(f'ds_read_b64_tr_b16 v[{XT+4*o+2*p}:{XT+1+4*o+2*p}], v19 offset:{S0 + S_XT + 1024*o + 128*p}')
    a(f's_lshl_b32 s{sT}, s{sDEL}, 3'); a(f's_add_u32 s{sT}, s{sT}, {S0 + S_ST + 16}'); a(f'v_lshl_add_u32 v21, v0, 3, s{sT}')
    a('v_lshlrev_b32 v22, 6, v18')
    a('v_and_b32 v23, 15, v0'); a('v_lshlrev_b32 v23, 6, v23'); a('v_lshl_add_u32 v23, v18, 4, v23')
    S(sT, [(sJ, 32*UPS), (sW, 2048), (sC, UPS)], WS_UT)
    st.put('B', 'k3')
    spin('FI', 4)
    st.put('B', 'FI_seen')
    for w2 in range(4): a.lg(f'ds_read2_b32 v[{28+2*w2}:{29+2*w2}], v{16 + (w2 >> 1)} offset0:{128*(w2 & 1)} offset1:{128*(w2 & 1) + 32}')
    LG4, LGE = a.label('FM'), a.label('FM')
    a(f's_cmp_ge_u32 s{sW}, 2'); a(f's_cbranch_scc1 {LG4}')
    for m in range(3):
        for p in range(2): a(f'ds_read_b64_tr_b16 v[{FR_+4*m+2*p}:{FR_+1+4*m+2*p}], v39 offset:{32*m + 768*p}')
    a('s_waitcnt lgkmcnt(0)')
    for m in range(3): a(f'buffer_store_dwordx4 {vr(FR_ + 4*m, 4)}, v{vL16}, {WS}, s{sFD} offen offset:{1024*m} sc1')
    a(f's_branch {LGE}')
    a(f'{LG4}:')
    for m in range(3):
        for p in range(2): a(f'ds_read_b64_tr_b16 v[{FR_+4*m+2*p}:{FR_+1+4*m+2*p}], v39 offset:{1024*m + 256*p}')
    a('s_waitcnt lgkmcnt(0)')
    for m in range(3):
        if m == 2: a(f's_addk_i32 s{sFD}, 4096')
        a(f'buffer_store_dwordx4 {vr(FR_ + 4*m, 4)}, v{vL16}, {WS}, s{sFD} offen offset:{2048*(m & 1)} sc1')
    a(f'{LGE}:')
    a.lgq = []
    for m in range(3): a.vmq.append('fst')
    signal('FR')
    st.put('B', 'fmt_st')
    padd(28, 28, 32, 4, False); padd(28, 28, 30, 2, False)
    finstat(28)
    a.lg('ds_write_b64 v21, v[28:29]')
    signal('STAT')
    for o in range(2):
        for k in range(4): a.lg(f'ds_read_b128 {vr(MSR + 16*o + 4*k, 4)}, v22 offset:{S0 + S_ST + 16 + 256*o + 16*k}', ('ms', o))
    for o in range(2):
        unpack(UT, XT + 4*o, 4)
        a.wlg(('ms', o))
        for i in range(8): a(f'v_sub_f32 v{UT+i}, v{UT+i}, v{MSR+16*o+2*i}')
        for i in range(8): a(f'v_mul_f32 v{UT+i}, v{UT+i}, v{MSR+1+16*o+2*i}')
        for d in range(4): a(f'v_cvt_pk_bf16_f32 v{UP+4*o+d}, v{UT+2*d}, v{UT+1+2*d}')
        a.vm(f'buffer_store_dwordx4 {vr(UP + 4*o, 4)}, v23, {WS}, s{sT} offen offset:{1024*o} sc1', 'ust')
    st.put('B', 'u_stored')
    spin('B', 4 * BBar.n)
    for q in range(4): a.lg(f'ds_read_b128 {vr(KP + 4*q, 4)}, v37 offset:{1024*q}')
    bbar()
    padd(KD, KD, KP, 14, False)
    a('s_mov_b64 exec, 1'); a(f'v_add_f32 v{KD}, v{KD}, v27'); a('s_mov_b64 exec, -1')
    a(f's_lshr_b32 s{sT}, s{sW}, 1'); S(sKF, [(sT, 2*KCOPY)], S0 + S_KF)
    a('v_and_b32 v36, 31, v0'); a('v_lshlrev_b32 v36, 4, v36'); a(f's_add_u32 s{sT}, s{sKF}, {4080 - 512*7}'); a(f'v_sub_u32 v36, s{sT}, v36')
    def expand(seg, vals, tmp):
        for i in range(4): a(f'v_cvt_pk_bf16_f32 v{tmp+i}, v{vals[7-2*i]}, v{vals[6-2*i]}')
        for i in range(4): a(f'v_cvt_pk_bf16_f32 v{tmp+4+i}, v{vals[8-2*i]}, v{vals[7-2*i]}')
        a.lg(f'ds_write_b128 v36, {vr(tmp, 4)} offset:{512*(7-seg)}')
        a.lg(f'ds_write_b128 v36, {vr(tmp+4, 4)} offset:{512*(7-seg) + KCOPY}')
    ET = 176
    LX1, LXE = a.label('EX'), a.label('EX')
    a(f's_bitcmp1_b32 s{sW}, 0'); a(f's_cbranch_scc1 {LX1}')
    a('s_mov_b32 exec_hi, 0')
    expand(0, [KD + i for i in range(9)], ET)
    expand(1, [KD + 9 + k for k in (0, 0, 1, 2, 2, 2, 3, 4, 4)], ET + 8)
    a('s_mov_b32 exec_lo, 0xffff')
    a('v_mov_b32 v38, 0'); a('v_and_b32 v37, 7, v0'); a('v_lshlrev_b32 v37, 2, v37'); a('v_lshrrev_b32 v39, 3, v0'); a('v_xor_b32 v39, 1, v39')
    a(f'v_mul_u32_u24 v39, {KCOPY}, v39'); a(f'v_add3_u32 v37, v37, v39, s{sKF}')
    a('s_mov_b32 exec_lo, 1'); a(f'v_cvt_pk_bf16_f32 v38, v{KD}, v38'); a('s_mov_b32 exec_lo, 0xffff')
    a.lg('ds_write_b32 v37, v38 offset:4096')
    a('s_mov_b32 exec_lo, 0'); a('s_mov_b32 exec_hi, -1')
    expand(2, [KD + k for k in (0, 0, 0, 1, 1, 1, 2, 2, 2)], ET + 16)
    expand(3, [KD + 3 + k for k in (0, 0, 0, 1, 1, 1, 2, 2, 2)], ET + 24)
    a(f's_branch {LXE}')
    a(f'{LX1}:')
    a('s_mov_b32 exec_lo, 0')
    a('v_and_b32 v37, 1, v0'); a('v_cmp_eq_u32 vcc, 1, v37')
    for s_ in range(4):
        lo, hi = KD + 6 + 2*s_, KD + 7 + 2*s_
        a(f'v_cndmask_b32 v38, v{lo}, v{hi}, vcc')
        expand(4 + s_, [lo, lo, lo, lo, 38, hi, hi, hi, hi], ET + 8*s_)
    a(f'{LXE}:')
    a('s_mov_b64 exec, -1')
    st.put('B', 'kexp')
    publish_col('FF', 0, 'fst')
    st.put('B', 'fmt_flag')
    publish_col('FU', 512)
    st.put('B', 'u_flag')
    LM, LMP, LME = a.label('MD'), a.label('MD'), a.label('MD')
    a(f's_cmp_lg_u32 s{sW}, 1'); a(f's_cbranch_scc1 {LM}')
    a('v_lshlrev_b32 v16, 2, v0')
    a(f's_mov_b32 s{sT+9}, {cfg.gbound}')
    a('s_mov_b64 exec, 0xff')
    a(f'{LMP}:')
    a(f'buffer_load_dword v17, v16, {WS}, s{sFL} offen offset:768 sc1')
    a('s_waitcnt vmcnt(0)')
    a(f'v_subrev_u32 v18, s{sEP}, v17'); a('v_and_b32 v18, 0x0fffffff, v18')
    a('v_cmp_ne_u32 vcc, 0, v18')
    a(f's_cbranch_vccz {LME}')
    a(f's_sleep {cfg.csleep}')
    a(f's_sub_u32 s{sT+9}, s{sT+9}, 1'); a(f's_cbranch_scc0 {LMP}')
    a(f'{LME}:')
    a(f'v_cmp_ne_u32 vcc, s{sXC}, v17')
    a('s_cmp_eq_u64 vcc, 0'); a(f's_cselect_b32 s{sT}, 1, 2')
    a(f'v_mov_b32 v16, s{sT}')
    a('s_mov_b64 exec, 1'); a(f'ds_write_b32 v{vS}, v16 offset:{CN["MODE"]}'); a('s_mov_b64 exec, -1')
    a(f'{LM}:')
    vL16c, vCU, vCT, ONES, CS, CACC, TF, UF = 5, 6, 8, 12, 16, 28, 192, 224
    NCH = (TF - 64) // 12
    sUB, sW3 = sT + 6, sT + 5
    for i in range(4): a(f'v_mov_b32 v{ONES+i}, s{sK+4}')
    a(f's_cmp_eq_u32 s{sW}, 3'); a(f's_cselect_b32 s{sT}, 0x80000000, 0'); a(f'v_add_u32 v{vL16c}, s{sT}, v{vL16}')
    a(f's_lshr_b32 s{sT}, s{sW}, 1'); S(sUB, [(sT, USZ)], U0)
    a(f's_and_b32 s{sT+1}, s{sW}, 1'); a(f's_lshl_b32 s{sT+1}, s{sT+1}, 8')
    a('v_and_b32 v20, 15, v0'); a('v_lshrrev_b32 v21, 4, v0'); a('v_lshlrev_b32 v21, 4, v21'); a(f'v_subrev_u32 v21, s{sT+1}, v21')
    a('v_lshl_add_u32 v22, v20, 5, v21'); a(f's_add_u32 s{sT}, s{sUB}, 480'); a(f'v_add_u32 v{vCU}, s{sT}, v22')
    a('v_add_u32 v22, 1, v20'); a('v_lshrrev_b32 v23, 1, v22'); a('v_lshlrev_b32 v23, 2, v23'); a('v_sub_u32 v21, v21, v23')
    a('v_and_b32 v22, 1, v22'); a(f'v_mul_u32_u24 v22, {KCOPY}, v22'); a('v_add_u32 v21, v21, v22')
    for m in range(4):
        a(f's_add_u32 s{sT}, s{sKF}, {4064 - 512*(2*m+1) - 64}'); a(f'v_add_u32 v{vCT+m}, s{sT}, v21')
    for i in range(32): a(f'v_mov_b32 v{CACC+i}, 0')
    S(sW3, [(sJ, FMT), (sW, 3072)], WS_W3)
    poll32(0, 'CF', 60, 61)
    st.put('B', 'fmt_seen')
    W3F = 64
    def w3issue(ks):
        for m in range(3):
            a.vm(f'buffer_load_dwordx4 {vr(W3F + 12*ks + 4*m, 4)}, v{vL16c if m == 2 else vL16}, {WS}, s{sW3} offen offset:{1024*m} sc1', ('w3', ks))
        a(f's_addk_i32 s{sW3}, 12288')
    def ldT(i, nxt):
        t = TF + 4 * i; o = (128 if i % 2 == 0 else 0) + (0 if nxt else 16)
        a.lg(f'ds_read2_b32 v[{t}:{t+1}], v{vCT + i//2} offset0:{o} offset1:{o+1}', ('T', i))
        a.lg(f'ds_read2_b32 v[{t+2}:{t+3}], v{vCT + i//2} offset0:{o+2} offset1:{o+3}', ('T', i))
    def ldU(jq): a.lg(f'ds_read_b128 {vr(UF + 4*jq, 4)}, v{vCU} offset:{512*jq}', ('U', jq))
    issued = 0; nconv = 0
    for i in range(16):
        lim = min(16, i + cfg.la3 + 1)
        if nconv < 4: lim = min(lim, NCH)
        while issued < lim: w3issue(issued); issued += 1
        if i == cfg.poll_step:
            st.put('B', 'u_poll')
            poll32(512, 'CU', 60, 61)
            spin('W', 4)
            st.put('B', 'u_seen')
            a('v_lshrrev_b32 v60, 3, v0'); a(f'v_mul_u32_u24 v60, {UPS}, v60'); a('v_bfe_u32 v61, v0, 2, 1'); a('v_lshl_add_u32 v60, v61, 10, v60')
            a('v_and_b32 v61, 3, v0'); a('v_lshl_add_u32 v60, v61, 4, v60')
            a(f's_and_b32 s{sT+1}, s{sW}, 1'); a(f's_bfe_u32 s{sT}, s{sD}, 0x20004'); a(f's_and_b32 s{sT+8}, s{sD}, 15')
            S(sT, [(sT, 2048), (sT + 8, 64), (sJ, 32*UPS), (sT + 1, 16*UPS)], WS_UT)
            S(sT + 1, [(sT + 1, 2048), (sUB, 1)], 512); a(f's_mov_b32 m0, s{sT+1}')
            a.vm(f'buffer_load_dwordx4 v60, {WS}, s{sT} offen sc1 lds', 'u')
            a('s_addk_i32 m0, 1024'); a(f's_add_u32 s{sT}, s{sT}, {8*UPS}')
            a.vm(f'buffer_load_dwordx4 v60, {WS}, s{sT} offen sc1 lds', 'u')
            a(f'v_add_u32 v7, s{sUB}, v{vL16}')
            a('s_mov_b32 exec_hi, 0'); a.lg(f'ds_write_b128 v7, {vr(CACC, 4)}'); a('s_mov_b64 exec, -1')
        if i == cfg.conv_steps[0]:
            a.wvm('u'); bbar()
            st.put('B', 'conv_go')
            for q in range(8): ldT(7 - q, False); ldU(q)
            a(f'v_subrev_u32 v{vCU}, 64, v{vCU}')
        for _ in range(cfg.conv_steps.count(i)):
            a(f's_call_b64 s[{sRET}:{sRET+1}], L_conv'); nconv += 1
            if nconv == 4:
                a.lg0()
                st.put('B', 'conv_done')
                while issued < min(16, NCH + 3): w3issue(issued); issued += 1
                rest = True
                S(sT, [(sW, 8192)], CX0); a(f'v_add_u32 v7, s{sT}, v{vL16}')
                for q in range(8): a.lg(f'ds_write_b128 v7, {vr(CACC + 4*q, 4)} offset:{1024*q}')
                a(f's_and_b32 s{sT+1}, s{sW}, 1'); a(f's_lshl_b32 s{sT}, s{sT+1}, 12'); a(f'v_add_u32 v7, s{sT}, v7'); a('v_xor_b32 v6, 0x2000, v7')
                a('v_and_b32 v8, 15, v0'); a('v_lshrrev_b32 v9, 4, v0'); a('v_lshlrev_b32 v9, 3, v9'); a('v_lshl_add_u32 v8, v8, 5, v9')
                S(sT, [(sD, SRS), (sT + 1, 2048)], WS_ST)
                bbar()
                while issued < 16: w3issue(issued); issued += 1
                for q in range(4):
                    a.lg(f'ds_read_b128 {vr(CACC + 4*q, 4)}, v7 offset:{1024*q}', ('c', q))
                    a.lg(f'ds_read_b128 {vr(CACC + 16 + 4*q, 4)}, v6 offset:{1024*q}', ('c', q))
                for q in range(4):
                    a.wlg(('c', q))
                    padd(CACC + 4*q, CACC + 4*q, CACC + 16 + 4*q, 4, False)
                    for d in range(2): a(f'v_cvt_pk_bf16_f32 v{CACC+16+4*q+d}, v{CACC+4*q+2*d}, v{CACC+4*q+2*d+1}')
                    a.vm(f'buffer_store_dwordx2 v[{CACC+16+4*q}:{CACC+17+4*q}], v8, {WS}, s{sT} offen offset:{512*q} sc1', 'sst')
        if issued == 16 and not hasattr(role_B, 'w3i'):
            role_B.w3i = True; signal('W3I')
        a.wvm(('w3', i))
        for m in range(3): M16(CS + 4*m, W3F + 12*i + 4*m, ONES, None if i == 0 else CS + 4*m)
    assert nconv == 4 and issued == 16
    st.put('B', 'w3_done')
    ACC3, FR, GT, MS, vX1, vH2, vS3, PKD = 28, 52, 6, 10, 5, 12, 13, 14
    sH2, sDROP, sZ, sFO = 36, sT + 6, sT + 7, sT + 5
    a(f'v_add_u32 v{vX1}, {X0}, v{vL16}')
    a('v_lshrrev_b32 v6, 5, v0'); a('v_and_b32 v7, 15, v0'); a('v_lshl_add_u32 v6, v6, 5, v7'); a('v_lshlrev_b32 v6, 4, v6')
    a('v_bfe_u32 v8, v0, 4, 1'); a(f'v_lshl_add_u32 v{vH2}, v8, 3, v6')
    a(f'v_lshlrev_b32 v{vS3}, 3, v7')
    a(f's_and_b32 s{sT}, s{sJ}, 1')
    S(sH2, [(sC, H2C), (sJ, 11*1024), (sW, 3072), (sT, 256)], WS_H2)
    a(f's_xor_b32 s{sH2+1}, s{sH2}, 256'); a(f's_add_u32 s{sH2+2}, s{sH2}, {88*1024}'); a(f's_add_u32 s{sH2+3}, s{sH2+1}, {88*1024}')
    a(f's_cmp_eq_u32 s{sW}, 3'); a(f's_cselect_b32 s{sDROP}, 0x80000000, 0')
    a(f's_or_b32 s{sT}, s{sJ}, 2'); S(sT, [(sT, 4), (sW, 1)])
    a(f's_cmp_eq_u32 s{sT}, {7*4+3}'); a(f's_cselect_b32 s{sZ}, 0, -1')
    S(sFO, [(sJ, 16), (sW, 4), (sFL, 1)])
    spin('MODE', 1); a(f's_mov_b32 s{sMODE}, s{sT+8}')
    def epi3(k, pk=False):
        o = []
        A3 = ACC3 + 12 * (k & 1)
        for m in range(3):
            chains = []
            for kk in range(2):
                p = A3 + 4*m + 2*kk; c = CS + 4*m + 2*kk
                ch = [f'v_fma_f32 v{p+i}, -v{c+i}, v{MS}, v{p+i}' for i in range(2)] + [f'v_mul_f32 v{p+i}, v{p+i}, v{MS+1}' for i in range(2)]
                ch += gelu_ops(p, GT + 2*kk, PKD + kk, False)
                chains.append(ch)
            o += interleave(chains)
            if m == 1: o += [f'v_and_b32 v{PKD+kk}, s{sZ}, v{PKD+kk}' for kk in range(2)]
            if m == 2: o.append(f's_or_b32 s{sH2+k}, s{sH2+k}, s{sDROP}')
            o.append(('vm', f'buffer_store_dwordx2 v[{PKD}:{PKD+1}], v{vH2}, {WS}, s{sH2+k} offen offset:{1024*m} sc1', ('h2st', k)))
        return o
    def emit(x):
        if isinstance(x, tuple): a.vm(x[1], x[2])
        else: a(x)
    spin('X0', 4)
    a('s_setprio 2')
    st.put('B', 'g3_start')
    def rdf(n): a.lg(f'ds_read_b128 {vr(FR + 4*(n % 3), 4)}, v{vX1} offset:{1024*n}', ('f', n))
    rdf(0); rdf(1)
    pend = []; per = 0
    for n in range(64):
        k, ks = divmod(n, 16)
        if ks == 0 and k > 0:
            a.lg(f'ds_read_b64 v[{MS}:{MS+1}], v{vS3} offset:{S0 + S_ST3 + 128*(k-1)}', 'ms')
            pend = epi3(k - 1); per = -(-len(pend) // 40)
        if ks == 10 and k < 2:
            a.lg(f'ds_read_b32 v{vT}, v{vS} offset:{CN["XB" if k == 0 else "XA"]}', 'chk')
        if ks == 14 and k < 2:
            LOK = a.label('OK')
            a.wlg('chk')
            a(f'v_readfirstlane_b32 s{sT+8}, v{vT}'); a(f's_cmp_ge_u32 s{sT+8}, {5 if k == 0 else 8}'); a(f's_cbranch_scc1 {LOK}')
            saved = list(a.lgq)
            spin('XB' if k == 0 else 'XA', 5 if k == 0 else 8)
            a.lgq = saved
            a(f'{LOK}:')
        if k == 0 and ks == 6:
            saved = list(a.lgq)
            publish_col('FS', 1024, 'sst')
            a.lgq = saved
        if k == 3 and ks == 9:
            flag(sFO, 384, ('h2st', 1), False)
            st.put('B', 'h2a_flag')
        a.wlg([('f', n)] + (['ms'] if ks == 2 else []))
        for m in range(3):
            A3 = ACC3 + 12 * (k & 1) + 4 * m
            M16(A3, W3F + 12*ks + 4*m, FR + 4*(n % 3), None if ks == 0 else A3)
            if m == 0 and n + 2 < 64: rdf(n + 2)
            if ks >= 2:
                for _ in range(per):
                    if pend: emit(pend.pop(0))
        if ks == 15:
            while pend: emit(pend.pop(0))
    st.put('B', 'g3_mfma')
    a(f'ds_read_b64 v[{MS}:{MS+1}], v{vS3} offset:{S0 + S_ST3 + 128*3}'); a.lg0()
    for x in epi3(3): emit(x)
    st.put('B', 'h2_stored')
    X1R, XR, SR_, Z = 64, 80, 96, 112
    sTB, sNT, sO = sT, sT + 1, sT + 2
    a(f's_and_b32 s{sTB}, s{sW}, 1'); a(f's_lshr_b32 s{sNT}, s{sW}, 1')
    a('v_and_b32 v20, 15, v0'); a('v_lshrrev_b32 v21, 4, v0')
    a('v_lshrrev_b32 v22, 5, v0'); a('v_lshlrev_b32 v22, 9, v22'); a('v_lshl_add_u32 v22, v20, 4, v22')
    a('v_and_b32 v23, 1, v21'); a('v_lshl_add_u32 v22, v23, 3, v22')
    a(f's_xor_b32 s{sT+8}, s{sTB}, s{sJ}'); a(f's_and_b32 s{sT+8}, s{sT+8}, 1')
    S(sT + 8, [(sT + 8, 16384), (sJ, 2048), (sNT, 1024)], X0); a(f'v_add_u32 v22, s{sT+8}, v22')
    for th in range(2):
        for h in range(2): a.lg(f'ds_read_b64 v[{32+4*th+2*h}:{33+4*th+2*h}], v22 offset:{32768*th + 256*h}', 'pr')
    a('v_lshlrev_b32 v23, 4, v23'); a('v_lshl_add_u32 v23, v20, 5, v23'); a('v_lshrrev_b32 v24, 5, v0'); a('v_lshl_add_u32 v23, v24, 11, v23')
    S(sT + 8, [(sTB, 512), (sNT, 4096)]); a(f'v_add_u32 v23, s{sT+8}, v23')
    for th in range(2): a.lg(f'ds_read_b128 {vr(40 + 4*th, 4)}, v23 offset:{S0 + S_XT + 1024*th}', 'pr')
    a('v_bfe_u32 v24, v0, 2, 2'); a('v_lshl_add_u32 v24, v21, 3, v24'); a('v_lshlrev_b32 v24, 7, v24')
    a('v_and_b32 v25, 3, v0'); a('v_lshl_add_u32 v24, v25, 3, v24')
    S(sT + 8, [(sNT, 4096), (sTB, 32)]); a(f'v_add_u32 v24, s{sT+8}, v24')
    a('v_lshlrev_b32 v25, 4, v20'); a('v_lshl_add_u32 v25, v21, 10, v25')
    S(sT + 8, [(sNT, 4096), (sTB, 256)], W0); a(f'v_add_u32 v25, s{sT+8}, v25')
    a('v_lshlrev_b32 v26, 10, v20'); a('v_lshl_add_u32 v26, v21, 4, v26')
    S(sO, [(sC, 65536), (sTB, 16384), (sJ, 128), (sNT, 64)])
    flag(sFO, 512, ('h2st', 3), False)
    a('s_setprio 0')
    st.put('B', 'h2_flag')
    spin('CS4', 4)
    for th in range(2):
        for p in range(2): a.lg(f'ds_read_b64_tr_b16 v[{48+4*th+2*p}:{49+4*th+2*p}], v24 offset:{S0 + S_KF + 512*p + 64*th}')
    if cfg.clean and cfg.hx == 'plain':
        S(sT + 8, [(sIDX, 8192), (sJ, 8192), (sW, 2048)], WS_X1)
        for k in range(2): a.vm(f'buffer_store_dwordx4 v[28:31], v{vL16}, {WS}, s{sT+8} offen offset:{1024*k} sc1')
    unpack(X1R, 32, 8); unpack(XR, 40, 8)
    a.lg0()
    unpack(SR_, 48, 8)
    a(f's_mov_b32 s{sK+6}, {hx(-LOG2E)}'); a(f's_mov_b32 s{sK+7}, {hx(-LOG2E)}')
    st.put('B', 'prep')
    for th in range(2):
        spin('D4a' if th == 0 else 'D4b', 4)
        for w2 in range(4):
            for h in range(2): a.lg(f'ds_read_b128 {vr(Z + 8*w2 + 4*h, 4)}, v25 offset:{32768*th + 8192*w2 + 512*h}', ('z', w2))
        z = X1R + 8 * th
        pk = th == 1
        for w2 in range(4):
            a.wlg(('z', w2)); padd(z, z, Z + 8*w2, 8, pk)
        t = Z
        if pk:
            for i in range(0, 8, 2): a(f'v_pk_mul_f32 v[{t+i}:{t+i+1}], v[{z+i}:{z+i+1}], s[{sK+6}:{sK+7}]')
            for i in range(8): a(f'v_exp_f32 v{t+i}, v{t+i}')
            for i in range(0, 8, 2): a(f'v_pk_add_f32 v[{t+i}:{t+i+1}], v[{t+i}:{t+i+1}], 1.0 op_sel_hi:[1,0]')
            for i in range(0, 8, 2): a(f'v_pk_mul_f32 v[{z+i}:{z+i+1}], v[{z+i}:{z+i+1}], v[{SR_+8*th+i}:{SR_+8*th+i+1}]')
            for i in range(8): a(f'v_rcp_f32 v{t+i}, v{t+i}')
            for i in range(0, 8, 2): a(f'v_pk_fma_f32 v[{z+i}:{z+i+1}], v[{z+i}:{z+i+1}], v[{t+i}:{t+i+1}], v[{XR+8*th+i}:{XR+8*th+i+1}]')
        else:
            for i in range(8): a(f'v_mul_f32 v{t+i}, s{sK+6}, v{z+i}')
            for i in range(8): a(f'v_exp_f32 v{t+i}, v{t+i}')
            for i in range(8): a(f'v_add_f32 v{t+i}, 1.0, v{t+i}')
            for i in range(8): a(f'v_mul_f32 v{z+i}, v{z+i}, v{SR_+8*th+i}')
            for i in range(8): a(f'v_rcp_f32 v{t+i}, v{t+i}')
            for i in range(8): a(f'v_fma_f32 v{z+i}, v{z+i}, v{t+i}, v{XR+8*th+i}')
        for i in range(4): a(f'v_cvt_pk_bf16_f32 v{56+4*th+i}, v{z+2*i}, v{z+2*i+1}')
        if th == 1: a(f's_add_u32 s{sO}, s{sO}, 0x8000')
        a.vm(f'buffer_store_dwordx4 {vr(56 + 4*th, 4)}, v26, s[{SOUT}:{SOUT+3}], s{sO} offen {cfg.out_fl}')
        st.put('B', f'out{th}')
    LE2 = a.label('EP')
    a(f's_add_u32 s{sT}, s2, s{sW}'); a(f's_cmp_lg_u32 s{sT}, 0'); a(f's_cbranch_scc1 {LE2}')
    a('s_mov_b64 exec, 1'); a(f'v_mov_b32 v{vT}, s{sEP}')
    a(f'buffer_store_dword v{vT}, off, {WS}, 0 sc1')
    a('s_mov_b64 exec, -1')
    a(f'{LE2}:')
    st.flush('B')
    a('s_endpgm')
    a('L_conv:')
    a.reset()
    a('s_waitcnt lgkmcnt(12)')
    for i in range(7, 3, -1):
        for jq in range(0, 8 - i): M16(CACC + 4*(i + jq), TF + 4*i, UF + 4*jq, CACC + 4*(i + jq))
        if i == 5: pre = len(a.lgq)
        ldT(i, True)
    a(f's_waitcnt lgkmcnt({len(a.lgq)})')
    for jq in range(8):
        for i in range(3, -1, -1):
            if i + jq <= 7: M16(CACC + 4*(i + jq), TF + 4*i, UF + 4*jq, CACC + 4*(i + jq))
        ldU(jq)
        if jq >= 4: ldT(7 - jq, True)
    a(f'v_subrev_u32 v{vCU}, 64, v{vCU}')
    for m in range(4): a(f'v_subrev_u32 v{vCT+m}, 64, v{vCT+m}')
    a(f's_setpc_b64 s[{sRET}:{sRET+1}]')
    a('L_codeend:')

def build(path):
    prologue(); role_A(); role_B()
    body, npad = a.finalize()
    K = NAME + '_kernel'
    hdr = open('cdna_kernels/' + NAME + '.s.ref').read().split('; Override launch geometry')[0]
    o = hdr + '; @launch grid=(256,1,1) block=(512,1,1) lds=163840\n'
    o += f'.amdgcn_target "amdgcn-amd-amdhsa--gfx950"\n.text\n.globl {K}\n.p2align 8\n.type {K},@function\n{K}:\n'
    o += '\n'.join(('' if l.endswith(':') else '  ') + l for l in body) + '\n'
    o += f'''.section .rodata,"a"
.p2align 6
.amdhsa_kernel {K}
  .amdhsa_next_free_vgpr 256
  .amdhsa_next_free_sgpr 102
  .amdhsa_accum_offset 256
  .amdhsa_group_segment_fixed_size 0
  .amdhsa_kernarg_size 136
  .amdhsa_user_sgpr_count 2
  .amdhsa_user_sgpr_kernarg_segment_ptr 1
  .amdhsa_system_sgpr_workgroup_id_x 1
.end_amdhsa_kernel
'''
    open(path, 'w').write(o)
    json.dump(st.names, open(path + '.stamps.json', 'w'))
    print('instrs', len(body), 'pads', npad)

if __name__ == '__main__':
    out = sys.argv[1]
    for kv in sys.argv[2:]:
        k, v = kv.split('=', 1); setattr(cfg, k, eval(v))
    build(out)
```

```python
import sys, math, struct, json
from asmlib import *
NAME = 'recurrent_scan__ssm_conv_s4__mixer_s_mlp__prompt'
def f2u(x): return struct.unpack('<I', struct.pack('<f', x))[0]
def hx(x): return hex(f2u(x))

class Cfg:
    stamps = False
    laa = 9
    la3 = 2
    la4 = 4
    w3a = 3
    w3b = 2
    w3c = 1
    w3d = 2
    uprio = 3
    bprio = 0
    cpk = True
    g1sync = (1, 3)
    g2sync = (1, 3)
    la1 = 6
    touch = True
    poll_step = 3
    conv_steps = (5, 6, 7, 8)
    psleep = 0
    csleep = 8
    cpoll = 'vec'
    touch_nt = 'nt'
    w4wait = True
    out_fl = ''
    clean = True
    rot4 = 2
    force_slow = False
    hx = 'sc1'
    pumpb = 8
    pumpa = 8
    w2pre = 24
    s_ks = 16
    gbound = 200000
    lbound = 1000000
cfg = Cfg()

S0, W0, X0 = 0, 32768, 98304
KSCR = 8704
S_KF, S_XT, S_STP, S_CS1, S_ST, S_ST3, S_CNT = 0, 17408, 25600, 27648, 28672, 29248, 30784
CN = {n: S_CNT + 4 * i for i, n in enumerate(
    ['S', 'D1', 'W', 'D2', 'R2', 'Q2', 'X0', 'XB', 'XA', 'B', 'STAT', 'FF', 'FU', 'FS', 'D4a', 'D4b', 'MODE', 'CF', 'CU', 'CS', 'CS4', 'W3I', 'G1', 'F4', 'C4', 'SA', 'XA0', 'XA1', 'WC0', 'WC1', 'WC2', 'WC3', 'W2L', 'HC0', 'HC1', 'HC2', 'HC3', 'KX'])}
U0, USZ, KCOPY = X0 + 49152, 4608, 4160
CX0 = X0
WS_FLAG = 0x10000
WS_CFLAG = 0x8000
WS_XS = 0x40000
WS_H, WS_X1, WS_H2, WS_UT, WS_ST, WS_W3, WS_W4, WS_STAMP = 0x100000, 0x300000, 0x500000, 0xA80000, 0xCC0000, 0xF00000, 0x1080000, 0x1400000
WS_W2 = 0x1200000
UPS, SRS = 8320, 4224
H2C, FMT = 2 * 88 * 1024, 196608
sW, sJ, sC, sIDX, sDEL = 3, 4, 5, 6, 7
SX, SW1, SW2, SW3, SWS, SOUT = 8, 12, 16, 20, 28, 32
sMODE, sFL, sCFO = 24, 25, 26
sEP = 68
sT = 70
sK = 80
sRET, sWSP, sST = 88, 90, 94
EPS = 1e-5
LOG2E = math.log2(math.e)
GA = 2 * math.sqrt(2 / math.pi) * LOG2E
GB = GA * 0.044715
ALPHA = GB ** (1 / 3)
GK = GA / ALPHA
WS = f's[{SWS}:{SWS+3}]'

a = Asm()
vL, vS, vOne, vT = 0, 1, 2, 3

class Stamps:
    def __init__(self): self.names = {'A': [], 'B': []}
    def put(self, role, name):
        if not cfg.stamps: return
        i = len(self.names[role]); self.names[role].append(name)
        if i > 0: a(f'v_writelane_b32 v{vOne}, s{sST + 2*((i-1) & 1)}, {i + 1}')
        r = sST + 2 * (i & 1)
        a(f's_memtime s[{r}:{r+1}]')
    def flush(self, role):
        if not cfg.stamps: return
        a('s_waitcnt lgkmcnt(0)')
        i = len(self.names[role])
        a(f'v_writelane_b32 v{vOne}, s{sST + 2*((i-1) & 1)}, {i + 1}')
        a(f'v_writelane_b32 v{vOne}, s98, 1')
        a(f'v_writelane_b32 v{vOne}, s100, 63')
        a('v_lshlrev_b32 v5, 2, v0')
        a(f's_lshl_b32 s{sT}, s2, 11'); a(f's_lshl_b32 s{sT+1}, s{sW}, 8'); a(f's_add_u32 s{sT}, s{sT}, s{sT+1}')
        a(f's_add_u32 s{sT}, s{sT}, {WS_STAMP + (1024 if role == "B" else 0)}')
        a(f'buffer_store_dword v{vOne}, v5, {WS}, s{sT} offen sc1')
st = Stamps()

def S(dst, terms, const=0):
    first = True
    for r, m in terms:
        t = dst if first else sT + 9
        if m == 1: src = f's{r}'
        else:
            if m & (m - 1) == 0: a(f's_lshl_b32 s{t}, s{r}, {m.bit_length()-1}')
            else: a(f's_mul_i32 s{t}, s{r}, {m}')
            src = f's{t}'
        if first:
            if m == 1:
                if const: a(f's_add_u32 s{dst}, {src}, {const & 0xffffffff}'); const = 0
                elif r != dst: a(f's_mov_b32 s{dst}, {src}')
            first = False
        else: a(f's_add_u32 s{dst}, s{dst}, {src}')
    if const: a(f's_add_u32 s{dst}, s{dst}, {const & 0xffffffff}')

def srd(d, b, n):
    a(f's_mov_b32 s{d}, s{b}'); a(f's_mov_b32 s{d+1}, s{b+1}'); a(f's_mov_b32 s{d+2}, {n}'); a(f's_mov_b32 s{d+3}, 0x20000')

def signal(cn):
    a('s_mov_b64 exec, 1'); a.lg(f'ds_add_u32 v{vS}, v{vOne} offset:{CN[cn]}'); a('s_mov_b64 exec, -1')

def spin(cn, target, sleep=0, base=None):
    L = a.label('SP'); E = a.label('SPE')
    a(f's_mov_b32 s{sT+9}, {cfg.lbound}')
    a(f'{L}:')
    a(f'ds_read_b32 v{vT}, v{vS if base is None else base} offset:{CN[cn]}')
    a('s_waitcnt lgkmcnt(0)')
    a(f'v_readfirstlane_b32 s{sT+8}, v{vT}')
    a(f's_cmp_ge_u32 s{sT+8}, {target}')
    a(f's_cbranch_scc1 {E}')
    if sleep: a(f's_sleep {sleep}')
    a(f's_sub_u32 s{sT+9}, s{sT+9}, 1')
    a(f's_cbranch_scc0 {L}')
    a(f'{E}:')
    a.lgq = []

def chk_issue(cn, v):
    a.lg(f'ds_read_b32 v{v}, v{vS} offset:{CN[cn]}', ('chk', cn))
def chk_wait(cn, v, target):
    LOK = a.label('OK')
    a.wlg(('chk', cn))
    a(f'v_readfirstlane_b32 s{sT+8}, v{v}'); a(f's_cmp_ge_u32 s{sT+8}, {target}'); a(f's_cbranch_scc1 {LOK}')
    saved = list(a.lgq)
    spin(cn, target)
    a.lgq = saved
    a(f'{LOK}:')

def publish_col(cn, off, tag=None, last=3):
    E = a.label('PB')
    if tag is None: a.vm0()
    else: a.wvm(tag)
    a('s_mov_b64 exec, 1')
    a(f'ds_add_rtn_u32 v{vT}, v{vS}, v{vOne} offset:{CN[cn]}')
    a.lg0()
    a(f'v_readfirstlane_b32 s{sT+8}, v{vT}')
    a(f's_cmp_eq_u32 s{sT+8}, {last}')
    a(f's_cbranch_scc0 {E}')
    a(f'v_mov_b32 v{vT}, s{sEP}')
    a(f'buffer_store_dword v{vT}, off, {WS}, s{sCFO} offset:{off} sc1')
    a(f'{E}:')
    a('s_mov_b64 exec, -1')

def flag(sown, off, tag, release, touch=None):
    LS, LE = a.label('FS'), a.label('FE')
    a.wvm(tag)
    a(f'v_mov_b32 v{vT}, s{sEP}')
    a('s_mov_b64 exec, 1')
    a(f's_cmp_lg_u32 s{sMODE}, 1'); a(f's_cbranch_scc1 {LS}')
    a(f'buffer_store_dword v{vT}, off, {WS}, s{sown} offset:{off}')
    a(f's_branch {LE}')
    a(f'{LS}:')
    if release: a('buffer_wbl2 sc1'); a('s_waitcnt vmcnt(0)')
    a(f'buffer_store_dword v{vT}, off, {WS}, s{sown} offset:{off} sc1')
    a(f'{LE}:')
    a.vmq.append('flag')
    if touch and cfg.touch:
        mask, ins = touch
        a(f's_mov_b32 exec_lo, {mask if isinstance(mask, str) else hex(mask)}')
        a.vm(ins, 'touch')
    a('s_mov_b64 exec, -1')

def pollc(sbase, off, nl, vl4, v, sleep=None):
    L = a.label('PL'); E = a.label('PLE'); LF = a.label('PLF')
    sleep = cfg.psleep if sleep is None else sleep
    a(f's_mov_b32 s{sT+9}, {cfg.gbound}')
    a(f's_mov_b64 exec, {hex((1 << nl) - 1)}') if nl < 32 else a('s_mov_b32 exec_hi, 0')
    a(f'{L}:')
    a(f'buffer_load_dword v{v}, v{vl4}, {WS}, s{sbase} offen offset:{off} sc1')
    a('s_waitcnt vmcnt(0)')
    a(f'v_cmp_ne_u32 vcc, s{sEP}, v{v}')
    a(f's_cbranch_vccz {E}')
    if sleep: a(f's_sleep {sleep}')
    a(f's_sub_u32 s{sT+9}, s{sT+9}, 1')
    a(f's_cbranch_scc0 {L}')
    a(f'{E}:')
    a('s_mov_b64 exec, -1')
    a(f's_cmp_eq_u32 s{sMODE}, 1'); a(f's_cbranch_scc1 {LF}')
    a('buffer_inv sc1'); a('s_waitcnt vmcnt(0)')
    a(f'{LF}:')
    a.vmq = []

def poll32(off, cn, v, va):
    L = a.label('PC'); E = a.label('PCE'); LS = a.label('PCS')
    a(f's_cmp_lg_u32 s{sW}, 0'); a(f's_cbranch_scc1 {LS}')
    S(sT + 8, [(sJ, 2048)], WS_CFLAG + off)
    a(f's_mov_b32 s{sT+9}, {cfg.gbound}')
    if cfg.cpoll == 'vec':
        a(f'v_lshrrev_b32 v{va}, 3, v{vL}'); a(f'v_lshlrev_b32 v{va}, 7, v{va}')
        a(f'v_and_b32 v{v}, 7, v{vL}'); a(f'v_lshl_add_u32 v{va}, v{v}, 2, v{va}')
        a('s_mov_b32 exec_hi, 0')
        a(f'{L}:')
        a(f'buffer_load_dword v{v}, v{va}, {WS}, s{sT+8} offen sc1')
        a('s_waitcnt vmcnt(0)')
        a(f'v_cmp_ne_u32 vcc, s{sEP}, v{v}')
        a(f's_cbranch_vccz {E}')
    else:
        a(f's_add_u32 s92, s{sWSP}, s{sT+8}'); a(f's_addc_u32 s93, s{sWSP+1}, 0')
        a(f'{L}:')
        for k in range(4): a(f's_load_dwordx8 s[{36+8*k}:{43+8*k}], s[92:93], {128*k} glc')
        a('s_waitcnt lgkmcnt(0)')
        for k in range(16): a(f's_xor_b64 s[{36+2*k}:{37+2*k}], s[{36+2*k}:{37+2*k}], s[{sEP}:{sEP+1}]')
        for k in range(1, 16): a(f's_or_b64 s[36:37], s[36:37], s[{36+2*k}:{37+2*k}]')
        a(f's_cbranch_scc0 {E}')
    a(f's_sleep {cfg.csleep}')
    a(f's_sub_u32 s{sT+9}, s{sT+9}, 1')
    a(f's_cbranch_scc0 {L}')
    a(f'{E}:')
    signal(cn)
    a(f'{LS}:')
    spin(cn, 1, sleep=1)

def cp_addr(va, v):
    a(f'v_lshrrev_b32 v{va}, 3, v{vL}'); a(f'v_lshlrev_b32 v{va}, 7, v{va}')
    a(f'v_and_b32 v{v}, 7, v{vL}'); a(f'v_lshl_add_u32 v{va}, v{v}, 2, v{va}')
    S(sT + 8, [(sJ, 2048)], WS_CFLAG); a(f'v_add_u32 v{va}, s{sT+8}, v{va}')
def cp_issue(off, v, va, tag):
    a('s_mov_b32 exec_hi, 0'); a.vm(f'buffer_load_dword v{v}, v{va}, {WS}, 0 offen offset:{off} sc1', tag); a('s_mov_b32 exec_hi, -1')
def cp_check(off, v, va, tag):
    L = a.label('CP'); E = a.label('CPE')
    a.wvm(tag)
    a(f's_mov_b32 s{sT+9}, {cfg.gbound}')
    a('s_mov_b32 exec_hi, 0')
    a(f'{L}:')
    a(f'v_cmp_ne_u32 vcc, s{sEP}, v{v}')
    a(f's_cbranch_vccz {E}')
    a(f's_sleep {cfg.csleep}')
    a(f'buffer_load_dword v{v}, v{va}, {WS}, 0 offen offset:{off} sc1')
    a('s_waitcnt vmcnt(0)')
    a(f's_sub_u32 s{sT+9}, s{sT+9}, 1')
    a(f's_cbranch_scc0 {L}')
    a(f'{E}:')
    a('s_mov_b32 exec_hi, -1')

def gelu_ops(p, t, dst, pk):
    o = []
    if pk:
        o.append(f'v_pk_fma_f32 v[{t}:{t+1}], v[{p}:{p+1}], v[{p}:{p+1}], s[{sK}:{sK+1}]')
        o.append(f'v_pk_mul_f32 v[{t}:{t+1}], v[{t}:{t+1}], v[{p}:{p+1}]')
    else:
        for i in range(2): o.append(f'v_fma_f32 v{t+i}, -v{p+i}, v{p+i}, -s{sK}')
        for i in range(2): o.append(f'v_mul_f32 v{t+i}, v{t+i}, v{p+i}')
    for i in range(2): o.append(f'v_exp_f32 v{t+i}, {"-" if pk else ""}v{t+i}')
    if pk: o.append(f'v_pk_fma_f32 v[{t}:{t+1}], v[{t}:{t+1}], s[{sK+2}:{sK+3}], s[{sK+2}:{sK+3}]')
    else:
        for i in range(2): o.append(f'v_fma_f32 v{t+i}, v{t+i}, s{sK+2}, s{sK+2}')
    for i in range(2): o.append(f'v_rcp_f32 v{t+i}, v{t+i}')
    if pk: o.append(f'v_pk_mul_f32 v[{t}:{t+1}], v[{t}:{t+1}], v[{p}:{p+1}]')
    else:
        for i in range(2): o.append(f'v_mul_f32 v{t+i}, v{t+i}, v{p+i}')
    o.append(f'v_cvt_pk_bf16_f32 v{dst}, v{t}, v{t+1}')
    return o

def interleave(lists):
    out = []; n = max(len(l) for l in lists)
    for i in range(n):
        for l in lists:
            if i < len(l): out.append(l[i])
    return out

def padd(d, x, y, n, pk=True):
    if pk:
        for i in range(0, n, 2): a(f'v_pk_add_f32 v[{d+i}:{d+i+1}], v[{x+i}:{x+i+1}], v[{y+i}:{y+i+1}]')
    else:
        for i in range(n): a(f'v_add_f32 v{d+i}, v{x+i}, v{y+i}')

def unpack(dst, src, n):
    for d in range(n):
        a(f'v_lshlrev_b32 v{dst+2*d}, 16, v{src+d}'); a(f'v_and_b32 v{dst+2*d+1}, 0xffff0000, v{src+d}')

def finstat(m):
    a(f'v_mul_f32 v{m}, {hx(1/512)}, v{m}'); a(f'v_mul_f32 v{m+1}, {hx(1/512)}, v{m+1}')
    a(f'v_fma_f32 v{m+1}, -v{m}, v{m}, v{m+1}'); a(f'v_max_f32 v{m+1}, 0, v{m+1}'); a(f'v_add_f32 v{m+1}, {hx(EPS)}, v{m+1}')
    a(f'v_rsq_f32 v{m+1}, v{m+1}')

def M32(d, x, y, c): a(f'v_mfma_f32_32x32x16_bf16 {vr(d, 16)}, {vr(x, 4)}, {vr(y, 4)}, {"0" if c is None else vr(c, 16)}')
def M16(d, x, y, c): a(f'v_mfma_f32_16x16x32_bf16 {vr(d, 4)}, {vr(x, 4)}, {vr(y, 4)}, {"0" if c is None else vr(c, 4)}')

def HXF(): return 'sc1' if cfg.hx == 'sc1' else ''

def consts():
    a(f's_mov_b32 s{sK}, {hx(GK)}'); a(f's_mov_b32 s{sK+1}, {hx(GK)}')
    a(f's_mov_b32 s{sK+2}, {hx(ALPHA)}'); a(f's_mov_b32 s{sK+3}, {hx(ALPHA)}')
    a(f's_mov_b32 s{sK+4}, 0x3f803f80')
    S(sFL, [(sC, 1024)], WS_FLAG)
    a(f's_lshr_b32 s{sT}, s{sC}, 3'); a(f's_and_b32 s{sT+1}, s{sC}, 7')
    S(sCFO, [(sJ, 2048), (sT, 128), (sT + 1, 4)], WS_CFLAG)

sD = sT + 4
def prologue():
    if cfg.stamps:
        a('s_memtime s[98:99]'); a('s_memrealtime s[100:101]')
    a('s_load_dwordx16 s[36:51], s[0:1], 0')
    a('s_load_dwordx8 s[56:63], s[0:1], 80')
    a(f's_load_dwordx2 s[{sWSP}:{sWSP+1}], s[0:1], 128')
    a('s_load_dwordx2 s[52:53], s[0:1], 64')
    a('s_load_dwordx2 s[64:65], s[0:1], 112')
    a('s_cmp_ge_u32 s2, 256'); a('s_cbranch_scc1 L_exit')
    a('v_lshrrev_b32 v3, 6, v0')
    a('v_and_b32 v0, 63, v0')
    a(f'v_readfirstlane_b32 s{sW}, v3')
    a(f's_lshr_b32 s{sJ}, s2, 3'); a(f's_and_b32 s{sJ}, s{sJ}, 7')
    a('v_lshlrev_b32 v5, 7, v0')
    a(f's_cmp_lg_u32 s{sW}, 0'); a('s_cbranch_scc1 L_nocode')
    a(f's_getpc_b64 s[{sT+2}:{sT+3}]')
    a('L_pc:')
    a(f's_and_b32 s{sT}, s{sJ}, 3'); a(f's_lshl_b32 s{sT}, s{sT}, 13'); a(f'v_add_u32 v6, s{sT}, v5')
    a(f'v_min_u32 v6, L_codeend-L_pc-4, v6')
    a(f'global_load_dword v47, v6, s[{sT+2}:{sT+3}]')
    a('L_nocode:')
    a(f's_and_b32 s{sC}, s2, 7'); a(f's_lshl_b32 s{sC}, s{sC}, 2'); a(f's_lshr_b32 s{sT}, s2, 6'); a(f's_add_u32 s{sC}, s{sC}, s{sT}')
    a(f's_lshl_b32 s{sIDX}, s{sC}, 3')
    a(f's_lshr_b32 s{sT}, s{sJ}, 2'); a(f's_add_u32 s{sDEL}, s{sT}, 1')
    a(f's_sub_u32 s{sT}, 0, s{sDEL}')
    a(f's_bitcmp1_b32 s{sJ}, 1'); a(f's_cselect_b32 s{sDEL}, s{sDEL}, s{sT}')
    a(f'v_mov_b32 v{vS}, {S0}'); a(f'v_mov_b32 v{vOne}, 1')
    a(f's_cmp_lt_u32 s{sW}, 4'); a('s_cbranch_scc1 L_A')
    a('s_setprio 3')
    a(f's_sub_u32 s{sW}, s{sW}, 4')
    a(f's_lshr_b32 s{sT}, s{sW}, 1'); S(sD, [(sJ, 64), (sC, 2), (sT, 1)])
    a(f's_and_b32 s{sT+1}, s{sW}, 1'); S(sT, [(sD, 256), (sT + 1, 128)])
    a(f'v_lshl_add_u32 v8, v0, 1, s{sT}')
    a(f's_lshl_b32 s{sT}, s{sD}, 1'); a(f'v_mov_b32 v9, s{sT}')
    S(sT, [(sIDX, 4), (sJ, 4), (sW, 1)])
    a(f's_lshl_b32 s{sT+1}, s{sT}, 11'); a(f'v_add_u32 v6, s{sT+1}, v5')
    a(f's_lshl_b32 s{sT+1}, s{sT}, 9'); a(f'v_add_u32 v7, s{sT+1}, v5')
    a(f'v_lshlrev_b32 v10, 2, v0'); a('v_mov_b32 v11, 0')
    a(f'ds_write_b32 v10, v11 offset:{S_CNT}')
    S(sT + 6, [(sW, 4352)], S0 + S_KF); a(f's_mov_b32 m0, s{sT+6}')
    a(f's_mov_b32 s{SW3+3}, 0x20000'); a(f's_mov_b32 s{SW3+2}, 1409024')
    a(f's_cmp_ge_u32 s{sW}, 2'); a('s_cbranch_scc1 L_f2a')
    for m in range(3):
        a(f'v_add_u32 v18, {64*m}, v0'); a('v_mul_u32_u24 v19, 10923, v18'); a('v_lshrrev_b32 v19, 16, v19')
        a('v_mul_u32_u24 v19, 2656, v19'); a(f'v_lshl_add_u32 v{28+m}, v18, 4, v19')
    a(f's_lshr_b32 s{sT}, s{sC}, 1'); a(f's_and_b32 s{sT+1}, s{sC}, 1')
    S(sT + 7, [(sT, 32*2752), (sJ, 352), (sT + 1, 192), (sW, 96)])
    a(f's_cmp_ge_u32 s{sJ}, 6'); a(f's_cselect_b32 s{sT}, 32, 0'); a(f's_sub_u32 s{sT+7}, s{sT+7}, s{sT}')
    a('s_branch L_f2b')
    a('L_f2a:')
    S(sT + 7, [(sC, 1024)], WS_FLAG); a(f'v_add_u32 v28, s{sT+7}, v5')
    S(sT, [(sIDX, 2048), (sJ, 2048)]); a(f'v_add_u32 v29, s{sT}, v5'); a('v_mov_b32 v30, v5')
    a('L_f2b:')
    a('s_waitcnt lgkmcnt(0)')
    nt = cfg.touch_nt
    a('s_mov_b64 exec, 0xffff')
    a(f'global_load_dword v56, v6, s[36:37] {nt}')
    a('s_mov_b64 exec, 0xf')
    a('global_load_dword v57, v7, s[56:57]')
    a('s_mov_b64 exec, -1')
    for i in range(6): a(f'global_load_ushort v{20+i}, v8, s[{38+2*i}:{39+2*i}] {nt}')
    a('global_load_ushort v26, v9, s[50:51]')
    a('global_load_ushort v27, v9, s[52:53]')
    a(f's_mov_b32 s{SW3}, s60'); a(f's_mov_b32 s{SW3+1}, s61')
    a(f's_cmp_ge_u32 s{sW}, 2'); a('s_cbranch_scc1 L_f2c')
    for m in range(3):
        if m: a('s_addk_i32 m0, 1024')
        a(f'buffer_load_dwordx4 v{28+m}, s[{SW3}:{SW3+3}], s{sT+7} offen {nt} lds')
    a('s_branch L_f2d')
    a('L_f2c:')
    a(f's_cmp_eq_u32 s{sW}, 2'); a('s_cselect_b32 exec_lo, 0x1f, 0'); a('s_mov_b32 exec_hi, 0')
    a('s_cbranch_execz L_f2e')
    a(f'global_load_dword v55, v28, s[{sWSP}:{sWSP+1}] sc1')
    a('s_branch L_f2f')
    a('L_f2e:')
    a('s_mov_b32 exec_lo, 0xffff')
    a('global_load_dword v55, v29, s[58:59]')
    a('L_f2f:')
    a('s_mov_b64 exec, -1')
    a('L_f2d:')
    a(f's_setprio {cfg.bprio}')
    a('s_branch L_B')
    a('L_exit:')
    a('s_endpgm')
    a('L_A:')

def role_A():
    vW, vTA, vTB, vL16, vL4, vH, vCK = 4, 5, 6, 9, 10, 15, 7
    XF, RG, ACC, CSA = 128, 64, 96, 112
    s16W, sOWN, sPB, sJP, sFO, sFP = sT + 5, sT + 2, sT + 4, sT + 6, sT + 3, sT + 7
    sOA, sOB, sNH, sTH = 54, 55, 56, 57
    sEND, sROT, sB2 = 27, sK + 5, sK + 6
    a('v_lshrrev_b32 v16, 4, v0'); a('v_and_b32 v17, 15, v0')
    a('v_xor_b32 v17, v17, v16'); a('v_lshlrev_b32 v17, 4, v17')
    S(sT, [(sC, 65536), (sDEL, 1024), (sW, 256)])
    a(f'v_lshl_add_u32 v18, v16, 10, s{sT}')
    for m in range(4):
        if m == 0: a('v_add_u32 v20, v18, v17')
        else:
            a(f'v_xor_b32 v19, {64*m}, v17'); a(f'v_add_u32 v19, {4096*m}, v19'); a(f'v_add_u32 v{20+m}, v18, v19')
    a('v_add_u32 v24, 0x4000, v20')
    a(f's_mov_b32 s{sT+2}, 0x4000'); a(f's_mov_b32 s{sT+3}, 0x8000'); a(f's_mov_b32 s{sT+4}, 0xc000')
    a(f's_lshl_b32 s{s16W}, s{sW}, 14')
    a(f's_add_u32 m0, s{s16W}, {X0 - 1024}')
    a('s_waitcnt lgkmcnt(0)')
    srd(SX, 36, 2097152)
    def dmaX(i):
        m, blk = i & 3, i >> 2
        v = 24 if (m == 0 and blk > 0) else 20 + m
        b = blk - 1 if (m == 0 and blk > 0) else blk
        so = '0' if b == 0 else f's{sT+1+b}'
        a('s_addk_i32 m0, 1024')
        a.vm(f'buffer_load_dwordx4 v{v}, s[{SX}:{SX+3}], {so} offen lds', ('x', i))
    for i in range(cfg.laa): dmaX(i)
    a(f's_load_dword s{sEP}, s[{sWSP}:{sWSP+1}], 0')
    st.put('A', 'x_issued')
    srd(SW1, 56, 524288); srd(SW2, 58, 524288); srd(SWS, sWSP, 268435456)
    consts()
    a(f's_and_b32 s{sNH}, s{sW}, 1'); a(f's_lshr_b32 s{sTH}, s{sW}, 1'); a(f's_and_b32 s{sJP}, s{sJ}, 1')
    a(f'v_lshlrev_b32 v{vL16}, 4, v0'); a(f'v_lshlrev_b32 v{vL4}, 2, v0'); a(f'v_lshrrev_b32 v{vH}, 5, v0')
    a('v_and_b32 v17, 1, v16'); a('v_lshlrev_b32 v17, 2, v17'); a('v_and_b32 v18, 7, v0'); a('v_xor_b32 v17, v17, v18')
    a('v_lshrrev_b32 v18, 3, v0'); a('v_lshlrev_b32 v18, 10, v18'); a(f'v_lshl_add_u32 v{vW}, v17, 4, v18')
    a('v_bfe_u32 v25, v0, 2, 2'); a('v_and_b32 v26, 3, v0'); a('v_lshlrev_b32 v26, 3, v26')
    a('v_and_b32 v19, 1, v16'); a('v_lshl_add_u32 v27, v19, 5, v26')
    a('v_lshrrev_b32 v19, 1, v25'); a(f'v_xor_b32 v19, s{sNH}, v19'); a('v_lshl_add_u32 v18, v19, 6, v27')
    a('v_lshl_add_u32 v18, v25, 7, v18')
    a(f'v_lshl_add_u32 v19, v{vH}, 10, v18'); S(sT, [(sW, 2048)], W0); a(f'v_add_u32 v40, s{sT}, v19')
    for q in range(1, 4): a(f'v_xor_b32 v{40+q}, {2048*q}, v40')
    a(f'v_lshl_add_u32 v19, v{vH}, 9, v18'); S(sT, [(sJP, 8192)], X0); a(f'v_add_u32 v{vTA}, s{sT}, v19'); a(f'v_xor_b32 v{vTB}, 0x2000, v{vTA}')
    a('v_and_b32 v17, 31, v0'); a('v_and_b32 v18, 15, v0'); a(f'v_xor_b32 v18, v18, v{vH}'); a('v_lshlrev_b32 v18, 4, v18')
    a(f's_lshl_b32 s{sT}, s{sW}, 5'); a(f'v_xor_b32 v18, s{sT}, v18')
    a('v_lshl_add_u32 v18, v17, 8, v18'); S(sT, [(sTH, 8192)], X0); a(f'v_add_u32 v32, s{sT}, v18')
    for ks in range(1, 8): a(f'v_xor_b32 v{32+ks}, {ks << 5}, v32')
    a('v_mov_b32 v48, 0'); a('v_mov_b32 v49, 0')
    for i in range(60, 64): a(f'v_mov_b32 v{i}, s{sK+4}')
    a(f's_lshl_b32 s{sT}, s{sTH}, 2'); a(f'v_mov_b32 v44, s{sT}')
    a(f's_lshl_b32 s{sT}, s{sW}, 8'); a(f'v_add_u32 v45, s{sT}, v{vL4}')
    S(sT, [(sTH, 512)], S0 + S_STP); a(f'v_lshl_add_u32 v46, v17, 2, s{sT}')
    S(sT, [(sNH, 256)]); a(f'v_lshl_add_u32 v50, v{vH}, 4, s{sT}')
    S(sOA, [(sW, 32768), (sJ, 128)])
    a('s_barrier')
    for i in range(cfg.laa, 16): dmaX(i)
    def mkW(srdn, base, tag, i):
        def f():
            if i % 4 == 0:
                a(f's_lshl_b32 s{sOB}, s{sW}, 12'); a(f's_add_u32 m0, s{sOB}, {base + 16384*(i >> 2)}'); a(f's_add_u32 s{sOB}, s{sOA}, {131072*(i >> 2)}')
            else: a('s_addk_i32 m0, 1024'); a(f's_addk_i32 s{sOB}, 8192')
            a.vm(f'buffer_load_dwordx4 v{vW}, s[{srdn}:{srdn+3}], s{sOB} offen lds', (tag, i >> 2))
        return f
    Q = [mkW(SW1, W0, 'w1', i) for i in range(16)] + [mkW(SW2, X0, 'w2', i) for i in range(16)]
    def pump(n=1):
        for _ in range(n):
            if Q: Q.pop(0)()
    a('s_waitcnt lgkmcnt(0)')
    a(f's_add_u32 s{sEP}, s{sEP}, 1'); a(f's_mov_b32 s{sEP+1}, s{sEP}')
    a('s_setprio 2')
    a.wvm(('x', 7)); signal('XA0')
    st.put('A', 'x0')
    pump(cfg.pumpa)
    a.wvm(('x', 15)); signal('XA1')
    st.put('A', 'x1')
    spin('XA0', 4, base=44)
    order = [n for n in range(32) if n % 2 == 0] + [n for n in range(32) if n % 2]
    def rdx(n): a.lg(f'ds_read_b128 {vr(XF + 4*n, 4)}, v{32 + (n & 7)} offset:{16384*(n >> 3)}', ('xf', n))
    for n in order[:12]: rdx(n)
    for k in range(16):
        n = order[k]
        a.wlg(('xf', n))
        for d in range(4):
            a(f'v_dot2c_f32_bf16 v48, s{sK+4}, v{XF + 4*n + d}'); a(f'v_dot2c_f32_bf16 v49, v{XF + 4*n + d}, v{XF + 4*n + d}')
        rdx(order[12 + k])
        if k < 4: rdx(order[28 + k])
        if k % 2 and len(Q) > 16: pump()
    a('v_permlane32_swap_b32 v48, v49'); a('v_add_f32 v48, v48, v49')
    a.lg(f'ds_write_b32 v45, v48 offset:{S0 + S_STP}')
    signal('S'); signal('SA')
    st.put('A', 'S')
    while len(Q) > 16: pump()
    a.wvm(('w1', cfg.g1sync[0])); signal('WC0')
    spin('SA', 4)
    a.lg('ds_read2_b32 v[28:29], v46 offset0:0 offset1:32', 'sp'); a.lg('ds_read2_b32 v[30:31], v46 offset0:64 offset1:96', 'sp')
    mark = len(a.L)
    padd(52, 28, 30, 2, False)
    finstat(52)
    a('v_mul_f32 v18, v53, v53'); a(f'v_mov_b32 v19, {hx(1 + EPS)}'); a(f'v_fmac_f32 v19, {hx(-EPS)}, v18')
    a('v_rsq_f32 v19, v19')
    a(f'v_mul_f32 v53, s{sK+2}, v53'); a('v_mul_f32 v53, v53, v19')
    side = a.L[mark:]; del a.L[mark:]
    S(sOWN, [(sIDX, 8192), (sJ, 8192)])
    S(sFO, [(sJ, 16), (sW, 4), (sFL, 1)]); S(sFP, [(sW, 32), (sFL, 1)]); S(sPB, [(sW, 2), (sIDX, 1)])
    spin('WC0', 4)
    st.put('A', 'g1_go')
    seq = list(range(24)) + [24, 25, 28, 29, 26, 27, 30, 31]
    def rdw(pos):
        n = seq[pos]
        for p in range(2):
            a.lg(f'ds_read_b64_tr_b16 {vr(RG + 4*(pos % 8) + 2*p, 2)}, v{40 + (n & 3)} offset:{2048*(n & ~3) + 512*p}', ('wf', pos))
    LA = cfg.la1
    for pos in range(LA): rdw(pos)
    CSR = 16
    for pos in range(32):
        n = seq[pos]; c = pos >> 3
        if c in cfg.g1sync[:-1]:
            nx = cfg.g1sync[cfg.g1sync.index(c) + 1]
            if pos % 8 == 0: a.wvm(('w1', nx)); signal(f'WC{nx}')
            if pos % 8 == 1: chk_issue(f'WC{nx}', vCK)
            if pos % 8 == 8 - LA: chk_wait(f'WC{nx}', vCK, 4)
        if pos == 16:
            a('s_mov_b64 exec, 0xff'); a.vm(f'buffer_load_dword v54, v{vL4}, {WS}, s{sFL} offen offset:768 sc1', 'md'); a('s_mov_b64 exec, -1')
        if pos + LA < 32: rdw(pos + LA)
        a.wlg(('wf', pos))
        if not (n & 2): M32(CSA, 60, RG + 4*(pos % 8), None if n == 0 else CSA)
        M32(ACC, RG + 4*(pos % 8), XF + 4*n, None if pos == 0 else ACC)
        for _ in range(2):
            if side: a(side.pop(0))
        if pos >= cfg.pumpb and pos % 2: pump()
        if pos == 29:
            a.lg(f'ds_write_b32 v45, v{CSA} offset:{S0 + S_CS1}')
            signal('G1')
    assert not side
    st.put('A', 'g1_mfma')
    S(52, [(sW, 2048), (sOWN, 1)], WS_H)
    a('v_lshlrev_b32 v8, 7, v0')
    spin('G1', 4)
    for s_ in range(2):
        for q in range(4): a.lg(f'ds_read_b128 {vr(CSR + 16*s_ + 4*q, 4)}, v50 offset:{S0 + S_CS1 + 512*s_ + 32*q}', ('cs', q))
    while Q: pump()
    a.lg0()
    padd(CSR, CSR, CSR + 16, 16)
    for hf in range(2):
        chains = []
        for i in range(0, 8, 2):
            o = ACC + 8*hf + i; c = CSR + 8*hf + i
            ch = [f'v_pk_fma_f32 v[{o}:{o+1}], v[{c}:{c+1}], v[52:53], v[{o}:{o+1}] op_sel_hi:[1,0,1] neg_lo:[0,1,0] neg_hi:[0,1,0]',
                  f'v_pk_mul_f32 v[{o}:{o+1}], v[{o}:{o+1}], v[52:53] op_sel:[0,1] op_sel_hi:[1,1]']
            ch += gelu_ops(o, RG + i, 56 + 4*hf + i // 2, True)
            chains.append(ch)
        for x in interleave(chains): a(x)
        a.vm(f'buffer_store_dwordx4 {vr(56 + 4*hf, 4)}, v{vL16}, {WS}, s52 offen offset:{1024*hf} sc1', 'hst')
    st.put('A', 'h_stored')
    LMP, LME = a.label('MD'), a.label('MD')
    a(f's_getreg_b32 s{sT}, hwreg(HW_REG_XCC_ID, 0, 4)')
    if cfg.force_slow: a(f's_mov_b32 s{sT}, s{sJ}')
    a(f's_lshl_b32 s{sT}, s{sT}, 28'); a(f's_add_u32 s{sT}, s{sT}, s{sEP}')
    a.wvm('md')
    a(f's_mov_b32 s{sT+9}, {cfg.gbound}')
    a('s_mov_b64 exec, 0xff')
    a(f'{LMP}:')
    a(f'v_subrev_u32 v18, s{sEP}, v54'); a('v_and_b32 v18, 0x0fffffff, v18')
    a('v_cmp_ne_u32 vcc, 0, v18')
    a(f's_cbranch_vccz {LME}')
    a(f's_sleep {cfg.csleep}')
    a(f'buffer_load_dword v54, v{vL4}, {WS}, s{sFL} offen offset:768 sc1')
    a('s_waitcnt vmcnt(0)')
    a(f's_sub_u32 s{sT+9}, s{sT+9}, 1'); a(f's_cbranch_scc0 {LMP}')
    a(f'{LME}:')
    a(f'v_cmp_ne_u32 vcc, s{sT}, v54')
    a('s_cmp_eq_u64 vcc, 0'); a(f's_cselect_b32 s{sMODE}, 1, 2')
    a(f'v_mov_b32 v17, s{sMODE}')
    a('s_mov_b64 exec, 1'); a.lg(f'ds_write_b32 v{vS}, v17 offset:{CN["MODE"]}'); a('s_mov_b64 exec, -1')
    a.wvm(('w2', 3)); signal('W2L')
    a('v_and_b32 v16, 31, v0'); a(f's_lshl_b32 s{sT}, s{sTH}, 5'); a(f'v_add_u32 v20, s{sT}, v16')
    a(f's_lshl_b32 s{sT}, s{sNH}, 6'); a(f'v_lshl_add_u32 v18, v{vH}, 3, s{sT}'); a('v_lshl_add_u32 v22, v20, 7, v18'); a('v_lshlrev_b32 v23, 3, v20')
    spin('W2L', 4)
    def rdw2(n):
        for p in range(2):
            a.lg(f'ds_read_b64_tr_b16 {vr(XF + 4*n + 2*p, 2)}, v{vTB if n & 4 else vTA} offset:{2048*(n & ~4) + 1024*p}', 'w2f')
    for n in range(cfg.w2pre): rdw2(n)
    flag(sFO, 0, 'hst', False, (0xffff, f'buffer_load_dword v55, v8, {WS}, s52 offen sc1'))
    st.put('A', 'h_flag')
    a('s_setprio 1')
    for n in range(cfg.w2pre, 32): rdw2(n)
    signal('W')
    spin('STAT', 4)
    for q in range(4): a.lg(f'ds_read_b64 v[{24+2*q}:{25+2*q}], v22 offset:{S0 + S_XT + 16*q}', 'xt')
    a.lg(f'ds_read_b64 v[50:51], v23 offset:{S0 + S_ST + 16}', 'xt')
    S(sT, [(sTH, 4096)], W0); a(f'v_add_u32 v32, s{sT}, v{vL16}')
    a('v_bfe_u32 v16, v0, 4, 1'); a('v_and_b32 v18, 15, v0'); a('v_lshlrev_b32 v17, 4, v18')
    a('v_lshl_add_u32 v17, v16, 11, v17'); a(f'v_lshl_add_u32 v33, v{vH}, 8, v17')
    a('v_bfe_u32 v17, v0, 4, 1'); a('v_lshlrev_b32 v16, 2, v18'); a('v_lshl_add_u32 v35, v17, 8, v16'); a(f'v_lshl_add_u32 v35, v{vH}, 7, v35')
    a('v_lshlrev_b32 v16, 3, v18')
    a(f's_lshl_b32 s{sT}, s{sW}, 7'); a(f'v_add_u32 v36, s{sT}, v16')
    cp_addr(37, 16)
    S(sT, [(sPB, 8192), (sJP, 8192)], WS_H)
    a('v_lshrrev_b32 v16, 3, v0'); a('v_lshl_add_u32 v12, v16, 10, v8')
    st.put('A', 'rdy')
    pollc(sFP, 0, 8, vL4, 44)
    st.put('A', 'h_seen')
    a('s_setprio 2')
    for pp in range(2):
        if pp: a(f's_xor_b32 s{sT}, s{sT}, 8192')
        a(f's_add_u32 s{sT+1}, s{sT}, 4096')
        for rh in range(2):
            for th in range(2):
                a(f's_add_u32 m0, s{s16W}, {W0 + 8192*pp + 4096*th}')
                for r in range(2*rh, 2*rh + 2):
                    a.vm(f'buffer_load_dwordx4 v{vL16}, {WS}, s{sT+th} offen offset:{1024*r} sc1 lds', ('h', 2*pp + rh))
    sX1, sXS = 52, 53
    S(sX1, [(sTH, 4096), (sNH, 1024), (sOWN, 1)], WS_X1)
    a(f's_lshr_b32 s{sXS}, s{sOWN}, 3'); S(sXS, [(sXS, 1), (sW, 256)], WS_XS)
    seq2 = [8*w2 + 4*(c >> 1) + 2*(c & 1) + r for c in range(4) for w2 in range(4) for r in range(2)]
    def rdh(pos):
        n = seq2[pos]
        a.lg(f'ds_read_b128 {vr(RG + 4*(pos % 8), 4)}, v32 offset:{8192*(n >> 2) + 1024*(n & 3)}', ('hf', pos))
    a.lg0()
    unpack(ACC, 24, 8)
    for i in range(16): a(f'v_sub_f32 v{ACC+i}, v{ACC+i}, v50')
    for i in range(16): a(f'v_mul_f32 v{ACC+i}, v{ACC+i}, v51')
    g2s = cfg.g2sync
    a.wvm(('h', g2s[0])); signal('HC0'); spin('HC0', 4)
    st.put('A', 'g2_go')
    LA2 = 5
    for pos in range(LA2): rdh(pos)
    for pos in range(32):
        c = pos >> 3
        if c in g2s[:-1]:
            nx = g2s[g2s.index(c) + 1]
            if pos % 8 == 0: a.wvm(('h', nx)); signal(f'HC{nx}')
            if pos % 8 == 1: chk_issue(f'HC{nx}', vCK)
            if pos % 8 == 8 - LA2: chk_wait(f'HC{nx}', vCK, 4)
        if pos + LA2 < 32: rdh(pos + LA2)
        a.wlg(('hf', pos))
        M32(ACC, XF + 4*seq2[pos], RG + 4*(pos % 8), ACC)
    st.put('A', 'g2_mfma')
    for hf in range(2):
        for i in range(4): a(f'v_cvt_pk_bf16_f32 v{56+4*hf+i}, v{ACC+8*hf+2*i}, v{ACC+8*hf+2*i+1}')
        a.vm(f'buffer_store_dwordx4 {vr(56 + 4*hf, 4)}, v33, {WS}, s{sX1} offen offset:{512*hf} sc1', 'x1st')
    for k in range(2):
        a(f'v_add_f32 v{40+2*k}, v{ACC+8*k}, v{ACC+8*k+1}'); a(f'v_mul_f32 v{41+2*k}, v{ACC+8*k}, v{ACC+8*k}')
    for i in range(1, 8):
        for k in range(2):
            if i > 1: a(f'v_add_f32 v{40+2*k}, v{40+2*k}, v{ACC+8*k+i}')
            a(f'v_fmac_f32 v{41+2*k}, v{ACC+8*k+i}, v{ACC+8*k+i}')
    a('v_add_f32 v40, v40, v42'); a('v_add_f32 v41, v41, v43')
    a('v_permlane32_swap_b32 v40, v41'); a('v_add_f32 v40, v40, v41')
    for q in range(1, 4): a(f'v_mov_b32_dpp v{40+q}, v40 quad_perm:[{q},{q},{q},{q}] row_mask:0xf bank_mask:0xf')
    a('s_mov_b32 exec_lo, 0x11111111'); a('s_mov_b32 exec_hi, 0x11111111')
    a.vm(f'buffer_store_dwordx4 v[40:43], v{vL4}, {WS}, s{sXS} offen sc1', 'x1st')
    a('s_mov_b64 exec, -1')
    st.put('A', 'x1_stored')
    cp_issue(1536, 38, 37, 'c4')
    W4F, ACC4, RING = 80, 48, 16
    sW4, sW4S = 54, 55
    if cfg.rot4 == 1: a(f's_mov_b32 s{sROT}, 0')
    elif cfg.rot4 == 2: a(f's_mul_i32 s{sROT}, s{sJP}, 11')
    else:
        a(f's_and_b32 s{sROT}, s{sJ}, 3'); a(f's_mul_i32 s{sROT}, s{sROT}, 11'); a(f's_add_u32 s{sROT}, s{sROT}, 1'); a(f's_lshr_b32 s{sROT}, s{sROT}, 1')
    S(sW4S, [(sW, 22*2048), (sJ, FMT)], WS_W4)
    a(f's_cmp_eq_u32 s{sW}, 3'); a(f's_cselect_b32 s{sT+1}, 2048, 0'); a(f's_sub_u32 s{sW4S}, s{sW4S}, s{sT+1}')
    a(f's_add_u32 s{sEND}, s{sW4S}, {22*2048}')
    S(sW4, [(sROT, 2048), (sW4S, 1)])
    a(f's_xor_b32 s{sT}, s{sW}, s{sJP}'); a(f's_lshr_b32 s{sT+1}, s{sT}, 1'); a(f's_and_b32 s{sT}, s{sT}, 1')
    S(sXS, [(sT, 64), (sT + 1, 512), (sIDX, 1024)], WS_XS)
    S(sT, [(sPB, 8192), (sJP, 2048)], WS_X1)
    a(f's_lshl_b32 s{sB2}, s{sW}, 12')
    flag(sFO, 128, 'x1st', False, (0xffff, f'buffer_load_dword v55, v12, {WS}, s{sX1} offen sc1'))
    st.put('A', 'x1_flag')
    pollc(sFL, 128, 32, vL4, 44)
    st.put('A', 'x1_seen')
    def x1dma(k):
        for p in range(2):
            a(f's_add_u32 m0, s{sB2}, {W0 + 16384*k + 2048*p}')
            if p == 0: a(f's_xor_b32 s{sT+1}, s{sT}, {2048*k}')
            else: a(f's_addk_i32 s{sT+1}, 8192')
            for kk in range(2):
                a.vm(f'buffer_load_dwordx4 v{vL16}, {WS}, s{sT+1} offen offset:{1024*kk} sc1 lds', ('x1', k))
    def w4issue(ks):
        for nt in range(2):
            a.vm(f'buffer_load_dwordx4 {vr(W4F + 8*ks + 4*nt, 4)}, v{vL16}, {WS}, s{sW4} offen offset:{1024*nt} sc1', ('w4', ks))
        a(f's_addk_i32 s{sW4}, 2048'); a(f's_cmp_eq_u32 s{sW4}, s{sEND}'); a(f's_cselect_b32 s{sW4}, s{sW4S}, s{sW4}')
    x1dma(0)
    for q in range(8):
        if q == 4: a(f's_addk_i32 s{sXS}, 4096')
        a.vm(f'buffer_load_dword v{40+q}, v35, {WS}, s{sXS} offen offset:{1024*(q & 3)} sc1', 'xs')
    x1dma(1)
    a.wvm(('x1', 0)); signal('X0')
    x1dma(2)
    a.wvm('xs')
    padd(40, 40, 44, 4, False); padd(40, 40, 42, 2, False)
    a('v_add_f32 v40, v40, v41')
    a('v_mov_b32 v41, v40')
    a('v_permlane16_swap_b32 v40, v41'); a('v_add_f32 v40, v40, v41')
    a('v_mov_b32 v41, v40')
    a('v_permlane32_swap_b32 v40, v41')
    finstat(40)
    a(f'v_mul_f32 v41, s{sK+2}, v41')
    a.lg(f'ds_write_b64 v36, v[40:41] offset:{S0 + S_ST3}')
    x1dma(3)
    a.wvm(('x1', 1)); signal('XB')
    a('s_setprio 0')
    cp_check(1536, 38, 37, 'c4')
    if cfg.w4wait:
        a.wvm(('x1', 3)); signal('XA'); spin('W3I', 4)
    st.put('A', 'w4_go')
    a('v_lshrrev_b32 v16, 3, v0'); a('v_and_b32 v17, 7, v0'); a(f'v_mul_u32_u24 v16, {SRS}, v16'); a('v_lshl_add_u32 v39, v17, 4, v16')
    for ks in range(22):
        if ks >= cfg.la4: a.wvm(('w4', ks - cfg.la4))
        if ks == 2 and not cfg.w4wait: a.wvm(('x1', 3)); signal('XA')
        w4issue(ks)
        if ks == cfg.s_ks: cp_issue(1024, 14, 37, 'cs')
    st.put('A', 'w4_issued')
    a('v_mov_b32 v12, v37'); a('v_mov_b32 v13, v39')
    vDW = 11
    S(sT, [(sC, H2C), (sW, 22*1024)], WS_H2)
    a(f's_lshl_b32 s{sROT}, s{sROT}, 10')
    S(sT + 1, [(sW, 8192)], X0); a(f'v_add_u32 v{vDW}, s{sT+1}, v{vL16}')
    for th in range(2):
        if th: a(f's_add_u32 s{sT}, s{sT}, {88*1024}')
        a(f's_add_u32 s{sEND}, s{sT}, {22*1024}'); a(f's_add_u32 s{sT+1}, s{sT}, s{sROT}')
        pollc(sFP, 384 + 128*th, 8, vL4, 4, sleep=(1 if th == 0 else None))
        st.put('A', f'h2{"ab"[th]}_seen')
        if th: a('s_setprio 2')
        def h2issue(ks):
            a.vm(f'buffer_load_dwordx4 {vr(RING + 4*(ks % 8), 4)}, v{vL16}, {WS}, s{sT+1} offen sc1', ('h2', ks))
            a(f's_addk_i32 s{sT+1}, 1024'); a(f's_cmp_eq_u32 s{sT+1}, s{sEND}'); a(f's_cselect_b32 s{sT+1}, s{sT}, s{sT+1}')
        for ks in range(8): h2issue(ks)
        if th: a.lg0()
        for ks in range(22):
            a.wvm(('h2', ks))
            for nt in range(2): M32(ACC4 + 16*nt, W4F + 8*ks + 4*nt, RING + 4*(ks % 8), None if ks == 0 else ACC4 + 16*nt)
            if ks + 8 < 22: h2issue(ks + 8)
            if th == 0 and ks == 13:
                cp_check(1024, 14, 12, 'cs')
                spin('W3I', 4)
                st.put('A', 's_seen')
                S(52, [(sJ, 64*SRS), (sW, 16*SRS), (sC, 128)], WS_ST)
                a(f's_lshl_b32 s53, s{sW}, 11'); a(f's_add_u32 m0, s53, {S0 + S_KF}')
                a.vm(f'buffer_load_dwordx4 v13, {WS}, s52 offen sc1 lds', 'sd')
                a('s_addk_i32 m0, 1024'); a(f's_add_u32 s52, s52, {8*SRS}')
                a.vm(f'buffer_load_dwordx4 v13, {WS}, s52 offen sc1 lds', 'sd')
        for q in range(8): a.lg(f'ds_write_b128 v{vDW}, {vr(ACC4 + 4*q, 4)} offset:{32768*th + 1024*q}')
        signal('D4a' if th == 0 else 'D4b')
        if th == 0: a.wvm('sd'); signal('CS4')
        st.put('A', f'g4_{th}')
    st.flush('A')
    a('s_endpgm')

class BBar:
    n = 0
def bbar(sleep=0):
    BBar.n += 1
    signal('B'); spin('B', 4 * BBar.n, sleep=sleep)

def cmul(d, x, y):
    if not cfg.cpk:
        return [f'v_mul_f32 v{d}, v{x}, v{y}\nv_mul_f32 v{d+1}, v{x}, v{y+1}',
                f'v_fma_f32 v{d}, -v{x+1}, v{y+1}, v{d}\nv_fmac_f32 v{d+1}, v{x+1}, v{y}']
    return [f'v_pk_mul_f32 v[{d}:{d+1}], v[{x}:{x+1}], v[{y}:{y+1}] op_sel:[0,0] op_sel_hi:[0,1]',
            f'v_pk_fma_f32 v[{d}:{d+1}], v[{x}:{x+1}], v[{y}:{y+1}], v[{d}:{d+1}] op_sel:[1,1,0] op_sel_hi:[1,0,1] neg_lo:[0,1,0]']

def role_B():
    a('L_B:')
    a.reset()
    st.put('B', 'issued')
    a(f's_load_dword s{sEP}, s[{sWSP}:{sWSP+1}], 0')
    vL16, vL16c, vCU, vCT, ONES, CS, CACC, UF, W3F = 4, 5, 6, 8, 12, 16, 28, 224, 64
    TR = lambda i: 12 + 4*i if i < 4 else 192 + 4*i
    vSR, vEX, vFT, vPA, vXT, vSW, vMS, vUS, vKE, vL4, vXV, vXR, vCP, vF4, vUD, vDS = 36, 37, 39, 40, 42, 43, 44, 45, 46, 47, 58, 59, 60, 61, 62, 63
    NCH = 12
    sXC, sFD, sXR, sSCR, sKF = sT + 2, sT + 3, sT + 5, sT + 6, sT + 7
    sUB, sW3, sUS, sUL, sF4, sGAP = 12, 13, 14, 15, 27, sK + 5
    a('s_barrier')
    consts()
    srd(SX, 36, 2097152); srd(SWS, sWSP, 268435456); srd(SOUT, 64, 2097152); srd(SW2, 62, 1409024)
    a(f'v_lshlrev_b32 v{vL16}, 4, v0'); a(f'v_lshlrev_b32 v{vL4}, 2, v0')
    a('v_lshrrev_b32 v16, 5, v0'); a('v_lshrrev_b32 v15, 4, v0'); a('v_and_b32 v14, 15, v0'); a('v_and_b32 v13, 3, v0'); a('v_bfe_u32 v12, v0, 2, 2')
    a('v_lshrrev_b32 v18, 2, v0'); a('v_lshlrev_b32 v19, 4, v13'); a(f'v_lshl_add_u32 v{vF4}, v18, 10, v19')
    a('v_lshrrev_b32 v18, 3, v0'); a('v_and_b32 v19, 7, v0'); a('v_lshlrev_b32 v19, 4, v19'); a(f'v_lshl_add_u32 v{vXV}, v18, 10, v19')
    a(f'v_mul_u32_u24 v18, {UPS}, v18'); a('v_bfe_u32 v19, v0, 2, 1'); a('v_lshl_add_u32 v18, v19, 10, v18'); a(f'v_lshl_add_u32 v{vUD}, v13, 4, v18')
    a(f's_cmp_lt_i32 s{sDEL}, 0'); a(f's_cselect_b32 s{sXR}, 64, -2'); a(f's_add_u32 s{sXR}, s{sXR}, s{sDEL}')
    S(sT, [(sC, 65536), (sXR, 1024)]); a(f'v_lshl_add_u32 v{vXR}, v0, 5, s{sT}')
    LF4, LFE = a.label('FM'), a.label('FM')
    a('v_lshlrev_b32 v17, 3, v13')
    a(f's_cmp_ge_u32 s{sW}, 2'); a(f's_cbranch_scc1 {LF4}')
    a('v_bfe_u32 v19, v0, 2, 3'); a('v_lshl_add_u32 v18, v16, 4, v19'); a('v_mul_u32_u24 v18, 96, v18'); a(f'v_add3_u32 v{vFT}, v18, v17, s{sSCR}')
    S(sFD, [(sW, 3072), (sJ, FMT), (sC, 6144)], WS_W3)
    a(f's_branch {LFE}')
    a(f'{LF4}:')
    a('v_lshl_add_u32 v18, v12, 6, v17'); a('v_and_b32 v19, 1, v15'); a('v_lshl_add_u32 v18, v19, 5, v18')
    a('v_lshl_add_u32 v18, v16, 9, v18'); a(f'v_add_u32 v{vFT}, s{sSCR}, v18')
    S(sFD, [(sW, 1024), (sJ, FMT), (sC, 6144)], WS_W4 - 2048)
    a(f'{LFE}:')
    S(sF4, [(sC, 48*1024), (sJ, 128), (sW, 64)], -128)
    a(f's_cmp_ge_u32 s{sW}, 2'); a(f's_cselect_b32 s{sF4}, s{sF4}, 0x80000000')
    a('v_mul_u32_u24 v18, 272, v14'); a('v_lshl_add_u32 v18, v16, 4, v18'); a(f'v_add_u32 v{vSR}, s{sSCR}, v18')
    a(f's_lshr_b32 s{sT}, s{sW}, 1'); a(f's_and_b32 s{sT+1}, s{sW}, 1')
    S(sKF, [(sT, 2*KCOPY)], S0 + S_KF); S(sUB, [(sT, USZ)], U0)
    a(f'v_add_u32 v{vEX}, s{sSCR}, v{vL16}'); a(f's_xor_b32 s{sT+8}, s{sW}, 1'); S(sT + 8, [(sT + 8, 4352)], S0 + S_KF); a(f'v_add_u32 v{vEX+1}, s{sT+8}, v{vL16}')
    a(f's_add_u32 s{sT+8}, s{sKF}, {4080 - 1024*3}'); a(f'v_sub_u32 v{vKE}, s{sT+8}, v{vL16}')
    a('v_and_b32 v18, 31, v0'); a('v_lshlrev_b32 v18, 2, v18'); a('v_lshl_add_u32 v18, v16, 9, v18')
    a(f'v_add_u32 v{vPA}, {S0 + S_STP}, v18')
    a('v_lshl_add_u32 v18, v15, 3, v12'); a('v_lshl_add_u32 v18, v18, 7, v17'); a(f's_lshl_b32 s{sT+8}, s{sW}, 5'); a(f'v_add_u32 v{vXT}, s{sT+8}, v18')
    S(sT + 8, [(sDEL, 8)], S0 + S_ST + 16); a(f'v_lshl_add_u32 v{vSW}, v0, 3, s{sT+8}')
    a(f'v_lshlrev_b32 v{vMS}, 6, v15')
    a('v_lshlrev_b32 v18, 6, v14'); a(f'v_lshl_add_u32 v{vUS}, v15, 4, v18')
    S(sUS, [(sJ, 32*UPS), (sW, 2048), (sC, UPS)], WS_UT)
    a(f's_bfe_u32 s{sUL}, s{sD}, 0x20004'); a(f's_and_b32 s{sT+8}, s{sD}, 15')
    S(sUL, [(sUL, 2048), (sT + 8, 64), (sJ, 32*UPS), (sT + 1, 16*UPS)], WS_UT)
    a(f's_lshl_b32 s{sT+1}, s{sT+1}, 8')
    a('v_lshlrev_b32 v18, 4, v15'); a(f'v_subrev_u32 v18, s{sT+1}, v18')
    a('v_lshl_add_u32 v19, v14, 5, v18'); a(f's_add_u32 s{sT}, s{sUB}, 480'); a(f'v_add_u32 v{vCU}, s{sT}, v19')
    a('v_add_u32 v19, 1, v14'); a('v_lshrrev_b32 v17, 1, v19'); a('v_lshlrev_b32 v17, 2, v17'); a('v_sub_u32 v18, v18, v17')
    a('v_and_b32 v19, 1, v19'); a(f'v_mul_u32_u24 v19, {KCOPY}, v19'); a('v_add_u32 v18, v18, v19')
    for m in range(4):
        a(f's_add_u32 s{sT}, s{sKF}, {4064 - 512*(2*m+1) - 64}'); a(f'v_add_u32 v{vCT+m}, s{sT}, v18')
    a(f's_cmp_eq_u32 s{sW}, 3'); a(f's_cselect_b32 s{sT}, 0x80000000, 0'); a(f'v_add_u32 v{vL16c}, s{sT}, v{vL16}')
    S(sW3, [(sJ, FMT), (sW, 3072)], WS_W3)
    cp_addr(vCP, 18)
    a('s_waitcnt lgkmcnt(0)')
    a(f's_add_u32 s{sEP}, s{sEP}, 1'); a(f's_mov_b32 s{sEP+1}, s{sEP}')
    a(f's_getreg_b32 s{sXC}, hwreg(HW_REG_XCC_ID, 0, 4)')
    if cfg.force_slow: a(f's_mov_b32 s{sXC}, s{sJ}')
    a(f's_lshl_b32 s{sXC}, s{sXC}, 28'); a(f's_add_u32 s{sXC}, s{sXC}, s{sEP}')
    S(sT, [(sC, 65536), (sW, 16384), (sJ, 128)])
    a(f's_lshl_b32 s{sT+1}, s{sW}, 11'); a(f's_add_u32 m0, s{sT+1}, {S0 + S_XT}')
    a.vm0()
    st.put('B', 'par')
    a.vm(f'buffer_load_dwordx4 v{vXV}, s[{SX}:{SX+3}], s{sT} offen lds', 'xt')
    a('s_addk_i32 m0, 1024'); a(f's_addk_i32 s{sT}, 8192')
    a.vm(f'buffer_load_dwordx4 v{vXV}, s[{SX}:{SX+3}], s{sT} offen lds', 'xt')
    FR_ = 184
    LG, LGE = a.label('FM'), a.label('FM')
    a(f's_cmp_ge_u32 s{sW}, 2'); a(f's_cbranch_scc1 {LG}')
    for m in range(3):
        for p in range(2): a(f'ds_read_b64_tr_b16 v[{FR_+4*m+2*p}:{FR_+1+4*m+2*p}], v{vFT} offset:{32*m + 768*p}')
    a('s_waitcnt lgkmcnt(0)')
    for m in range(3): a(f'buffer_store_dwordx4 {vr(FR_ + 4*m, 4)}, v{vL16}, {WS}, s{sFD} offen offset:{1024*m} sc1')
    a(f's_branch {LGE}')
    a(f'{LG}:')
    a(f's_cmp_lg_u32 s{sW}, 3'); a(f's_cbranch_scc1 {LGE}')
    for k in range(2): a(f'buffer_load_dwordx4 {vr(12 + 4*k, 4)}, v{vXR}, s[{SX}:{SX+3}], 0 offen offset:{16*k}')
    S(sT, [(sJ, 4), (sFL, 1)])
    a(f'v_mov_b32 v{vT}, s{sXC}')
    a('s_mov_b64 exec, 1'); a(f'buffer_store_dword v{vT}, off, {WS}, s{sT} offset:768 sc1'); a('s_mov_b64 exec, -1')
    a(f'{LGE}:')
    st.put('B', 'fmt_st')
    for i in range(7): a(f'v_lshlrev_b32 v{20+i}, 16, v{20+i}')
    a(f'v_lshlrev_b32 v{vDS}, 16, v27')
    a(f'v_mul_f32 v26, {hx(LOG2E)}, v26'); a('v_exp_f32 v26, v26')
    a('v_cvt_pk_bf16_f32 v26, v26, v26'); a('v_and_b32 v26, 0xffff0000, v26')
    for i in range(4): a(f'v_mul_f32 v{20+i}, v26, v{20+i}')
    a(f'v_mul_f32 v20, {hx(LOG2E)}, v20'); a(f'v_mul_f32 v21, {hx(1/(2*math.pi))}, v21')
    YV, XV, PKY, PKX, FY, FX, KD, KP, ET = 64, 128, 224, 196, 128, 160, 196, 212, 224
    E = {1: 30, 8: YV + 2, 256: 34}
    chains = []
    for n, (l, r) in enumerate(E.items()):
        t = 48 + 2 * n
        chains.append([f'v_mul_f32 v{t}, {hx(l)}, v20', f'v_mul_f32 v{t+1}, {hx(l)}, v21', f'v_exp_f32 v{t}, v{t}', f'v_fract_f32 v{t+1}, v{t+1}',
                       f'v_cos_f32 v{r}, v{t+1}', f'v_sin_f32 v{r+1}, v{t+1}', f'v_mul_f32 v{r}, v{r}, v{t}', f'v_mul_f32 v{r+1}, v{r+1}, v{t}'])
    for x in interleave(chains): a(x)
    his = list(range(9)) + [256, 258, 260, 262, 264, 512, 516, 520, 768, 772, 776, 1024, 1032, 1280, 1288, 1536, 1544, 1792, 1800]
    xi = {h: XV + 2 * i for i, h in enumerate(his)}
    xp = {h: PKX + i for i, h in enumerate(his)}
    xchain = cmul(xi[0], 24, 22)
    for h in range(1, 9): xchain += cmul(xi[h], xi[h-1], 30)
    ych = cmul(YV+4, YV+2, YV+2) + cmul(YV+6, YV+4, YV+2) + cmul(YV+8, YV+4, YV+4)
    for j in range(5, 32): ych += cmul(YV + 2*j, YV + 2*(j-4), YV + 8)
    head, rest = ych[:6], ych[6:]
    grp = []
    for g in range(0, len(rest), 8):
        blk = rest[g:g+8]; grp += blk[0::2] + blk[1::2]
    x2 = []
    for lvl in ([256, 258, 260, 262, 264], [512, 516, 520], [768, 772, 776], [1024, 1032], [1280, 1288], [1536, 1544], [1792, 1800]):
        blk = []
        for h in lvl: blk += cmul(xi[h], xi[h-256], 34)
        x2 += blk[0::2] + blk[1::2]
    for x in interleave([head + grp, xchain + x2]): a(x)
    st.put('B', 'k1')
    a(f's_setprio {cfg.uprio}')
    publish_col('FF', 0)
    st.put('B', 'fmt_flag')
    LXR = a.label('XR')
    a(f's_cmp_lg_u32 s{sW}, 3'); a(f's_cbranch_scc1 {LXR}')
    a('v_mov_b32 v28, 0'); a('v_mov_b32 v29, 0')
    for d in range(8):
        a(f'v_lshlrev_b32 v30, 16, v{12+d}'); a(f'v_and_b32 v31, 0xffff0000, v{12+d}')
        a('v_add_f32 v28, v28, v30'); a('v_fmac_f32 v29, v30, v30'); a('v_add_f32 v28, v28, v31'); a('v_fmac_f32 v29, v31, v31')
    a('v_permlane16_swap_b32 v28, v29'); a('v_add_f32 v28, v28, v29')
    for sh in (8, 4, 2, 1): a(f'v_add_f32_dpp v28, v28, v28 row_ror:{sh} row_mask:0xf bank_mask:0xf')
    a('v_mov_b32 v29, v28'); a('v_permlane16_swap_b32 v28, v29')
    finstat(28)
    S(sT, [(sXR, 8)], S0 + S_ST + 16); a('v_lshrrev_b32 v17, 5, v0'); a(f'v_lshl_add_u32 v18, v17, 3, s{sT}')
    a('s_mov_b32 exec_lo, 1'); a('s_mov_b32 exec_hi, 1'); a(f'ds_write_b64 v18, v[28:29]'); a('s_mov_b64 exec, -1')
    a(f'{LXR}:')
    signal('S')
    spin('S', 8)
    st.put('B', 'S_seen')
    XT, MSR, UT, UP = 196, 204, 236, 48
    for w2 in range(2): a.lg(f'ds_read2_b32 v[{28+2*w2}:{29+2*w2}], v{vPA} offset0:{64*w2} offset1:{64*w2 + 32}', 'sp')
    for o in range(2):
        for p in range(2): a.lg(f'ds_read_b64_tr_b16 v[{XT+4*o+2*p}:{XT+1+4*o+2*p}], v{vXT} offset:{S0 + S_XT + 4096*o + 512*p}', 'xr')
    a.wlg('sp')
    padd(28, 28, 30, 2, False)
    finstat(28)
    a.lg(f'ds_write_b64 v{vSW}, v[28:29]')
    for o in range(2):
        for k in range(4): a.lg(f'ds_read_b128 {vr(MSR + 16*o + 4*k, 4)}, v{vMS} offset:{S0 + S_ST + 16 + 256*o + 16*k}', ('ms', o))
    signal('STAT')
    a.wlg('xr')
    for o in range(2):
        unpack(UT, XT + 4*o, 4)
        a.wlg(('ms', o))
        for i in range(8): a(f'v_sub_f32 v{UT+i}, v{UT+i}, v{MSR+16*o+2*i}')
        for i in range(8): a(f'v_mul_f32 v{UT+i}, v{UT+i}, v{MSR+1+16*o+2*i}')
        for d in range(4): a(f'v_cvt_pk_bf16_f32 v{UP+4*o+d}, v{UT+2*d}, v{UT+1+2*d}')
        a.vm(f'buffer_store_dwordx4 {vr(UP + 4*o, 4)}, v{vUS}, {WS}, s{sUS} offen offset:{1024*o} sc1', 'ust')
    a(f's_setprio {cfg.bprio}')
    st.put('B', 'u_stored')
    F4R = 16
    for m in range(3):
        if m: a(f's_addk_i32 s{sF4}, 16384')
        a.vm(f'buffer_load_dwordx4 {vr(F4R + 4*m, 4)}, v{vF4}, s[{SW2}:{SW2+3}], s{sF4} offen {cfg.touch_nt}', 'f4')
    a(f'v_mov_b32 v{PKY}, 0x3f80')
    for j in range(1, 32): a(f'v_cvt_pk_bf16_f32 v{PKY + j}, v{YV + 2*j}, v{YV + 2*j + 1}')
    for h in his: a(f'v_cvt_pk_bf16_f32 v{xp[h]}, v{xi[h]}, -v{xi[h]+1}')
    a(f's_mov_b32 m0, s{sSCR}')
    rowof = lambda v, half: (v & 3) + 8 * (v >> 2) + 4 * half
    def batch(rows, F):
        for b in range(2):
            for r in range(16): a.lg(f'ds_write_addtid_b32 v{rows[16*b + r]} offset:{272*r}')
            a(f's_mov_b32 exec_lo, {"0x0000ffff" if b == 0 else "0xffff0000"}'); a('s_mov_b32 exec_hi, exec_lo')
            for ks in range(8): a.lg(f'ds_read_b128 {vr(F + 4*ks, 4)}, v{vSR} offset:{32*ks}')
            a('s_mov_b64 exec, -1')
    batch({j: PKY + j for j in range(32)}, FY)
    publish_col('FU', 512, 'ust')
    st.put('B', 'u_flag')
    cp_issue(0, 14, vCP, 'cf')
    h0 = list(range(9)) + [512, 516, 520, 1024, 1032, 1536, 1544]
    h1 = [256, 256, 258, 260, 260, 260, 262, 264, 264, 768, 772, 776, 1280, 1288, 1792, 1800]
    rows = {rowof(v, 0): xp[h] for v, h in enumerate(h0)}; rows.update({rowof(v, 1): xp[h] for v, h in enumerate(h1)})
    batch(rows, FX)
    cp_check(0, 14, vCP, 'cf')
    st.put('B', 'fmt_seen')
    iss = [0]
    def w3more(n=1):
        for _ in range(n):
            ks = iss[0]; iss[0] += 1
            for m in range(3):
                a.vm(f'buffer_load_dwordx4 {vr(W3F + 12*ks + 4*m, 4)}, v{vL16c if m == 2 else vL16}, {WS}, s{sW3} offen offset:{1024*m} sc1', ('w3', ks))
            a(f's_addk_i32 s{sW3}, 12288')
    w3more(cfg.w3a)
    a.lg0()
    for ks in range(8): M32(KD, FX + 4*ks, FY + 4*ks, None if ks == 0 else KD)
    LG = a.label('FM')
    a(f's_cmp_lt_u32 s{sW}, 2'); a(f's_cbranch_scc1 {LG}')
    for m in range(3): a(f'ds_write_b128 v{vEX}, {vr(F4R + 4*m, 4)} offset:{1024*m}')
    for m in range(3):
        for p in range(2): a(f'ds_read_b64_tr_b16 v[{ET+16+4*m+2*p}:{ET+17+4*m+2*p}], v{vFT} offset:{1024*m + 256*p}')
    a('s_waitcnt lgkmcnt(0)')
    for m in range(3):
        if m == 2: a(f's_addk_i32 s{sFD}, 4096')
        a(f'buffer_store_dwordx4 {vr(ET + 16 + 4*m, 4)}, v{vL16}, {WS}, s{sFD} offen offset:{2048*(m & 1)} sc1')
    a(f'{LG}:')
    cp_issue(512, 61, vCP, 'cu')
    a('s_nop 7')
    LE1, LE2_ = a.label('EX'), a.label('EX')
    a(f's_bitcmp1_b32 s{sW}, 0'); a(f's_cbranch_scc1 {LE1}')
    a(f'ds_write_b128 v{vEX}, {vr(KD + 12, 4)}')
    a(f's_branch {LE2_}')
    a(f'{LE1}:')
    for q in range(3): a(f'ds_write_b128 v{vEX}, {vr(KD + 4*q, 4)} offset:{1024*q}')
    a(f'{LE2_}:')
    bbar()
    st.put('B', 'kmfma')
    for q in range(3): a.lg(f'ds_read_b128 {vr(KP + 4*q, 4)}, v{vEX+1} offset:{1024*q}')
    signal('B'); BBar.n += 1
    a(f's_and_b32 s{sT+1}, s{sW}, 1'); S(sT + 1, [(sT + 1, 2048), (sUB, 1)], 512); a(f's_mov_b32 m0, s{sT+1}')
    a(f'v_add_u32 v7, s{sUB}, v{vL16}')
    for i in range(4): a(f'v_mov_b32 v{32+i}, 0')
    spin('W', 4)
    a('s_mov_b32 exec_hi, 0'); a.lg('ds_write_b128 v7, v[32:35]'); a('s_mov_b64 exec, -1')
    st.put('B', 'u_poll')
    cp_check(512, 61, vCP, 'cu')
    st.put('B', 'u_seen')
    a.vm(f'buffer_load_dwordx4 v{vUD}, {WS}, s{sUL} offen sc1 lds', 'u')
    a('s_addk_i32 m0, 1024'); a(f's_add_u32 s{sUL}, s{sUL}, {8*UPS}')
    a.vm(f'buffer_load_dwordx4 v{vUD}, {WS}, s{sUL} offen sc1 lds', 'u')
    w3more(cfg.w3b)
    spin('B', 4 * BBar.n)
    def expand(sp, vals, tmp):
        for i in range(4): a(f'v_cvt_pk_bf16_f32 v{tmp+i}, v{vals[7-2*i]}, v{vals[6-2*i]}')
        for i in range(4): a(f'v_cvt_pk_bf16_f32 v{tmp+4+i}, v{vals[8-2*i]}, v{vals[7-2*i]}')
        a(f'ds_write_b128 v{vKE}, {vr(tmp, 4)} offset:{1024*(3-sp)}')
        a(f'ds_write_b128 v{vKE}, {vr(tmp+4, 4)} offset:{1024*(3-sp) + KCOPY}')
    LX1, LXE = a.label('EX'), a.label('EX')
    a(f's_bitcmp1_b32 s{sW}, 0'); a(f's_cbranch_scc1 {LX1}')
    a('v_mov_b32 v30, 0'); a('v_and_b32 v29, 7, v0'); a('v_lshlrev_b32 v29, 2, v29'); a('v_lshrrev_b32 v31, 3, v0'); a('v_xor_b32 v31, 1, v31')
    a(f'v_mul_u32_u24 v31, {KCOPY}, v31'); a(f'v_add3_u32 v29, v29, v31, s{sKF}')
    padd(KD, KD, KP, 12, False)
    a('s_mov_b64 exec, 1'); a(f'v_add_f32 v{KD}, v{KD}, v{vDS}'); a(f'v_cvt_pk_bf16_f32 v30, v{KD}, v30')
    a('s_mov_b64 exec, 0xffff'); a('ds_write_b32 v29, v30 offset:4096'); a('s_mov_b64 exec, -1')
    expand(0, [KD + i for i in range(9)], ET)
    expand(1, [KD + 9 + k for k in (0, 0, 0, 1, 1, 1, 2, 2, 2)], ET + 8)
    a(f's_branch {LXE}')
    a(f'{LX1}:')
    a('v_and_b32 v29, 1, v0'); a('v_cmp_eq_u32 vcc, 1, v29')
    padd(KD + 12, KD + 12, KP, 4, False)
    for s_ in range(2):
        lo, hi = KD + 12 + 2*s_, KD + 13 + 2*s_
        a(f'v_cndmask_b32 v30, v{lo}, v{hi}, vcc')
        expand(2 + s_, [lo, lo, lo, lo, 30, hi, hi, hi, hi], ET + 8*s_)
    a(f'{LXE}:')
    st.put('B', 'kexp')
    done = [0]
    def ones(upto):
        while done[0] < upto:
            d = done[0]
            a.wvm(('w3', d))
            for m in range(3): M16(CS + 4*m, W3F + 12*d + 4*m, ONES, None if d == 0 else CS + 4*m)
            done[0] += 1
    for i in range(32): a(f'v_mov_b32 v{CACC+i}, 0')
    publish_col('F4', 1536, 'cu')
    def ldT(i, nxt):
        t = TR(i); o = (128 if i % 2 == 0 else 0) + (0 if nxt else 16)
        a.lg(f'ds_read2_b32 v[{t}:{t+1}], v{vCT + i//2} offset0:{o} offset1:{o+1}', ('T', i))
        a.lg(f'ds_read2_b32 v[{t+2}:{t+3}], v{vCT + i//2} offset0:{o+2} offset1:{o+3}', ('T', i))
    def ldU(jq): a.lg(f'ds_read_b128 {vr(UF + 4*jq, 4)}, v{vCU} offset:{512*jq}', ('U', jq))
    a.wvm('u'); bbar()
    st.put('B', 'conv_go')
    for q in range(8): ldT(7 - q, False); ldU(q)
    a(f'v_subrev_u32 v{vCU}, 64, v{vCU}')
    for it in range(4):
        w3more(min(cfg.w3d, NCH - iss[0]))
        a(f's_call_b64 s[{sRET}:{sRET+1}], L_conv')
        st.put('B', f'cv{it}')
    a.lg0()
    assert iss[0] == NCH
    w3more(4)
    for i in range(4): a(f'v_mov_b32 v{ONES+i}, s{sK+4}')
    S(sT, [(sW, 8192)], CX0); a(f'v_add_u32 v7, s{sT}, v{vL16}')
    for q in range(8): a.lg(f'ds_write_b128 v7, {vr(CACC + 4*q, 4)} offset:{1024*q}')
    signal('B'); BBar.n += 1
    a(f's_and_b32 s{sT+1}, s{sW}, 1'); S(sT, [(sT, 1), (sT + 1, 4096)])
    a('v_bfe_u32 v8, v0, 1, 4'); a('v_and_b32 v9, 1, v0'); a('v_lshl_add_u32 v8, v9, 5, v8'); a('v_lshrrev_b32 v9, 5, v0'); a('v_lshl_add_u32 v8, v9, 6, v8')
    a(f'v_lshl_add_u32 v8, v8, 4, s{sT}'); a('v_xor_b32 v6, 0x2000, v8')
    S(sT, [(sD, SRS), (sT + 1, 2048)], WS_ST)
    ones(6)
    spin('B', 4 * BBar.n)
    for pr in range(2):
        for h in range(2):
            a.lg(f'ds_read_b128 {vr(CACC + 8*pr + 4*h, 4)}, v8 offset:{2048*pr + 256*h}', ('c', pr))
            a.lg(f'ds_read_b128 {vr(CACC + 16 + 8*pr + 4*h, 4)}, v6 offset:{2048*pr + 256*h}', ('c', pr))
    signal('W3I')
    for pr in range(2):
        a.wlg(('c', pr))
        padd(CACC + 8*pr, CACC + 8*pr, CACC + 16 + 8*pr, 8, False)
        for d in range(4): a(f'v_cvt_pk_bf16_f32 v{CACC+16+8*pr+d}, v{CACC+8*pr+2*d}, v{CACC+8*pr+2*d+1}')
        a.vm(f'buffer_store_dwordx4 {vr(CACC + 16 + 8*pr, 4)}, v{vL16}, {WS}, s{sT} offen offset:{1024*pr} sc1', 'sst')
    st.put('B', 's_stored')
    ones(16)
    st.put('B', 'w3_done')
    ACC3, FR, GT, MS, vX1, vH2, vS3, PKD = 28, 52, 6, 10, 5, 12, 13, 14
    sH2, sDROP, sZ, sFO = 36, sT + 6, sT + 7, sT + 5
    a(f'v_add_u32 v{vX1}, {W0}, v{vL16}')
    a('v_lshrrev_b32 v6, 5, v0'); a('v_and_b32 v7, 15, v0'); a('v_lshl_add_u32 v6, v6, 5, v7'); a('v_lshlrev_b32 v6, 4, v6')
    a('v_bfe_u32 v8, v0, 4, 1'); a(f'v_lshl_add_u32 v{vH2}, v8, 10, v6')
    a(f'v_lshlrev_b32 v{vS3}, 3, v7')
    a(f's_and_b32 s{sT}, s{sJ}, 1')
    a(f'v_xor_b32 v8, s{sT}, v8'); a(f'v_lshl_add_u32 v{vL16}, v8, 8, v6')
    S(sH2, [(sC, H2C), (sJ, 11*1024), (sW, 3072), (sT, 256)], WS_H2)
    a(f's_xor_b32 s{sH2+1}, s{sH2}, 256'); a(f's_add_u32 s{sH2+2}, s{sH2}, {88*1024}'); a(f's_add_u32 s{sH2+3}, s{sH2+1}, {88*1024}')
    a(f's_cmp_eq_u32 s{sW}, 3'); a(f's_cselect_b32 s{sDROP}, 0x80000000, 0')
    a(f's_or_b32 s{sT}, s{sJ}, 2'); S(sT, [(sT, 4), (sW, 1)])
    a(f's_cmp_eq_u32 s{sT}, {7*4+3}'); a(f's_cselect_b32 s{sZ}, 0, -1')
    S(sFO, [(sJ, 16), (sW, 4), (sFL, 1)])
    spin('MODE', 1); a(f's_mov_b32 s{sMODE}, s{sT+8}')
    a(f's_mov_b32 s42, 0xffff'); a(f's_cmp_eq_u32 s{sW}, 3'); a('s_cselect_b32 s42, s42, 0xffffff')
    a(f's_andn2_b32 s40, s{sH2}, 256'); a(f's_add_u32 s41, s40, {88*1024}')
    a(f's_or_b32 s43, s40, s{sDROP}'); a(f's_or_b32 s44, s41, s{sDROP}')
    def epi3(k, pk=False):
        o = []
        A3 = ACC3 + 12 * (k & 1)
        for m in range(3):
            chains = []
            for kk in range(2):
                p = A3 + 4*m + 2*kk; c = CS + 4*m + 2*kk
                ch = [f'v_fma_f32 v{p+i}, -v{c+i}, v{MS}, v{p+i}' for i in range(2)] + [f'v_mul_f32 v{p+i}, v{p+i}, v{MS+1}' for i in range(2)]
                dst = A3 + 2*m + kk if m < 2 else (A3 + 6 + kk if k & 1 else PKD + kk)
                ch += gelu_ops(p, GT + 2*kk, dst, False)
                chains.append(ch)
            if m == 2 and k & 1: o += [f'v_mov_b32 v{A3+4+kk}, v{PKD+kk}' for kk in range(2)]
            body = interleave(chains)
            if m == 2:
                body[3:3] = [f'v_permlane16_swap_b32 v{A3}, v{A3+2}', f'v_permlane16_swap_b32 v{A3+1}, v{A3+3}',
                             ('vm', f'buffer_store_dwordx4 {vr(A3, 4)}, v{vH2}, {WS}, s{sH2+k} offen sc1', ('h2st', k))]
            o += body
            if m == 1: o += [f'v_and_b32 v{A3+2+kk}, s{sZ}, v{A3+2+kk}' for kk in range(2)]
            if m == 2 and k & 1:
                o += [f'v_permlane16_swap_b32 v{A3+4}, v{A3+6}', f'v_permlane16_swap_b32 v{A3+5}, v{A3+7}',
                      ('vm', f'buffer_store_dwordx4 {vr(A3 + 4, 4)}, v{vL16}, {WS}, s{43 + (k >> 1)} offen offset:2048 sc1', ('h2st', k))]
        return o
    def emit(x):
        if isinstance(x, tuple): a.vm(x[1], x[2])
        else: a(x)
    spin('X0', 4)
    a('s_setprio 2')
    st.put('B', 'g3_start')
    def rdf(n): a.lg(f'ds_read_b128 {vr(FR + 4*(n % 3), 4)}, v{vX1} offset:{1024*n}', ('f', n))
    rdf(0); rdf(1)
    pend = []; per = 0
    for n in range(64):
        k, ks = divmod(n, 16)
        if ks == 0 and k > 0:
            a.lg(f'ds_read_b64 v[{MS}:{MS+1}], v{vS3} offset:{S0 + S_ST3 + 128*(k-1)}', 'ms')
            pend = epi3(k - 1); cost = lambda x: 1 if isinstance(x, tuple) or x.startswith('s_') else (2 if x.startswith(TRANS) else 1)
            per = sum(cost(x) for x in pend) / 44.5; credit = 0
        if ks == 10 and k < 2:
            a.lg(f'ds_read_b32 v{vT}, v{vS} offset:{CN["XB" if k == 0 else "XA"]}', 'chk')
        if ks == 14 and k < 2:
            LOK = a.label('OK')
            a.wlg('chk')
            a(f'v_readfirstlane_b32 s{sT+8}, v{vT}'); a(f's_cmp_ge_u32 s{sT+8}, 4'); a(f's_cbranch_scc1 {LOK}')
            saved = list(a.lgq)
            spin('XB' if k == 0 else 'XA', 4)
            a.lgq = saved
            a(f'{LOK}:')
        if k == 0 and ks == 6:
            saved = list(a.lgq)
            publish_col('FS', 1024, 'sst')
            a.lgq = saved
        if k == 3 and ks == 9:
            flag(sFO, 384, ('h2st', 1), False, ('s42', f'v_lshlrev_b32 v{vT}, 7, v0\nbuffer_load_dword v{vT}, v{vT}, {WS}, s40 offen sc1'))
            st.put('B', 'h2a_flag')
        a.wlg([('f', n)] + (['ms'] if ks == 1 else []))
        for m in range(3):
            A3 = ACC3 + 12 * (k & 1) + 4 * m
            M16(A3, W3F + 12*ks + 4*m, FR + 4*(n % 3), None if ks == 0 else A3)
            if m == 0 and n + 2 < 64: rdf(n + 2)
            if ks >= 1 and pend:
                credit += per
                while pend and credit >= cost(pend[0]) - 0.5:
                    credit -= cost(pend[0]); emit(pend.pop(0))
        if ks == 15:
            while pend: emit(pend.pop(0))
    st.put('B', 'g3_mfma')
    a(f'ds_read_b64 v[{MS}:{MS+1}], v{vS3} offset:{S0 + S_ST3 + 128*3}'); a.lg0()
    for x in epi3(3): emit(x)
    st.put('B', 'h2_stored')
    X1R, XR, SR_, Z = 64, 80, 96, 112
    sTB, sNT, sO = sT, sT + 1, sT + 2
    a(f's_and_b32 s{sTB}, s{sW}, 1'); a(f's_lshr_b32 s{sNT}, s{sW}, 1')
    a('v_and_b32 v20, 15, v0'); a('v_lshrrev_b32 v21, 4, v0')
    a('v_lshrrev_b32 v22, 5, v0'); a('v_lshlrev_b32 v22, 9, v22'); a('v_lshl_add_u32 v22, v20, 4, v22')
    a('v_and_b32 v23, 1, v21'); a('v_lshl_add_u32 v22, v23, 3, v22')
    a(f's_xor_b32 s{sT+8}, s{sTB}, s{sJ}'); a(f's_and_b32 s{sT+8}, s{sT+8}, 1')
    S(sT + 8, [(sT + 8, 16384), (sJ, 2048), (sNT, 1024)], W0); a(f'v_add_u32 v22, s{sT+8}, v22')
    for th in range(2):
        for h in range(2): a.lg(f'ds_read_b64 v[{32+4*th+2*h}:{33+4*th+2*h}], v22 offset:{32768*th + 256*h}', 'pr')
    a('v_lshlrev_b32 v23, 7, v20'); a('v_lshl_add_u32 v23, v21, 4, v23')
    S(sT + 8, [(sTB, 2048), (sNT, 64)]); a(f'v_add_u32 v23, s{sT+8}, v23')
    for th in range(2): a.lg(f'ds_read_b128 {vr(40 + 4*th, 4)}, v23 offset:{S0 + S_XT + 4096*th}', 'pr')
    a('v_bfe_u32 v24, v0, 2, 2'); a('v_lshl_add_u32 v24, v21, 3, v24'); a('v_lshlrev_b32 v24, 7, v24')
    a('v_and_b32 v25, 3, v0'); a('v_lshl_add_u32 v24, v25, 3, v24')
    S(sT + 8, [(sNT, 4096), (sTB, 32)]); a(f'v_add_u32 v24, s{sT+8}, v24')
    a('v_lshlrev_b32 v25, 4, v20'); a('v_lshl_add_u32 v25, v21, 10, v25')
    S(sT + 8, [(sNT, 4096), (sTB, 256)], X0); a(f'v_add_u32 v25, s{sT+8}, v25')
    a('v_lshlrev_b32 v26, 10, v20'); a('v_lshl_add_u32 v26, v21, 4, v26')
    S(sO, [(sC, 65536), (sTB, 16384), (sJ, 128), (sNT, 64)])
    a('v_lshlrev_b32 v27, 7, v0')
    flag(sFO, 512, ('h2st', 3), False, ('s42', f'buffer_load_dword v27, v27, {WS}, s41 offen sc1'))
    a('s_setprio 0')
    st.put('B', 'h2_flag')
    spin('CS4', 4)
    for th in range(2):
        for p in range(2): a.lg(f'ds_read_b64_tr_b16 v[{48+4*th+2*p}:{49+4*th+2*p}], v24 offset:{S0 + S_KF + 512*p + 64*th}')
    if cfg.clean and cfg.hx == 'plain':
        S(sT + 8, [(sIDX, 8192), (sJ, 8192), (sW, 2048)], WS_X1)
        for k in range(2): a.vm(f'buffer_store_dwordx4 v[28:31], v{vL16}, {WS}, s{sT+8} offen offset:{1024*k} sc1')
    unpack(X1R, 32, 8); unpack(XR, 40, 8)
    a.lg0()
    unpack(SR_, 48, 8)
    a(f's_mov_b32 s{sK+6}, {hx(-LOG2E)}'); a(f's_mov_b32 s{sK+7}, {hx(-LOG2E)}')
    st.put('B', 'prep')
    for th in range(2):
        spin('D4a' if th == 0 else 'D4b', 4)
        for w2 in range(4):
            for h in range(2): a.lg(f'ds_read_b128 {vr(Z + 8*w2 + 4*h, 4)}, v25 offset:{32768*th + 8192*w2 + 512*h}', ('z', w2))
        z = X1R + 8 * th
        pk = th == 1
        for w2 in range(4):
            a.wlg(('z', w2)); padd(z, z, Z + 8*w2, 8, pk)
        t = Z
        if pk:
            for i in range(0, 8, 2): a(f'v_pk_mul_f32 v[{t+i}:{t+i+1}], v[{z+i}:{z+i+1}], s[{sK+6}:{sK+7}]')
            for i in range(8): a(f'v_exp_f32 v{t+i}, v{t+i}')
            for i in range(0, 8, 2): a(f'v_pk_add_f32 v[{t+i}:{t+i+1}], v[{t+i}:{t+i+1}], 1.0 op_sel_hi:[1,0]')
            for i in range(0, 8, 2): a(f'v_pk_mul_f32 v[{z+i}:{z+i+1}], v[{z+i}:{z+i+1}], v[{SR_+8*th+i}:{SR_+8*th+i+1}]')
            for i in range(8): a(f'v_rcp_f32 v{t+i}, v{t+i}')
            for i in range(0, 8, 2): a(f'v_pk_fma_f32 v[{z+i}:{z+i+1}], v[{z+i}:{z+i+1}], v[{t+i}:{t+i+1}], v[{XR+8*th+i}:{XR+8*th+i+1}]')
        else:
            for i in range(8): a(f'v_mul_f32 v{t+i}, s{sK+6}, v{z+i}')
            for i in range(8): a(f'v_exp_f32 v{t+i}, v{t+i}')
            for i in range(8): a(f'v_add_f32 v{t+i}, 1.0, v{t+i}')
            for i in range(8): a(f'v_mul_f32 v{z+i}, v{z+i}, v{SR_+8*th+i}')
            for i in range(8): a(f'v_rcp_f32 v{t+i}, v{t+i}')
            for i in range(8): a(f'v_fma_f32 v{z+i}, v{z+i}, v{t+i}, v{XR+8*th+i}')
        for i in range(4): a(f'v_cvt_pk_bf16_f32 v{56+4*th+i}, v{z+2*i}, v{z+2*i+1}')
        if th == 1: a(f's_add_u32 s{sO}, s{sO}, 0x8000')
        a.vm(f'buffer_store_dwordx4 {vr(56 + 4*th, 4)}, v26, s[{SOUT}:{SOUT+3}], s{sO} offen {cfg.out_fl}')
        st.put('B', f'out{th}')
    LE2 = a.label('EP')
    a(f's_add_u32 s{sT}, s2, s{sW}'); a(f's_cmp_lg_u32 s{sT}, 0'); a(f's_cbranch_scc1 {LE2}')
    a('s_mov_b64 exec, 1'); a(f'v_mov_b32 v{vT}, s{sEP}')
    a(f'buffer_store_dword v{vT}, off, {WS}, 0 sc1')
    a('s_mov_b64 exec, -1')
    a(f'{LE2}:')
    st.flush('B')
    a('s_endpgm')
    a('L_conv:')
    a.reset()
    a('s_waitcnt lgkmcnt(12)')
    for i in range(7, 3, -1):
        for jq in range(0, 8 - i): M16(CACC + 4*(i + jq), TR(i), UF + 4*jq, CACC + 4*(i + jq))
        if i == 5: pre = len(a.lgq)
        ldT(i, True)
    a(f's_waitcnt lgkmcnt({len(a.lgq)})')
    for jq in range(8):
        for i in range(3, -1, -1):
            if i + jq <= 7: M16(CACC + 4*(i + jq), TR(i), UF + 4*jq, CACC + 4*(i + jq))
        ldU(jq)
        if jq >= 4: ldT(7 - jq, True)
    a(f'v_subrev_u32 v{vCU}, 64, v{vCU}')
    for m in range(4): a(f'v_subrev_u32 v{vCT+m}, 64, v{vCT+m}')
    a(f's_setpc_b64 s[{sRET}:{sRET+1}]')
    a('L_codeend:')

def build(path):
    prologue(); role_A(); role_B()
    body, npad = a.finalize()
    K = NAME + '_kernel'
    hdr = open('cdna_kernels/' + NAME + '.s.ref').read().split('; Override launch geometry')[0]
    o = hdr + '; @launch grid=(256,1,1) block=(512,1,1) lds=163840\n'
    o += f'.amdgcn_target "amdgcn-amd-amdhsa--gfx950"\n.text\n.globl {K}\n.p2align 8\n.type {K},@function\n{K}:\n'
    o += '\n'.join(('' if l.endswith(':') else '  ') + l for l in body) + '\n'
    o += f'''.section .rodata,"a"
.p2align 6
.amdhsa_kernel {K}
  .amdhsa_next_free_vgpr 256
  .amdhsa_next_free_sgpr 102
  .amdhsa_accum_offset 256
  .amdhsa_group_segment_fixed_size 0
  .amdhsa_kernarg_size 136
  .amdhsa_user_sgpr_count 2
  .amdhsa_user_sgpr_kernarg_segment_ptr 1
  .amdhsa_system_sgpr_workgroup_id_x 1
.end_amdhsa_kernel
'''
    open(path, 'w').write(o)
    json.dump(st.names, open(path + '.stamps.json', 'w'))
    print('instrs', len(body), 'pads', npad)

if __name__ == '__main__':
    out = sys.argv[1]
    for kv in sys.argv[2:]:
        k, v = kv.split('=', 1); setattr(cfg, k, eval(v))
    build(out)
```

```python
import sys, math, struct, json
from asmlib import *
NAME = 'recurrent_scan__ssm_conv_s4__mixer_s_mlp__prompt'
def f2u(x): return struct.unpack('<I', struct.pack('<f', x))[0]
def hx(x): return hex(f2u(x))

class Cfg:
    stamps = False
    xev = 30
    laa = 8
    pumps = 2
    pumpb = 12
    la1 = 6
    g1sync = (1, 3)
    g2sync = (0, 1, 3)
    w2pre = 24
    la3 = 8
    w3a = 12
    w3b = 8
    w3d = 4
    w3f = 6
    la4 = 4
    s_ks = 16
    psleep = 0
    csleep = 2
    touch_nt = 'nt'
    touch = True
    out_fl = ''
    uprio = 3
    bprio = 0
    force_slow = False
    f1span = 24
    lag = 6
    w3e = 4
    w4a = 3
    w4ev = 20
    tailpk = False
    aprio = 3
    g4prio = 1
    pbf = 5
    cfpos = 1
    w2n = 8
    cprio = 0
    rt = False
    ssleep = 0
    w1l2 = False
    w4first = False
    w4s = False
    f4fl = 'nt'
    fpos = 16
    w2first = True
    now3 = False
    now4 = False
    noconv = False
    w2l2 = False
    aflag = 0.5
    gbound = 200000
    lbound = 1000000
cfg = Cfg()

S0, W0, X0 = 0, 32768, 98304
S_KF, S_XT, S_STP, S_CS1, S_ST, S_ST3, S_CS3, S_CNT = 0, 16640, 24832, 26880, 27904, 28480, 28992, 30016
CN = {n: S_CNT + 4 * i for i, n in enumerate(
    ['S', 'SA', 'XA0', 'XA1', 'KW', 'KR', 'WC0', 'WC1', 'WC2', 'WC3', 'G1', 'W2I', 'W2L', 'W', 'HC0', 'HC1', 'HC2', 'HC3', 'X0', 'XA',
     'B', 'STAT', 'FF', 'FU', 'F4', 'FS', 'D4a', 'D4b', 'MODE', 'CS4', 'W3I', 'E3', 'KY', 'CF', 'CU', 'CS', 'ST', 'KQ', 'KE'])}
U0, USZ, KCOPY = X0 + 49152, 4608, 4160
CX0 = X0
E30 = X0 + 32768
KROW, KSZ = 528, 16896
KB0 = W0 + 65536 - 2 * KSZ
FSCR = S0 + 30720
WS_FLAG = 0x10000
WS_CFLAG = 0x8000
WS_XS = 0x40000
WS_H, WS_X1, WS_H2, WS_UT, WS_ST, WS_W3, WS_W4, WS_STAMP = 0x100000, 0x300000, 0x500000, 0xA80000, 0xCC0000, 0xF00000, 0x1080000, 0x1400000
UPS, SRS = 8320, 4224
H2C, FMT = 2 * 88 * 1024, 196608
sW, sJ, sC, sIDX, sDEL = 3, 4, 5, 6, 7
SX, SW1, SW2, SW3, SWS, SOUT = 8, 12, 16, 20, 28, 32
sMODE, sFL, sCFO, sCPB = 24, 25, 26, 27
sEP = 68
sT = 70
sK = 80
sRET, sWSP, sTAB, sST = 88, 90, 92, 94
EPS = 1e-5
LOG2E = math.log2(math.e)
GA = 2 * math.sqrt(2 / math.pi) * LOG2E
GB = GA * 0.044715
ALPHA = GB ** (1 / 3)
GK = GA / ALPHA
WS = f's[{SWS}:{SWS+3}]'

a = Asm()
vL, vS, vOne, vT = 0, 1, 2, 3

class Stamps:
    def __init__(self): self.names = {'A': [], 'B': []}
    def put(self, role, name):
        if not cfg.stamps: return
        i = len(self.names[role]); self.names[role].append(name)
        if i > 0: a(f'v_writelane_b32 v{vOne}, s{sST + 2*((i-1) & 1)}, {i + 1}')
        r = sST + 2 * (i & 1)
        a(f's_mem{"real" if cfg.rt else ""}time s[{r}:{r+1}]')
    def flush(self, role):
        if not cfg.stamps: return
        a('s_memrealtime s[8:9]'); a('s_memtime s[10:11]')
        a('s_waitcnt lgkmcnt(0)')
        a(f'v_writelane_b32 v{vOne}, s8, 62'); a(f'v_writelane_b32 v{vOne}, s10, 61')
        i = len(self.names[role])
        a(f'v_writelane_b32 v{vOne}, s{sST + 2*((i-1) & 1)}, {i + 1}')
        a(f'v_writelane_b32 v{vOne}, s98, 1')
        a(f'v_writelane_b32 v{vOne}, s100, 63')
        a('v_lshlrev_b32 v5, 2, v0')
        a(f's_lshl_b32 s{sT}, s2, 11'); a(f's_lshl_b32 s{sT+1}, s{sW}, 8'); a(f's_add_u32 s{sT}, s{sT}, s{sT+1}')
        a(f's_add_u32 s{sT}, s{sT}, {WS_STAMP + (1024 if role == "B" else 0)}')
        a(f'buffer_store_dword v{vOne}, v5, {WS}, s{sT} offen sc1')
st = Stamps()

def S(dst, terms, const=0):
    first = True
    for r, m in terms:
        t = dst if first else sT + 9
        if m == 1: src = f's{r}'
        else:
            if m & (m - 1) == 0: a(f's_lshl_b32 s{t}, s{r}, {m.bit_length()-1}')
            else: a(f's_mul_i32 s{t}, s{r}, {m}')
            src = f's{t}'
        if first:
            if m == 1:
                if const: a(f's_add_u32 s{dst}, {src}, {const & 0xffffffff}'); const = 0
                elif r != dst: a(f's_mov_b32 s{dst}, {src}')
            first = False
        else: a(f's_add_u32 s{dst}, s{dst}, {src}')
    if const: a(f's_add_u32 s{dst}, s{dst}, {const & 0xffffffff}')

def srd(d, b, n):
    a(f's_mov_b32 s{d}, s{b}'); a(f's_mov_b32 s{d+1}, s{b+1}'); a(f's_mov_b32 s{d+2}, {n}'); a(f's_mov_b32 s{d+3}, 0x20000')

def signal(cn):
    a('s_mov_b64 exec, 1'); a.lg(f'ds_add_u32 v{vS}, v{vOne} offset:{CN[cn]}'); a('s_mov_b64 exec, -1')

def spin(cn, target, sleep=0, base=None):
    L = a.label('SP'); E = a.label('SPE')
    a(f's_mov_b32 s{sT+9}, {cfg.lbound}')
    a(f'{L}:')
    a(f'ds_read_b32 v{vT}, v{vS if base is None else base} offset:{CN[cn]}')
    a('s_waitcnt lgkmcnt(0)')
    a(f'v_readfirstlane_b32 s{sT+8}, v{vT}')
    a(f's_cmp_ge_u32 s{sT+8}, {target}')
    a(f's_cbranch_scc1 {E}')
    if sleep or cfg.ssleep: a(f's_sleep {max(sleep, cfg.ssleep)}')
    a(f's_sub_u32 s{sT+9}, s{sT+9}, 1')
    a(f's_cbranch_scc0 {L}')
    a(f'{E}:')
    a.lgq = []

def chk_issue(cn, v):
    a.lg(f'ds_read_b32 v{v}, v{vS} offset:{CN[cn]}', ('chk', cn))
def chk_wait(cn, v, target):
    LOK = a.label('OK')
    a.wlg(('chk', cn))
    a(f'v_readfirstlane_b32 s{sT+8}, v{v}'); a(f's_cmp_ge_u32 s{sT+8}, {target}'); a(f's_cbranch_scc1 {LOK}')
    saved = list(a.lgq)
    spin(cn, target)
    a.lgq = saved
    a(f'{LOK}:')

def publish_col(cn, off, tag=None, last=3):
    E = a.label('PB')
    if tag is None: a.vm0()
    else: a.wvm(tag)
    a('s_mov_b64 exec, 1')
    a(f'ds_add_rtn_u32 v{vT}, v{vS}, v{vOne} offset:{CN[cn]}')
    a.lg0()
    a(f'v_readfirstlane_b32 s{sT+8}, v{vT}')
    a(f's_cmp_eq_u32 s{sT+8}, {last}')
    a(f's_cbranch_scc0 {E}')
    a(f'v_mov_b32 v{vT}, s{sEP}')
    a(f'buffer_store_dword v{vT}, off, {WS}, s{sCFO} offset:{off} sc1')
    a(f'{E}:')
    a('s_mov_b64 exec, -1')

def flag(sown, off, tag, release, touch=None):
    LS, LE = a.label('FS'), a.label('FE')
    a.wvm(tag)
    a(f'v_mov_b32 v{vT}, s{sEP}')
    a('s_mov_b64 exec, 1')
    a(f's_cmp_lg_u32 s{sMODE}, 1'); a(f's_cbranch_scc1 {LS}')
    a(f'buffer_store_dword v{vT}, off, {WS}, s{sown} offset:{off}')
    a(f's_branch {LE}')
    a(f'{LS}:')
    if release: a('buffer_wbl2 sc1'); a('s_waitcnt vmcnt(0)')
    a(f'buffer_store_dword v{vT}, off, {WS}, s{sown} offset:{off} sc1')
    a(f'{LE}:')
    a.vmq.append('flag')
    if touch and cfg.touch:
        mask, ins = touch
        a(f's_mov_b32 exec_lo, {mask if isinstance(mask, str) else hex(mask)}')
        a.vm(ins, 'touch')
    a('s_mov_b64 exec, -1')

def pollc(sbase, off, nl, vl4, v, sleep=None):
    L = a.label('PL'); E = a.label('PLE'); LF = a.label('PLF')
    sleep = cfg.psleep if sleep is None else sleep
    a(f's_mov_b32 s{sT+9}, {cfg.gbound}')
    a(f's_mov_b64 exec, {hex((1 << nl) - 1)}') if nl < 32 else a('s_mov_b32 exec_hi, 0')
    a(f'{L}:')
    a(f'buffer_load_dword v{v}, v{vl4}, {WS}, s{sbase} offen offset:{off} sc1')
    a('s_waitcnt vmcnt(0)')
    a(f'v_cmp_ne_u32 vcc, s{sEP}, v{v}')
    a(f's_cbranch_vccz {E}')
    if sleep: a(f's_sleep {sleep}')
    a(f's_sub_u32 s{sT+9}, s{sT+9}, 1')
    a(f's_cbranch_scc0 {L}')
    a(f'{E}:')
    a('s_mov_b64 exec, -1')
    a(f's_cmp_eq_u32 s{sMODE}, 1'); a(f's_cbranch_scc1 {LF}')
    a('buffer_inv sc1'); a('s_waitcnt vmcnt(0)')
    a(f'{LF}:')
    a.vmq = []

def cp_issue(off, v, va, tag):
    a('s_mov_b32 exec_hi, 0'); a.vm(f'buffer_load_dword v{v}, v{va}, {WS}, s{sCPB} offen offset:{off} sc1', tag); a('s_mov_b32 exec_hi, -1')
def cp_check(off, v, va, tag):
    L = a.label('CP'); E = a.label('CPE')
    a.wvm(tag)
    a(f's_mov_b32 s{sT+9}, {cfg.gbound}')
    a('s_mov_b32 exec_hi, 0')
    a(f'{L}:')
    a(f'v_cmp_ne_u32 vcc, s{sEP}, v{v}')
    a(f's_cbranch_vccz {E}')
    a(f's_sleep {cfg.csleep}')
    a(f'buffer_load_dword v{v}, v{va}, {WS}, s{sCPB} offen offset:{off} sc1')
    a('s_waitcnt vmcnt(0)')
    a(f's_sub_u32 s{sT+9}, s{sT+9}, 1')
    a(f's_cbranch_scc0 {L}')
    a(f'{E}:')
    a('s_mov_b32 exec_hi, -1')

ZONE = [8, 16, 52, 60]
def spoll(off, cn, wave=0, ZONE=ZONE):
    L = a.label('SC'); E = a.label('SCE'); X = a.label('SCX')
    a(f's_cmp_lg_u32 s{sW}, {wave}'); a(f's_cbranch_scc1 {X}')
    a(f's_add_u32 s92, s{sWSP}, s{sCPB}'); a(f's_addc_u32 s93, s{sWSP+1}, 0')
    a(f's_mov_b32 s{sT+9}, {cfg.gbound}')
    a(f'{L}:')
    for k in range(4): a(f's_load_dwordx8 s[{ZONE[k]}:{ZONE[k]+7}], s[92:93], {off + 128*k} glc')
    a('s_waitcnt lgkmcnt(0)')
    prs = [z + 2*i for z in ZONE for i in range(4)]
    for p in prs: a(f's_xor_b64 s[{p}:{p+1}], s[{p}:{p+1}], s[{sEP}:{sEP+1}]')
    for p in prs[1:]: a(f's_or_b64 s[8:9], s[8:9], s[{p}:{p+1}]')
    a(f's_cbranch_scc0 {E}')
    a(f's_sleep {cfg.csleep}')
    a(f's_sub_u32 s{sT+9}, s{sT+9}, 1')
    a(f's_cbranch_scc0 {L}')
    a(f'{E}:')
    n = len(a.lgq); signal(cn); del a.lgq[n:]
    a(f'{X}:')

def gelu_ops(p, t, dst, pk):
    o = []
    if pk:
        o.append(f'v_pk_fma_f32 v[{t}:{t+1}], v[{p}:{p+1}], v[{p}:{p+1}], s[{sK}:{sK+1}]')
        o.append(f'v_pk_mul_f32 v[{t}:{t+1}], v[{t}:{t+1}], v[{p}:{p+1}]')
    else:
        for i in range(2): o.append(f'v_fma_f32 v{t+i}, -v{p+i}, v{p+i}, -s{sK}')
        for i in range(2): o.append(f'v_mul_f32 v{t+i}, v{t+i}, v{p+i}')
    for i in range(2): o.append(f'v_exp_f32 v{t+i}, {"-" if pk else ""}v{t+i}')
    if pk: o.append(f'v_pk_fma_f32 v[{t}:{t+1}], v[{t}:{t+1}], s[{sK+2}:{sK+3}], s[{sK+2}:{sK+3}]')
    else:
        for i in range(2): o.append(f'v_fma_f32 v{t+i}, v{t+i}, s{sK+2}, s{sK+2}')
    for i in range(2): o.append(f'v_rcp_f32 v{t+i}, v{t+i}')
    if pk: o.append(f'v_pk_mul_f32 v[{t}:{t+1}], v[{t}:{t+1}], v[{p}:{p+1}]')
    else:
        for i in range(2): o.append(f'v_mul_f32 v{t+i}, v{t+i}, v{p+i}')
    o.append(f'v_cvt_pk_bf16_f32 v{dst}, v{t}, v{t+1}')
    return o

def interleave(lists):
    out = []; n = max(len(l) for l in lists)
    for i in range(n):
        for l in lists:
            if i < len(l): out.append(l[i])
    return out

def padd(d, x, y, n, pk=True):
    if pk:
        for i in range(0, n, 2): a(f'v_pk_add_f32 v[{d+i}:{d+i+1}], v[{x+i}:{x+i+1}], v[{y+i}:{y+i+1}]')
    else:
        for i in range(n): a(f'v_add_f32 v{d+i}, v{x+i}, v{y+i}')

def unpack(dst, src, n):
    for d in range(n):
        a(f'v_lshlrev_b32 v{dst+2*d}, 16, v{src+d}'); a(f'v_and_b32 v{dst+2*d+1}, 0xffff0000, v{src+d}')

def finstat(m):
    a(f'v_mul_f32 v{m}, {hx(1/512)}, v{m}'); a(f'v_mul_f32 v{m+1}, {hx(1/512)}, v{m+1}')
    a(f'v_fma_f32 v{m+1}, -v{m}, v{m}, v{m+1}'); a(f'v_max_f32 v{m+1}, 0, v{m+1}'); a(f'v_add_f32 v{m+1}, {hx(EPS)}, v{m+1}')
    a(f'v_rsq_f32 v{m+1}, v{m+1}')

def M32(d, x, y, c): a(f'v_mfma_f32_32x32x16_bf16 {vr(d, 16)}, {vr(x, 4)}, {vr(y, 4)}, {"0" if c is None else vr(c, 16)}')
def M16(d, x, y, c): a(f'v_mfma_f32_16x16x32_bf16 {vr(d, 4)}, {vr(x, 4)}, {vr(y, 4)}, {"0" if c is None else vr(c, 4)}')


class Lane:
    def __init__(self, tmp): self.tmp = tmp; self.cache = {}
    def field(self, off, wd):
        if (off, wd) == (0, 6): return 0
        if (off, wd) not in self.cache:
            r = self.tmp + len(self.cache); self.cache[(off, wd)] = r
            if off == 0: a(f'v_and_b32 v{r}, {(1 << wd) - 1}, v0')
            elif off + wd == 6: a(f'v_lshrrev_b32 v{r}, {off}, v0')
            else: a(f'v_bfe_u32 v{r}, v0, {off}, {wd}')
        return self.cache[(off, wd)]
    def __call__(self, dst, terms, base=None):
        cur = base
        if isinstance(cur, int) and not (0 <= cur <= 64): late = cur; cur = None
        else: late = None
        terms = sorted(terms, key=lambda t: (t[2] & (t[2] - 1)) == 0)
        for off, wd, m in terms:
            f = self.field(off, wd)
            if m & (m - 1) == 0:
                sh = m.bit_length() - 1
                if cur is None: a(f'v_lshlrev_b32 v{dst}, {sh}, v{f}')
                else: a(f'v_lshl_add_u32 v{dst}, v{f}, {sh}, {cur}')
            else:
                assert cur != f'v{dst}'
                a(f'v_mul_u32_u24 v{dst}, {m}, v{f}')
                if cur is not None: a(f'v_add_u32 v{dst}, {cur}, v{dst}')
            cur = f'v{dst}'
        if late is not None: a(f'v_add_u32 v{dst}, {late}, v{dst}')

def gelu16(A_, CSV, GT, MS, stores, zero=None, pk=False):
    o = []
    for hf in range(2):
        for pr in range(2):
            chains = []
            for kk in range(2):
                p = A_ + 8*hf + 4*pr + 2*kk; c = CSV + 8*hf + 4*pr + 2*kk
                if pk:
                    chn = [f'v_pk_fma_f32 v[{p}:{p+1}], v[{c}:{c+1}], v[{MS}:{MS+1}], v[{p}:{p+1}] op_sel_hi:[1,0,1] neg_lo:[0,1,0] neg_hi:[0,1,0]',
                           f'v_pk_mul_f32 v[{p}:{p+1}], v[{MS}:{MS+1}], v[{p}:{p+1}] op_sel:[1,0] op_sel_hi:[1,1]']
                else:
                    chn = [f'v_fma_f32 v{p+i}, -v{c+i}, v{MS}, v{p+i}' for i in range(2)] + [f'v_mul_f32 v{p+i}, v{p+i}, v{MS+1}' for i in range(2)]
                chn += gelu_ops(p, GT + 2*kk, A_ + 8*hf + 2*pr + kk, pk)
                chains.append(chn)
            o += interleave(chains)
        if zero is not None and hf == 0: o += [f'v_and_b32 v{A_+i}, s{zero}, v{A_+i}' for i in range(4)]
        so_, off, tag = stores[hf]
        o.append(('vm', f'buffer_store_dwordx4 {vr(A_ + 8*hf, 4)}, v4, {WS}, s{so_} offen offset:{off} sc1', tag))
    return o

def consts():
    a(f's_mov_b32 s{sK}, {hx(GK)}'); a(f's_mov_b32 s{sK+1}, {hx(GK)}')
    a(f's_mov_b32 s{sK+2}, {hx(ALPHA)}'); a(f's_mov_b32 s{sK+3}, {hx(ALPHA)}')
    a(f's_mov_b32 s{sK+4}, 0x3f803f80')
    S(sFL, [(sC, 1024)], WS_FLAG)
    S(sCPB, [(sJ, 2048)], WS_CFLAG)

SWP = {}
def swp(y, ys):
    SWP[y] = ys
    return [f'v_mov_b32 v{ys}, v{y+1}', f'v_mov_b32 v{ys+1}, v{y}']
def cmul(d, x, y):
    ys = SWP[y]
    return [f'v_pk_mul_f32 v[{d}:{d+1}], v[{x}:{x+1}], v[{y}:{y+1}] op_sel_hi:[0,1]',
            f'v_pk_fma_f32 v[{d}:{d+1}], v[{x}:{x+1}], v[{ys}:{ys+1}], v[{d}:{d+1}] op_sel:[1,0,0] neg_lo:[0,1,0]']

def kpre(P, nmul, E, tmp):
    a('s_waitcnt lgkmcnt(0)')
    a(f's_bitcmp1_b32 s{sW}, 1'); a(f's_cselect_b32 s{sT}, 0, 16')
    a(f's_lshl_b32 s66, s66, s{sT}'); a('s_and_b32 s66, s66, 0xffff0000'); a(f's_lshl_b32 s67, s67, s{sT}'); a('s_and_b32 s67, s67, 0xffff0000')
    a(f'v_mov_b32 v{P+6}, {hx(LOG2E)}'); a(f'v_mul_f32 v{P+6}, s66, v{P+6}'); a(f'v_exp_f32 v{P+6}, v{P+6}')
    for i in range(6 if nmul == 4 else 2): a(f'v_lshlrev_b32 v{P+i}, 16, v{P+i}')
    a(f'v_cvt_pk_bf16_f32 v{P+6}, v{P+6}, v{P+6}'); a(f'v_and_b32 v{P+6}, 0xffff0000, v{P+6}')
    for i in range(nmul): a(f'v_mul_f32 v{P+i}, v{P+6}, v{P+i}')
    chains = []
    for n, (l, r) in enumerate(E.items()):
        t = tmp + 2 * n
        chains.append([f'v_mul_f32 v{t}, {hx(l*LOG2E)}, v{P}', f'v_mul_f32 v{t+1}, {hx(l/(2*math.pi))}, v{P+1}', f'v_exp_f32 v{t}, v{t}', f'v_fract_f32 v{t+1}, v{t+1}',
                       f'v_cos_f32 v{r}, v{t+1}', f'v_sin_f32 v{r+1}, v{t+1}', f'v_mul_f32 v{r}, v{r}, v{t}', f'v_mul_f32 v{r+1}, v{r+1}, v{t}'])
    for x in interleave(chains): a(x)

vL16 = 4
sD = sT + 4
def prologue():
    if cfg.stamps:
        a('s_memtime s[98:99]'); a('s_memrealtime s[100:101]')
    a('s_load_dwordx16 s[36:51], s[0:1], 0')
    a('s_load_dwordx8 s[56:63], s[0:1], 80')
    a(f's_load_dwordx2 s[{sWSP}:{sWSP+1}], s[0:1], 128')
    a('s_load_dwordx2 s[52:53], s[0:1], 64')
    a('s_load_dwordx2 s[64:65], s[0:1], 112')
    a('s_cmp_ge_u32 s2, 256'); a('s_cbranch_scc1 L_exit')
    a('v_lshrrev_b32 v3, 6, v0')
    a('v_and_b32 v0, 63, v0')
    a(f'v_readfirstlane_b32 s{sW}, v3')
    a(f's_getpc_b64 s[{sT+2}:{sT+3}]')
    a('L_pc:')
    a(f's_lshr_b32 s{sJ}, s2, 3'); a(f's_and_b32 s{sJ}, s{sJ}, 7')
    a('v_lshlrev_b32 v5, 7, v0'); a(f'v_lshlrev_b32 v{vL16}, 4, v0')
    a(f's_cmp_lg_u32 s{sW}, 7'); a('s_cbranch_scc1 L_nocode')
    a(f's_and_b32 s{sT}, s{sJ}, 3'); a(f's_lshl_b32 s{sT}, s{sT}, 13'); a(f'v_add_u32 v6, s{sT}, v5')
    a(f'v_min_u32 v6, L_codeend-L_pc-4, v6')
    a(f'global_load_dword v127, v6, s[{sT+2}:{sT+3}]')
    a('L_nocode:')
    a(f's_and_b32 s{sC}, s2, 7'); a(f's_lshl_b32 s{sC}, s{sC}, 2'); a(f's_lshr_b32 s{sT}, s2, 6'); a(f's_add_u32 s{sC}, s{sC}, s{sT}')
    a(f's_lshl_b32 s{sIDX}, s{sC}, 3')
    a(f's_lshr_b32 s{sT}, s{sJ}, 2'); a(f's_add_u32 s{sDEL}, s{sT}, 1')
    a(f's_sub_u32 s{sT}, 0, s{sDEL}')
    a(f's_bitcmp1_b32 s{sJ}, 1'); a(f's_cselect_b32 s{sDEL}, s{sDEL}, s{sT}')
    a(f'v_mov_b32 v{vS}, {S0}'); a(f'v_mov_b32 v{vOne}, 1')
    a(f's_cmp_lt_u32 s{sW}, 4'); a('s_cbranch_scc1 L_A')
    a('s_setprio 3')
    a(f's_sub_u32 s{sW}, s{sW}, 4')
    a(f's_bfe_u32 s{sT}, s{sW}, 0x10001'); S(sD, [(sJ, 64), (sC, 2), (sT, 1)])
    a(f's_and_b32 s{sT+1}, s{sW}, 1'); S(sT, [(sD, 256), (sT + 1, 128)])
    a(f'v_lshl_add_u32 v8, v0, 1, s{sT}')
    a(f's_lshl_b32 s{sT+6}, s{sD}, 1'); a(f's_andn2_b32 s{sT+6}, s{sT+6}, 3')
    a(f's_add_u32 s{sT}, s{sIDX}, s{sJ}')
    a(f's_lshl_b32 s{sT+1}, s{sT}, 13'); a(f'v_add_u32 v6, s{sT+1}, v5')
    a(f's_lshl_b32 s{sT+1}, s{sT}, 11'); a(f'v_add_u32 v7, s{sT+1}, v5')
    a(f'v_lshlrev_b32 v10, 2, v0'); a('v_mov_b32 v11, 0')
    a(f'ds_write_b32 v10, v11 offset:{S_CNT}')
    S(sT, [(sC, 1024)], WS_FLAG); a(f'v_add_u32 v10, s{sT}, v5')
    a('v_lshrrev_b32 v12, 2, v0'); a('v_mul_u32_u24 v12, 2688, v12'); a(f'v_add_u32 v12, v12, v{vL16}')
    S(73, [(sC, 16*2752), (sJ, 352), (sW, 192)])
    a(f's_cmp_ge_u32 s{sJ}, 6'); a(f's_cselect_b32 s{sT}, 32, 0'); a(f's_sub_u32 s73, s73, s{sT}')
    a('v_lshrrev_b32 v60, 3, v0'); a(f'v_mul_u32_u24 v60, 896, v60'); a(f'v_add_u32 v60, v60, v{vL16}')
    a(f's_cmp_lt_i32 s{sDEL}, 0'); a(f's_cselect_b32 s75, 64, -2'); a(f's_add_u32 s75, s75, s{sDEL}')
    S(sT, [(sC, 65536), (75, 1024)]); a(f'v_lshl_add_u32 v61, v0, 5, s{sT}')
    S(77, [(sC, 65536), (sJ, 128), (sW, 16384)])
    a(f's_lshl_b32 s{sT+1}, s{sW}, 11'); a(f's_add_u32 m0, s{sT+1}, {S0 + S_XT}')
    a('s_waitcnt lgkmcnt(0)')
    nt = cfg.touch_nt
    for i in range(6): a(f'global_load_ushort v{48+i}, v8, s[{38+2*i}:{39+2*i}] {nt}')
    a(f's_load_dword s66, s[50:51], s{sT+6}'); a(f's_load_dword s67, s[52:53], s{sT+6}')
    a(f's_load_dword s{sEP}, s[{sWSP}:{sWSP+1}], 0')
    srd(SX, 36, 2097152)
    a(f's_cmp_eq_u32 s{sW}, 2'); a('s_cbranch_scc1 L_f2b')
    a(f's_cmp_eq_u32 s{sW}, 3'); a('s_cbranch_scc1 L_f2c')
    srd(SW3, 60, 1409024)
    for m in range(3): a(f'buffer_load_dwordx4 {vr(240 + 4*m, 4)}, v12, s[{SW3}:{SW3+3}], s73 offen offset:{64*m} {nt}')
    a('s_branch L_f2d')
    a('L_f2b:')
    a(f'global_load_dword v56, v6, s[36:37] {nt}')
    a('s_mov_b64 exec, 0xffff')
    a('global_load_dword v57, v7, s[56:57]')
    a('global_load_dword v58, v7, s[58:59]')
    a('s_branch L_f2d')
    a('L_f2c:')
    for k in range(2): a(f'buffer_load_dwordx4 {vr(232 + 4*k, 4)}, v61, s[{SX}:{SX+3}], 0 offen offset:{16*k}')
    a('s_mov_b64 exec, 0x1f')
    a(f'global_load_dword v56, v10, s[{sWSP}:{sWSP+1}] sc1')
    a('L_f2d:')
    a('s_mov_b64 exec, -1')
    a(f'buffer_load_dwordx4 v60, s[{SX}:{SX+3}], s77 offen lds')
    a('s_addk_i32 m0, 1024'); a('s_addk_i32 s77, 8192')
    a(f'buffer_load_dwordx4 v60, s[{SX}:{SX+3}], s77 offen lds')
    a('s_barrier')
    a('s_setprio 1')
    a('s_branch L_B')
    a('L_exit:')
    a('s_endpgm')
    a('L_A:')

his = list(range(9)) + [256, 258, 260, 262, 264, 512, 516, 520, 768, 772, 776, 1024, 1032, 1280, 1288, 1536, 1544, 1792, 1800]
h0 = list(range(9)) + [512, 516, 520, 1024, 1032, 1536, 1544]
h1 = [256, 256, 258, 260, 260, 260, 262, 264, 264, 768, 772, 776, 1280, 1288, 1792, 1800]
rowof = lambda v, half: (v & 3) + 8 * (v >> 2) + 4 * half
xrows = {h: [rowof(v, 0) for v, x in enumerate(h0) if x == h] + [rowof(v, 1) for v, x in enumerate(h1) if x == h] for h in his}

def role_A():
    vXF = list(range(16, 24)); vW1 = list(range(24, 28))
    vW, vL4, vXA, vSW, vSR, vCR, vW2, vW2b, vXT, vST, vHF, vXS, vS3 = range(28, 41)
    vCP, vSD, vDW, vL4b = 12, 13, 14, 15
    vCK = 7
    XF, RG, ACC, CSA = 128, 64, 96, 112
    s16W, sOWN, sPB, sJP, sFO, sFP = sT + 5, 40, 41, 42, 43, 44
    sOA, sOB, sH, sX1, sXS, sXSL, sW4, sHL, sX1L, sSD, sH2, sXC = sT + 6, 46, 47, 48, 49, 50, 51, 52, 53, 54, 55, 38
    a('v_lshrrev_b32 v10, 4, v0'); a('v_and_b32 v11, 15, v0')
    a('v_xor_b32 v11, v11, v10'); a('v_lshlrev_b32 v11, 4, v11')
    S(sT, [(sC, 65536), (sDEL, 1024), (sW, 256)])
    a(f'v_lshl_add_u32 v12, v10, 10, s{sT}')
    for m in range(4):
        if m == 0: a('v_add_u32 v56, v12, v11')
        else:
            a(f'v_xor_b32 v13, {64*m}, v11'); a(f'v_add_u32 v13, {4096*m}, v13'); a(f'v_add_u32 v{56+m}, v12, v13')
    a('v_add_u32 v60, 0x4000, v56')
    a(f's_mov_b32 s{sT+2}, 0x4000'); a(f's_mov_b32 s{sT+3}, 0x8000'); a(f's_mov_b32 s{sT+4}, 0xc000')
    a(f's_lshl_b32 s{s16W}, s{sW}, 14')
    a('s_setprio 2')
    a(f's_mov_b32 s{sK+4}, 0x3f803f80')
    S(sOA, [(sW, 131072), (sJ, 128)])
    sTH, sNH, sSS, sHS, sZ, sTM = 66, 67, 39, 58, 60, 61
    a(f's_lshr_b32 s{sTH}, s{sW}, 1'); a(f's_and_b32 s{sNH}, s{sW}, 1')
    L = Lane(100)
    hf_, l15 = L.field(5, 1), L.field(0, 4)
    a(f'v_xor_b32 v8, v{l15}, v{hf_}')
    S(sT, [(sTH, 8192), (sW, 16384)]); L(9, [(0, 5, 256)], f's{sT}'); a('v_lshl_add_u32 v8, v8, 4, v9')
    a(f's_mov_b32 s{sT}, {X0}')
    for c_ in range(4):
        a(f'v_xor_b32 v9, {c_ << 14}, v8'); a(f'v_add_u32 v{XF + 32*c_}, s{sT}, v9')
        for ks in range(1, 8): a(f'v_xor_b32 v{XF + 32*c_ + 4*ks}, {ks << 5}, v{XF + 32*c_}')
    for ks in range(8): a(f'v_xor_b32 v{RG + 4*ks}, 0x2000, v{XF + 4*ks}')
    L(9, [(2, 2, 128), (4, 1, 32), (0, 2, 8), (3, 1, 64)]); a(f's_lshl_b32 s{sT}, s{sNH}, 6'); a(f'v_xor_b32 v9, s{sT}, v9')
    L(8, [(5, 1, 1024)], 'v9'); a(f'v_add_u32 v8, s{s16W}, v8')
    for q in range(4): a(f'v_xor_b32 v{vW1[q]}, {q << 14}, v8')
    L(vW, [(3, 3, 1024), (0, 3, 16)]); L(8, [(4, 1, 64)]); a(f'v_xor_b32 v{vW}, v{vW}, v8')
    L(vL4, [(0, 6, 4)])
    a(f's_lshl_b32 s{sT}, s{sW}, 8'); a(f'v_add_u32 v{vSW}, s{sT}, v{vL4}')
    S(sT, [(sT, 1), (sTH, 1024)]); a(f'v_add_u32 v{vXA}, s{sT}, v{vL4}'); a(f'v_xor_b32 v16, 0x400, v{vXA}')
    a('v_mov_b32 v17, v9')
    a('s_waitcnt lgkmcnt(0)')
    srd(SX, 36, 2097152)
    a('s_barrier')
    a(f's_load_dword s{sEP}, s[{sWSP}:{sWSP+1}], 0')
    srd(SW1, 56, 524288); srd(SWS, sWSP, 268435456); srd(SW2, 58, 524288)
    srd(SW3, 62, 1409024)
    sF4 = 36
    S(sF4, [(sC, 48*1024), (sJ, 128)])
    a('v_lshrrev_b32 v47, 2, v0'); a('v_mul_u32_u24 v47, 960, v47'); a(f'v_add_u32 v47, v47, v{vL16}')
    a(f's_lshr_b32 s{sOB}, s2, 3'); S(sOB, [(sOB, 16384), (sW, 4096)])
    def dmaX(i, first=False):
        m, blk = i & 3, i >> 2
        v = 60 if (m == 0 and blk > 0) else 56 + m
        b = blk - 1 if (m == 0 and blk > 0) else blk
        so = '0' if b == 0 else f's{sT+1+b}'
        if first: a(f's_add_u32 m0, s{s16W}, {X0 + 1024*i}')
        else: a('s_addk_i32 m0, 1024')
        a.vm(f'buffer_load_dwordx4 v{v}, s[{SX}:{SX+3}], {so} offen lds', ('x', i))
    st.put('A', 'setup')
    consts()
    a(f's_and_b32 s{sJP}, s{sJ}, 1')
    S(sOWN, [(sIDX, 8192), (sJ, 8192)]); S(sPB, [(sW, 16384), (sIDX, 8192), (sJP, 8192)])
    S(sFO, [(sJ, 16), (sW, 4), (sFL, 1)]); S(sFP, [(sW, 32), (sFL, 1)])
    S(sH, [(sW, 2048), (sOWN, 1)], WS_H); a(f's_add_u32 s{sX1}, s{sH}, {WS_X1 - WS_H}')
    a(f's_lshr_b32 s{sXS}, s{sOWN}, 3'); S(sXS, [(sXS, 1), (sW, 256)], WS_XS); S(sXSL, [(sIDX, 1024)], WS_XS)
    S(sW4, [(sW, 22*2048), (sJ, FMT)], WS_W4)
    a(f's_cmp_eq_u32 s{sW}, 3'); a(f's_cselect_b32 s{sT}, 2048, 0'); a(f's_sub_u32 s{sW4}, s{sW4}, s{sT}')
    a(f's_add_u32 s{sHL}, s{sPB}, {WS_H}'); a(f's_add_u32 s{sX1L}, s{sPB}, {WS_X1}')
    S(sH2, [(sC, H2C), (sW, 22*1024)], WS_H2)
    S(sSS, [(sJ, 64*SRS), (sC, 2*SRS), (sTH, SRS), (sNH, 2048)], WS_ST)
    S(sHS, [(sC, H2C), (sJ, 11*1024), (sTH, 2048), (sNH, 88*1024)], WS_H2 + 8192)
    a(f's_cmp_ge_u32 s{sW}, 2'); a(f's_cselect_b32 s{sHS+1}, 0x80000000, s{sHS}'); a(f's_cselect_b32 s{sTM}, 0xff, -1'); a(f's_and_b32 s{sTM}, s{sTM}, 0xffff')
    a(f's_or_b32 s{sT}, s{sJ}, 2'); S(sT, [(sT, 2), (sTH, 1)]); a(f's_cmp_eq_u32 s{sT}, 15'); a(f's_cselect_b32 s{sZ}, 0, -1')
    a(f's_lshr_b32 s{sT}, s{sC}, 3'); a(f's_and_b32 s{sT+1}, s{sC}, 7'); S(sCFO, [(sT, 128), (sT + 1, 4), (sCPB, 1)])
    S(sT, [(sJP, 8192)], X0); L(vW2, [(5, 1, 512)], 'v17'); a(f'v_add_u32 v{vW2}, s{sT}, v{vW2}'); a(f'v_xor_b32 v{vW2b}, 0x2000, v{vW2}')
    S(sT, [(sTH, 1024)], S0 + S_STP); L(vSR, [(0, 5, 4)], f's{sT}')
    a(f's_lshl_b32 s{sT}, s{sNH}, 8'); L(vCR, [(5, 1, 16)], f's{sT}')
    S(sT, [(sTH, 4096), (sNH, 64)]); L(vXT, [(0, 5, 128), (5, 1, 8)], f's{sT}')
    a(f's_lshl_b32 s{sT}, s{sTH}, 8'); L(vST, [(0, 5, 8)], f's{sT}')
    S(sT, [(sTH, 4096)], W0); a(f'v_add_u32 v{vHF}, s{sT}, v{vL16}')
    S(sT, [(sTH, 512), (sNH, 64)]); L(vXS, [(4, 1, 256), (5, 1, 128), (0, 4, 4)], f's{sT}')
    a(f's_lshl_b32 s{sT}, s{sW}, 7'); L(vS3, [(0, 4, 8)], f's{sT}')
    S(sT, [(sW, 8192), (sNH, 4096)], CX0); L(43, [(1, 4, 16), (0, 1, 512), (5, 1, 1024)], f's{sT}')
    S(sT, [(sTH, 512)], S0 + S_CS3); L(44, [(5, 1, 16)], f's{sT}')
    a(f's_lshl_b32 s{sT}, s{sNH}, 8'); L(45, [(0, 5, 8)], f's{sT}')
    L(41, [(3, 3, 128), (0, 3, 4)])
    st.put('A', 'setup2')
    def fdma():
        for k in range(2):
            a(f's_add_u32 s{sT}, s{sW}, {4*k}'); a(f's_cmp_ge_u32 s{sT}, 3'); a(f's_cselect_b32 s{sT+1}, 1, 0')
            a(f's_lshl_b32 s{sT+8}, s{sT+1}, 10'); a(f's_lshl_b32 s{sT+9}, s{sT}, 10'); a(f's_add_u32 s{sT+8}, s{sT+8}, s{sT+9}')
            a(f's_min_u32 s{sT+8}, s{sT+8}, 7168'); a(f's_add_u32 m0, s{sT+8}, {S0 + S_KF + 8192}')
            a(f's_mul_i32 s{sT+1}, s{sT+1}, {(64 - 3*16384) & 0xffffffff}'); a(f's_lshl_b32 s{sT+9}, s{sT}, 14'); a(f's_add_u32 s{sT+1}, s{sT+1}, s{sT+9}')
            a(f's_add_u32 s{sT+1}, s{sT+1}, s{sF4}'); a(f's_cmp_ge_u32 s{sT}, 6'); a(f's_cselect_b32 s{sT+1}, 0x80000000, s{sT+1}')
            a.vm(f'buffer_load_dwordx4 v47, s[{SW3}:{SW3+3}], s{sT+1} offen {cfg.f4fl} lds', 'f')
    for i in range(16):
        if i == cfg.fpos: fdma()
        dmaX(i, i in (0, cfg.fpos))
    if cfg.fpos == 16: fdma()
    nq = [0]
    def pump(n=1):
        for _ in range(n):
            i = nq[0]
            if i >= 16: return
            nq[0] += 1
            if i == 0: a(f's_add_u32 m0, s{s16W}, {W0}')
            else: a('s_addk_i32 m0, 1024'); a(f's_addk_i32 s{sOA}, 8192')
            a.vm(f'buffer_load_dwordx4 v{vW}, s[{SW1}:{SW1+3}], s{sOA} offen lds', ('w1', i >> 3))
    for i in range(48, 52): a(f'v_mov_b32 v{i}, 0')
    for i in range(60, 64): a(f'v_mov_b32 v{i}, s{sK+4}')
    a('s_setprio 2')
    LT1, LTE = a.label('TH'), a.label('TH')
    a(f's_cmp_eq_u32 s{sTH}, 1'); a(f's_cbranch_scc1 {LT1}')
    saved = (list(a.vmq), list(a.lgq))
    for var in range(2):
        if var:
            a(f'{LT1}:'); a.vmq, a.lgq = list(saved[0]), list(saved[1]); nq[0] = 0
        for ph in range(2):
            own = (ph == var); B_ = XF if own else RG; acc_ = 48 if own else 50
            a.wvm(('x', 8*ph + 7))
            if ph: signal('XA1')
            for ks in range(8): a.lg(f'ds_read_b128 {vr(B_ + 4*ks, 4)}, v{B_ + 4*ks}', ('xs', ph, ks))
            for ks in range(8):
                pump()
                a.wlg(('xs', ph, ks))
                for d in range(4):
                    r = B_ + 4*ks + d
                    a(f'v_dot2c_f32_bf16 v{acc_}, s{sK+4}, v{r}'); a(f'v_dot2c_f32_bf16 v{acc_+1}, v{r}, v{r}')
                if ph and ks == 4: chk_issue('XA1', vCK)
        if var == 0: a(f's_branch {LTE}')
    a(f'{LTE}:')
    a('s_nop 2')
    chk_wait('XA1', vCK, 4)
    rest = [n for n in range(8, 32) if (n & 7) < 4] + [n for n in range(8, 32) if (n & 7) >= 4]
    for n in rest[:8]: a.lg(f'ds_read_b128 {vr(XF + 4*n, 4)}, v{XF + 4*n}')
    a('v_permlane32_swap_b32 v48, v49'); a('v_permlane32_swap_b32 v50, v51'); a('v_add_f32 v48, v48, v49'); a('v_add_f32 v50, v50, v51')
    a.lg(f'ds_write_b32 v{vXA}, v48 offset:{S0 + S_STP}'); a.lg(f'ds_write_b32 v16, v50 offset:{S0 + S_STP}')
    a.wvm('f')
    signal('S')
    st.put('A', 'S')
    if cfg.w4s:
        a('s_mov_b64 exec, 0x7ff'); a.vm(f'buffer_load_dword v47, v5, s[{SW3}:{SW3+3}], s45 offen', 'tw4'); a('s_mov_b64 exec, -1')
    if cfg.w2l2:
        a('s_mov_b32 exec_hi, 0'); a.vm(f'buffer_load_dword v55, v5, s[{SW2}:{SW2+3}], s{sOB} offen', 'tw2'); a('s_mov_b32 exec_hi, -1')
    for n in rest[8:]: a.lg(f'ds_read_b128 {vr(XF + 4*n, 4)}, v{XF + 4*n}')
    a.wvm(('w1', 0)); signal('WC0')
    spin('WC0', 4)
    st.put('A', 'g1_go')
    seq = [8*c_ + ks for c_ in range(4) for ks in range(4)] + [8*c_ + ks for c_ in range(4) for ks in range(4, 8)]
    def rdw(pos):
        n = seq[pos]
        for p in range(2):
            a.lg(f'ds_read_b64_tr_b16 {vr(RG + 4*(pos % 8) + 2*p, 2)}, v{vW1[n >> 3]} offset:{W0 + 2048*(n & 7) + 512*p}', ('wf', pos))
    LA = cfg.la1
    for pos in range(LA): rdw(pos)
    mark = len(a.L)
    padd(8, 8, 12, 4, False); padd(52, 8, 10, 2, False)
    finstat(52)
    a('v_mul_f32 v8, v53, v53'); a(f'v_mov_b32 v9, {hx(1 + EPS)}'); a(f'v_fmac_f32 v9, {hx(-EPS)}, v8')
    a('v_rsq_f32 v9, v9')
    a(f'v_mul_f32 v53, s{sK+2}, v53'); a('v_mul_f32 v53, v53, v9')
    a(f's_add_u32 s{sEP}, s{sEP}, 1'); a(f's_mov_b32 s{sEP+1}, s{sEP}')
    a(f's_getreg_b32 s{sXC}, hwreg(HW_REG_XCC_ID, 0, 4)')
    if cfg.force_slow: a(f's_mov_b32 s{sXC}, s{sJ}')
    a(f's_lshl_b32 s{sXC}, s{sXC}, 28'); a(f's_add_u32 s{sXC}, s{sXC}, s{sEP}')
    side = a.L[mark:]; del a.L[mark:]
    for pos in range(32):
        n = seq[pos]
        if pos == 1:
            for w2 in range(4): a.lg(f'ds_read2_b32 v[{8+2*w2}:{9+2*w2}], v{vSR} offset0:{64*w2} offset1:{64*w2+32}', 'sp')
        if pos == 16 - LA - 4: a.wvm(('w1', 1)); signal('WC1')
        if pos == 16 - LA - 2: chk_issue('WC1', vCK)
        if pos == 16 - LA: chk_wait('WC1', vCK, 4)
        if pos == 20:
            a('s_mov_b64 exec, 0xff'); a.vm(f'buffer_load_dword v54, v{vL4}, {WS}, s{sFL} offen offset:768 sc1', 'md'); a('s_mov_b64 exec, -1')
        if pos + LA < 32: rdw(pos + LA)
        a.wlg(('wf', pos))
        if n < 16: M32(CSA, 60, RG + 4*(pos % 8), None if pos == 0 else CSA)
        M32(ACC, RG + 4*(pos % 8), XF + 4*n, None if pos == 0 else ACC)
        if pos >= 11:
            for _ in range(2):
                if side: a(side.pop(0))
        if pos == 26:
            a.lg(f'ds_write_b32 v{vSW}, v{CSA} offset:{S0 + S_CS1}')
            signal('G1')
        if pos == 29: chk_issue('G1', vCK)
    assert not side
    st.put('A', 'g1_mfma')
    chk_wait('G1', vCK, 4)
    CSR = XF
    for q in range(4):
        for s_ in range(2): a.lg(f'ds_read_b128 {vr(CSR + 16*s_ + 4*q, 4)}, v{vCR} offset:{S0 + S_CS1 + 512*s_ + 32*q}', ('cs', q >> 1))
    for hf in range(2):
        a.wlg(('cs', hf))
        padd(CSR + 8*hf, CSR + 8*hf, CSR + 16 + 8*hf, 8)
        chains = []
        for i in range(0, 8, 2):
            o = ACC + 8*hf + i; c = CSR + 8*hf + i
            ch = [f'v_pk_fma_f32 v[{o}:{o+1}], v[{c}:{c+1}], v[52:53], v[{o}:{o+1}] op_sel_hi:[1,0,1] neg_lo:[0,1,0] neg_hi:[0,1,0]',
                  f'v_pk_mul_f32 v[{o}:{o+1}], v[52:53], v[{o}:{o+1}] op_sel:[1,0] op_sel_hi:[1,1]']
            ch += gelu_ops(o, RG + i, 56 + 4*hf + i // 2, True)
            chains.append(ch)
        for x in interleave(chains): a(x)
        a.vm(f'buffer_store_dwordx4 {vr(56 + 4*hf, 4)}, v{vL16}, {WS}, s{sH} offen offset:{1024*hf} sc1', 'hst')
    st.put('A', 'h_stored')
    LMP, LME = a.label('MD'), a.label('MD')
    a.wvm('md')
    a(f's_mov_b32 s{sT+9}, {cfg.gbound}')
    a('s_mov_b64 exec, 0xff')
    a(f'{LMP}:')
    a(f'v_subrev_u32 v8, s{sEP}, v54'); a('v_and_b32 v8, 0x0fffffff, v8')
    a('v_cmp_ne_u32 vcc, 0, v8')
    a(f's_cbranch_vccz {LME}')
    a(f's_sleep {cfg.csleep}')
    a(f'buffer_load_dword v54, v{vL4}, {WS}, s{sFL} offen offset:768 sc1')
    a('s_waitcnt vmcnt(0)')
    a(f's_sub_u32 s{sT+9}, s{sT+9}, 1'); a(f's_cbranch_scc0 {LMP}')
    a(f'{LME}:')
    a(f'v_cmp_ne_u32 vcc, s{sXC}, v54')
    a('s_cmp_eq_u64 vcc, 0'); a(f's_cselect_b32 s{sMODE}, 1, 2')
    a(f'v_mov_b32 v8, s{sMODE}')
    a('s_mov_b64 exec, 1'); a.lg(f'ds_write_b32 v{vS}, v8 offset:{CN["MODE"]}'); a('s_mov_b64 exec, -1')
    spin('W2L', 4)
    def rdw2(n):
        for p in range(2):
            a.lg(f'ds_read_b64_tr_b16 {vr(XF + 4*n + 2*p, 2)}, v{vW2b if n & 4 else vW2} offset:{2048*(n & ~4) + 1024*p}', 'w2f')
    for q in range(4): a.lg(f'ds_read_b64 v[{8+2*q}:{9+2*q}], v{vXT} offset:{S0 + S_XT + 16*q}', 'xt')
    a.lg(f'ds_read_b64 v[50:51], v{vST} offset:{S0 + S_ST + 16}', 'xt')
    for n in range(cfg.w2pre): rdw2(n)
    flag(sFO, 0, 'hst', False)
    st.put('A', 'h_flag')
    for n in range(cfg.w2pre, 32): rdw2(n)
    signal('W')
    a.wlg('xt')
    unpack(ACC, 8, 8)
    for i in range(16): a(f'v_sub_f32 v{ACC+i}, v{ACC+i}, v50')
    for i in range(16): a(f'v_mul_f32 v{ACC+i}, v{ACC+i}, v51')
    st.put('A', 'rdy')
    def image(sbase, tag, c):
        pp, rh = c >> 1, c & 1
        if c == 2: a(f's_xor_b32 s{sbase}, s{sbase}, 8192')
        if rh == 0: a(f's_add_u32 s{sOB}, s{sbase}, 4096')
        for th in range(2):
            a(f's_add_u32 m0, s{s16W}, {W0 + 8192*pp + 4096*th}')
            for r in range(2*rh, 2*rh + 2):
                a.vm(f'buffer_load_dwordx4 v{vL16}, {WS}, s{sOB if th else sbase} offen offset:{1024*r} sc1 lds', (tag, c))
    pollc(sFP, 0, 8, vL4, 48)
    st.put('A', 'h_seen')
    for c in range(3): image(sHL, 'h', c)
    seq2 = [8*w2 + 4*(c >> 1) + 2*(c & 1) + r for c in range(4) for w2 in range(4) for r in range(2)]
    def rdh(pos):
        n = seq2[pos]
        a.lg(f'ds_read_b128 {vr(RG + 4*(pos % 8), 4)}, v{vHF} offset:{8192*(n >> 2) + 1024*(n & 3)}', ('hf', pos))
    g2s = cfg.g2sync
    a.wvm(('h', g2s[0])); signal('HC0'); image(sHL, 'h', 3); spin('HC0', 4)
    st.put('A', 'g2_go')
    LA2 = 5
    for pos in range(LA2): rdh(pos)
    for pos in range(32):
        c = pos >> 3
        if c in g2s[:-1]:
            nx = g2s[g2s.index(c) + 1]
            if pos % 8 == 0: a.wvm(('h', nx)); signal(f'HC{nx}')
            if pos % 8 == 1: chk_issue(f'HC{nx}', vCK)
            if pos % 8 == 8 - LA2: chk_wait(f'HC{nx}', vCK, 4)
        if pos + LA2 < 32: rdh(pos + LA2)
        a.wlg(('hf', pos))
        M32(ACC, XF + 4*seq2[pos], RG + 4*(pos % 8), ACC)
    st.put('A', 'g2_mfma')
    for hf in range(2):
        for i in range(4): a(f'v_cvt_pk_bf16_f32 v{56+4*hf+i}, v{ACC+8*hf+2*i}, v{ACC+8*hf+2*i+1}')
        a.vm(f'buffer_store_dwordx4 {vr(56 + 4*hf, 4)}, v{vL16}, {WS}, s{sX1} offen offset:{1024*hf} sc1', 'x1st')
    for k in range(2):
        a(f'v_add_f32 v{8+2*k}, v{ACC+8*k}, v{ACC+8*k+1}'); a(f'v_mul_f32 v{9+2*k}, v{ACC+8*k}, v{ACC+8*k}')
    for i in range(1, 8):
        for k in range(2):
            if i > 1: a(f'v_add_f32 v{8+2*k}, v{8+2*k}, v{ACC+8*k+i}')
            a(f'v_fmac_f32 v{9+2*k}, v{ACC+8*k+i}, v{ACC+8*k+i}')
    a('v_add_f32 v8, v8, v10'); a('v_add_f32 v9, v9, v11')
    a('v_permlane32_swap_b32 v8, v9'); a('v_add_f32 v8, v8, v9')
    for q in range(1, 4): a(f'v_mov_b32_dpp v{8+q}, v8 quad_perm:[{q},{q},{q},{q}] row_mask:0xf bank_mask:0xf')
    a('s_mov_b32 exec_lo, 0x11111111'); a('s_mov_b32 exec_hi, 0x11111111')
    a.vm(f'buffer_store_dwordx4 v[8:11], v{vL4}, {WS}, s{sXS} offen sc1', 'x1st')
    a('s_mov_b64 exec, -1')
    st.put('A', 'x1_stored')
    a(f'v_mov_b32 v{vCP}, v41')
    a(f's_add_u32 s{sT}, s{s16W}, {X0}'); a(f'v_add_u32 v{vDW}, s{sT}, v{vL16}')
    W4F, ACC4, RING = 80, 48, 16
    flag(sFO, 128, 'x1st', False)
    st.put('A', 'x1_flag')
    pollc(sFL, 128, 32, vL4, 48)
    st.put('A', 'x1_seen')
    for c in range(3): image(sX1L, 'x1', c)
    chk_issue('W3I', vCK)
    a.wvm(('x1', 0)); signal('X0')
    image(sX1L, 'x1', 3)
    a.wvm(('x1', 1)); signal('XA0')
    for q in range(8):
        if q == 4: a(f's_addk_i32 s{sXSL}, 4096')
        a.vm(f'buffer_load_dword v{48+q}, v{vXS}, {WS}, s{sXSL} offen offset:{1024*(q & 3)} sc1', 'xs')
    chk_wait('W3I', vCK, 4)
    a.wvm(('x1', 3)); signal('XA')
    st.put('A', 'x1_in')
    def w4issue(ks):
        for nt_ in range(2):
            a.vm(f'buffer_load_dwordx4 {vr(W4F + 8*ks + 4*nt_, 4)}, v{vL16}, {WS}, s{sW4} offen offset:{2048*(ks & 1) + 1024*nt_} sc1', ('w4', ks))
        if ks & 1: a(f's_addk_i32 s{sW4}, 4096')
    if cfg.now4: a(f's_mov_b32 s{sW4}, 0x80000000')
    nw = [0]
    def w4more(n=1):
        for _ in range(n):
            ks = nw[0]
            if ks >= 22: return
            nw[0] += 1
            if ks >= cfg.la4: a.wvm(('w4', ks - cfg.la4))
            w4issue(ks)
    w4more(cfg.la4)
    a(f's_setprio {cfg.aprio}')
    a.wvm('xs')
    padd(48, 48, 52, 4, False); padd(48, 48, 50, 2, False)
    a('v_add_f32 v48, v48, v49')
    a('v_mov_b32 v49, v48')
    a('v_permlane16_swap_b32 v48, v49'); a('v_add_f32 v48, v48, v49')
    a('v_mov_b32 v49, v48')
    a('v_permlane32_swap_b32 v48, v49')
    finstat(48)
    a(f'v_mul_f32 v49, s{sK+2}, v49')
    a.lg(f'ds_write_b64 v{vS3}, v[48:49] offset:{S0 + S_ST3}')
    signal('ST')
    a('v_xor_b32 v8, 0x2000, v43')
    for pr in range(2):
        for h in range(2):
            a.lg(f'ds_read_b128 {vr(48 + 8*pr + 4*h, 4)}, v43 offset:{2048*pr + 256*h}', ('c', pr))
            a.lg(f'ds_read_b128 {vr(64 + 8*pr + 4*h, 4)}, v8 offset:{2048*pr + 256*h}', ('c', pr))
    for pr in range(2):
        a.wlg(('c', pr))
        padd(48 + 8*pr, 48 + 8*pr, 64 + 8*pr, 8, False)
        for d in range(4): a(f'v_cvt_pk_bf16_f32 v{64+8*pr+d}, v{48+8*pr+2*d}, v{48+8*pr+2*d+1}')
        a.vm(f'buffer_store_dwordx4 {vr(64 + 8*pr, 4)}, v{vL16}, {WS}, s{sSS} offen offset:{1024*pr} sc1', 'sst')
    EA, EB, EC, ED = 48, 64, 16, 32
    a('v_mov_b32 v9, v44'); a('v_mov_b32 v10, v45')
    S(sT, [(sW, 8192)], E30); a(f'v_add_u32 v8, s{sT}, v{vL16}'); a('v_xor_b32 v11, 0x3000, v8')
    for q in range(4):
        a.lg(f'ds_read_b128 {vr(EC + 4*q, 4)}, v9 offset:{32*q}', 'e0'); a.lg(f'ds_read_b128 {vr(ED + 4*q, 4)}, v9 offset:{256 + 32*q}', 'e0')
    w4more(cfg.w4a)
    spin('ST', 4)
    padd(EC, EC, ED, 16, False)
    a.lg(f'ds_read_b64 v[38:39], v10 offset:{S0 + S_ST3}', 'e2')
    spin('E3', 4)
    st.put('A', 'e3')
    EA, EB = 48, 240
    for q in range(4):
        a.lg(f'ds_read_b128 {vr(EA + 4*q, 4)}, v8 offset:{1024*q}', ('e1', q)); a.lg(f'ds_read_b128 {vr(EB + 4*q, 4)}, v11 offset:{1024*q}', ('e1', q))
    signal('E3')
    for q in range(4):
        a.wlg(('e1', q)); padd(EA + 4*q, EA + 4*q, EB + 4*q, 4, False)
    for k, x in enumerate(gelu16(EA, EC, 32, 38, [(sHS, 0, 'h2s'), (sHS + 1, 1024, 'h2s')], zero=sZ)):
        if isinstance(x, tuple): a.vm(x[1], x[2])
        else: a(x)
        if k % cfg.w4ev == cfg.w4ev - 1: w4more()
    st.put('A', 'gs')
    a('s_setprio 0')
    publish_col('FS', 1024, 'sst')
    w4more(cfg.la4)
    a('v_lshlrev_b32 v9, 7, v0')
    flag(sFO, 256, 'h2s', False, (f's{sTM}', f'buffer_load_dword v9, v9, {WS}, s{sHS} offen sc1'))
    st.put('A', 'hs_flag')
    w4more(22)
    st.put('A', 'w4_issued')
    spin('E3', 8)
    pollc(sFP, 256, 16, vCP, 6)
    st.put('A', 'h2a_seen')
    a(f's_setprio {cfg.g4prio}')
    def h2issue(f):
        th, ks = divmod(f, 22)
        if ks % 4 == 0: a(f's_add_u32 s{sT+1}, s{sH2}, {88*1024*th + 1024*ks}')
        a.vm(f'buffer_load_dwordx4 {vr(RING + 4*(f % 8), 4)}, v{vL16}, {WS}, s{sT+1} offen offset:{1024*(ks % 4)} sc1', ('h2', f))
    for f in range(8): h2issue(f)
    for f in range(44):
        th, ks = divmod(f, 22)
        if f == 14:
            LOK = a.label('HB')
            a.wvm('pb')
            a('s_mov_b64 exec, 0xff'); a(f'v_cmp_ne_u32 vcc, s{sEP}, v6'); a('s_mov_b64 exec, -1')
            a(f's_cmp_eq_u32 s{sMODE}, 1'); a('s_cselect_b64 vcc, vcc, -1')
            a(f's_cbranch_vccz {LOK}')
            saved = list(a.vmq)
            pollc(sFP, 512, 8, vCP, 6)
            a.vmq = saved
            a(f'{LOK}:')
            st.put('A', 'h2b_seen')
        a.wvm(('h2', f))
        if f == 22: a.wlg(('d', 0))
        M32(ACC4, W4F + 8*ks, RING + 4*(f % 8), None if ks == 0 else ACC4)
        if f == 22: a.wlg(('d', 1))
        M32(ACC4 + 16, W4F + 8*ks + 4, RING + 4*(f % 8), None if ks == 0 else ACC4 + 16)
        if f + 8 < 44: h2issue(f + 8)
        if f == cfg.pbf:
            a('s_mov_b64 exec, 0xff'); a.vm(f'buffer_load_dword v6, v{vCP}, {WS}, s{sFP} offen offset:512 sc1', 'pb'); a('s_mov_b64 exec, -1')
        if ks == 21:
            for q in range(8): a.lg(f'ds_write_b128 v{vDW}, {vr(ACC4 + 4*q, 4)} offset:{8192*th + 1024*q}', ('d', q >> 2))
            signal('D4a' if th == 0 else 'D4b')
            st.put('A', f'g4_{th}')
    st.flush('A')
    a('s_endpgm')

class BBar:
    n = 0
def bbar(sleep=0):
    BBar.n += 1
    signal('B'); spin('B', 4 * BBar.n, sleep=sleep)

def role_B():
    vKE, vKT, vFW, vFT, vXV, vF4, vPA, vXT, vMS, vUS, tZP, vKX, vKY = range(28, 41)
    a('L_B:')
    a.reset()
    vLs, vCU, vCT, CACC, UF, W3F = 5, 6, 8, 28, 224, 64
    TR = lambda i: 12 + 4*i if i < 4 else 192 + 4*i
    vCP, vUD, vCW, vCR = 60, 62, 63, 7
    sXC, sFD, sXR, sW3, sUS, sUL, sF4, sSS, sFO, sZ, sH2, sM0U, sJP = 36, 37, 40, 41, 42, 43, 44, 45, 46, 47, 48, 72, 73
    sCH, sPT, sKF = 75, 76, 60
    a(f's_lshr_b32 s{sCH}, s{sW}, 1'); a(f's_and_b32 s{sPT}, s{sW}, 1')
    L = Lane(12)
    SL = 224
    a('v_and_b32 v8, 1, v0'); a('v_lshlrev_b32 v8, 4, v8'); a('v_mov_b32 v9, 0x3f80'); a('v_lshlrev_b32 v8, v8, v9')
    for jh in range(2):
        for d in range(4):
            lo = (3 << (2*d)) << (16*jh)
            a(f's_mov_b32 vcc_lo, {hex(lo)}'); a(f's_mov_b32 vcc_hi, {hex(lo << 8)}')
            a(f'v_cndmask_b32 v{SL + 4*jh + d}, 0, v8, vcc')
    YV = 64
    srd(SWS, sWSP, 268435456); srd(SOUT, 58, 524288); a('s_mov_b64 s[0:1], s[64:65]')
    consts()
    a(f's_lshr_b32 s{sT}, s{sC}, 3'); a(f's_and_b32 s{sT+1}, s{sC}, 7'); S(sCFO, [(sT, 128), (sT + 1, 4), (sCPB, 1)])
    a(f's_and_b32 s{sJP}, s{sJ}, 1')
    a(f's_cmp_lt_i32 s{sDEL}, 0'); a(f's_cselect_b32 s{sXR}, 64, -2'); a(f's_add_u32 s{sXR}, s{sXR}, s{sDEL}')
    S(sW3, [(sJ, FMT), (sW, 49152)], WS_W3)
    S(sFD, [(sJ, FMT), (sC, 1024), (sW, 3*49152)], WS_W3 + 16384)
    a(f's_lshr_b32 s{sT}, s{sC}, 4'); a(f's_and_b32 s{sT+1}, s{sC}, 15'); S(sT, [(sT, 49152), (sT + 1, 1024), (sJ, FMT)], WS_W3)
    a(f's_add_u32 s{sFD+1}, s{sFD}, 49152'); a(f's_add_u32 s{sFD+2}, s{sFD}, {2*49152}'); a(f's_add_u32 s{sT+1}, s{sT}, {2*49152}')
    a(f's_cmp_eq_u32 s{sW}, 1'); a(f's_cselect_b32 s{sFD+1}, s{sT}, s{sFD+1}'); a(f's_cselect_b32 s{sFD+2}, s{sT+1}, s{sFD+2}')
    S(sT, [(sW, 1024), (sJ, FMT), (sC, 6144)], WS_W4 - 2048)
    a(f's_cmp_ge_u32 s{sW}, 2'); a(f's_cselect_b32 s{sFD}, s{sT}, s{sFD}')
    a(f's_add_u32 s{sT}, s{sT}, 2048'); a(f's_add_u32 s{sT+1}, s{sT}, 2048')
    a(f's_cmp_ge_u32 s{sW}, 2'); a(f's_cselect_b32 s{sFD+1}, s{sT}, s{sFD+1}'); a(f's_cselect_b32 s{sFD+2}, s{sT+1}, s{sFD+2}')
    S(sUS, [(sJ, 32*UPS), (sC, UPS)], WS_UT)
    a(f's_lshr_b32 s{sT}, s{sC}, 3'); a(f's_and_b32 s{sT+1}, s{sC}, 7'); S(sUL, [(sT, 2048), (sT + 1, 128), (sJ, 32*UPS)], WS_UT)
    a(f's_and_b32 s{sT+1}, s{sW}, 1'); a(f's_lshr_b32 s{sT}, s{sW}, 1')
    S(sM0U, [(sT, USZ), (sT + 1, 2048)], U0 + 512)
    S(sFO, [(sJ, 16), (sW, 4), (sFL, 1)])
    S(sH2 + 4, [(sC, H2C), (sJ, 11*1024)], WS_H2)
    S(sH2, [(sW, 2048), (sH2 + 4, 1)]); a(f's_add_u32 s{sH2+1}, s{sH2}, {88*1024}')
    a('s_waitcnt vmcnt(5)')
    st.put('B', 'par')
    kpre(48, 4, {8: YV + 2, 1: 44, 256: 46}, 192)
    XV = 128
    xi = {h: XV + 2 * i for i, h in enumerate(his)}
    a(f'v_mov_b32 v{YV}, 1.0'); a(f'v_mov_b32 v{YV+1}, 0')
    for x in swp(YV+2, 16) + swp(44, 18) + swp(46, 20) + swp(50, 22): a(x)
    ych = cmul(YV+4, YV+2, YV+2) + cmul(YV+6, YV+4, YV+2) + cmul(YV+8, YV+6, YV+2) + swp(YV+8, 24)
    for g in range(5, 32, 4):
        blk = []
        for j in range(g, min(g + 4, 32)): blk += cmul(YV + 2*j, YV + 2*(j-4), YV + 8)
        ych += blk[0::2] + blk[1::2]
    xch = cmul(xi[0], 52, 50)
    for h in range(1, 9): xch += cmul(xi[h], xi[h-1], 44)
    for lvl in ([256, 258, 260, 262, 264], [512, 516, 520], [768, 772, 776], [1024, 1032], [1280, 1288], [1536, 1544], [1792, 1800]):
        blk = []
        for h in lvl: blk += cmul(xi[h], xi[h-256], 46)
        xch += blk[0::2] + blk[1::2]
    for x in interleave([ych, xch]): a(x)
    st.put('B', 'k1')
    src = {'Y': [YV + 2*j for j in range(32)], 'X': [None] * 32}
    for h in his:
        for row in xrows[h]: src['X'][row] = xi[h]
    PB = [192, 208]
    TL = [12, 28]
    groups = [('Y', 0), ('Y', 1), ('X', 0), ('X', 1)]
    FRK = {'Y': 64, 'X': 128}
    def pack(gi):
        op, part = groups[gi]; P = PB[gi & 1]; ng = '-' if (op == 'X' and part) else ''
        o = [f'v_cvt_pk_bf16_f32 v{P+i}, {ng}v{src[op][2*i]+part}, {ng}v{src[op][2*i+1]+part}' for i in range(16)]
        o += [f'v_permlane32_swap_b32 v{P+8*jh+d}, v{P+8*jh+4+d}' for jh in range(2) for d in range(4)]
        return o
    def tr(gi, T):
        P = PB[gi & 1]
        return [(T + 16*nh, P + 8*jh + 4*nh, SL + 4*jh, jh) for nh in range(2) for jh in range(2)]
    def repack(gi, T):
        op, part = groups[gi]
        return [f'v_cvt_pk_bf16_f32 v{FRK[op] + 16*part + i}, v{T+2*i}, v{T+2*i+1}' for i in range(16)]
    for x in pack(0) + pack(1): a(x)
    TA, TB = 96, 16
    def mm(lst, fill):
        per = -(-len(fill) // 4) if fill else 0
        for (d, x, y, jh) in lst:
            M32(d, x, y, d if jh else None)
            for _ in range(per):
                if fill: a(fill.pop(0))
    mm(tr(0, TA), [])
    mm(tr(1, TB), pack(2))
    f = repack(0, TA)
    for x in f: a(x)
    mm(tr(2, TA), pack(3) + repack(1, TB))
    mm(tr(3, TB), [])
    for x in repack(2, TA) + repack(3, TB): a(x)
    FY, FX, KD, KP, ET = 64, 128, 192, 96, 208
    st.put('B', 'k2')
    mark = len(a.L)
    vEX = vKX
    S(sT, [(sW, 4096)], S0 + S_KF); a(f'v_add_u32 v{vEX}, s{sT}, v{vL16}'); a(f'v_xor_b32 v{vEX+1}, 0x1000, v{vEX}')
    S(sT, [(sDEL, 8)], S0 + S_ST + 16); a(f'v_lshl_add_u32 v43, v0, 3, s{sT}')
    S(sKF, [(sCH, 2*KCOPY)], S0 + S_KF)
    a(f's_add_u32 s{sT}, s{sKF}, {4080 - 3072}'); a(f'v_sub_u32 v{vKE}, s{sT}, v{vL16}')
    a(f's_add_u32 s{sT}, s{sKF}, {KCOPY}'); L(vKT, [(3, 1, KCOPY)]); a(f'v_sub_u32 v{vKT}, s{sT}, v{vKT}'); L(vKT, [(0, 3, 4)], f'v{vKT}')
    S(sT, [(sW, 4096)], S0 + S_KF); L(vFT, [(5, 1, 256), (2, 2, 64), (4, 1, 32), (0, 2, 8)], f's{sT}')
    L(vPA, [(5, 1, 1024), (0, 5, 4)], S0 + S_STP)
    L(46, [(4, 1, 64)]); a('v_xor_b32 v41, v60, v46')
    a(f's_lshl_b32 s{sT}, s{sW}, 5'); L(vXT, [(4, 2, 1024), (2, 2, 128), (0, 2, 8)], f's{sT}')
    L(vMS, [(4, 2, 64)])
    a(f's_lshl_b32 s{sT}, s{sW}, 11'); L(vUS, [(0, 4, 64), (4, 2, 16)], f's{sT}')
    side = a.L[mark:]; del a.L[mark:]
    per = -(-len(side) // 8)
    for ks in range(8):
        M32(KD, FX + 4*ks, FY + 4*ks, None if ks == 0 else KD)
        for _ in range(per):
            if side: a(side.pop(0))
    a(f's_add_u32 s{sEP}, s{sEP}, 1'); a(f's_mov_b32 s{sEP+1}, s{sEP}')
    a(f's_getreg_b32 s{sXC}, hwreg(HW_REG_XCC_ID, 0, 4)')
    if cfg.force_slow: a(f's_mov_b32 s{sXC}, s{sJ}')
    a(f's_lshl_b32 s{sXC}, s{sXC}, 28'); a(f's_add_u32 s{sXC}, s{sXC}, s{sEP}')
    st.put('B', 'kmfma')
    a.vm0()
    LG, LGE = a.label('FM'), a.label('FM')
    a(f's_cmp_ge_u32 s{sW}, 2'); a(f's_cbranch_scc1 {LG}')
    for m in range(3): a(f'ds_write_b128 v{vEX}, {vr(240 + 4*m, 4)} offset:{1024*m}')
    for m in range(3):
        for p in range(2): a(f'ds_read_b64_tr_b16 v[{112+4*m+2*p}:{113+4*m+2*p}], v{vFT} offset:{1024*m + 512*p}')
    a('s_waitcnt lgkmcnt(0)')
    for m in range(3): a(f'buffer_store_dwordx4 {vr(112 + 4*m, 4)}, v{vL16}, {WS}, s{sFD+m} offen sc1')
    for m in range(3): a(f's_mov_b32 s{sFD+m}, 0x80000000')
    a(f's_branch {LGE}')
    a(f'{LG}:')
    a(f's_cmp_lg_u32 s{sW}, 3'); a(f's_cbranch_scc1 {LGE}')
    S(sT, [(sJ, 4), (sFL, 1)])
    a(f'v_mov_b32 v{vT}, s{sXC}')
    a('s_mov_b64 exec, 1'); a(f'buffer_store_dword v{vT}, off, {WS}, s{sT} offset:768 sc1'); a('s_mov_b64 exec, -1')
    for k in range(4): a(f'v_mov_b32 v{12+k}, 0')
    for d in range(8):
        a(f'v_lshlrev_b32 v16, 16, v{232+d}'); a(f'v_and_b32 v17, 0xffff0000, v{232+d}')
        a('v_add_f32 v12, v12, v16'); a('v_fmac_f32 v13, v16, v16'); a('v_add_f32 v14, v14, v17'); a('v_fmac_f32 v15, v17, v17')
    a('v_add_f32 v12, v12, v14'); a('v_add_f32 v13, v13, v15')
    a('v_permlane16_swap_b32 v12, v13'); a('v_add_f32 v12, v12, v13')
    for sh in (8, 4, 2, 1): a(f'v_add_f32_dpp v12, v12, v12 row_ror:{sh} row_mask:0xf bank_mask:0xf')
    a('v_mov_b32 v13, v12'); a('v_permlane16_swap_b32 v12, v13')
    finstat(12)
    S(sT, [(sXR, 8)], S0 + S_ST + 16); a('v_lshrrev_b32 v14, 5, v0'); a(f'v_lshl_add_u32 v14, v14, 3, s{sT}')
    a('s_mov_b32 exec_lo, 1'); a('s_mov_b32 exec_hi, 1'); a('ds_write_b64 v14, v[12:13]'); a('s_mov_b64 exec, -1')
    a(f'{LGE}:')
    st.put('B', 'fmt_st')
    a(f's_setprio {cfg.uprio}')
    a.vmq = []
    signal('S')
    LFF = a.label('FF')
    a(f's_cmp_ge_u32 s{sW}, 2'); a(f's_cbranch_scc1 {LFF}')
    publish_col('FF', 0, None, 1)
    a(f'{LFF}:')
    spin('S', 8)
    st.put('B', 'S_seen')
    sW2 = 77
    spin('WC0', 4)
    S(sW2, [(sW, 131072), (sJ, 128)]); S(sT + 1, [(sW, 16384)], X0); a(f's_mov_b32 m0, s{sT+1}')
    def w2i(lo, hi):
        for i in range(lo, hi):
            if i: a('s_addk_i32 m0, 1024'); a(f's_addk_i32 s{sW2}, 8192')
            a.vm(f'buffer_load_dwordx4 v41, s[{SOUT}:{SOUT+3}], s{sW2} offen lds', 'w2')
    w2i(0, cfg.w2n)
    XT, MSR, UT, UP = 128, 136, 168, 176
    for w2 in range(4): a.lg(f'ds_read2_b32 v[{12+2*w2}:{13+2*w2}], v{vPA} offset0:{64*w2} offset1:{64*w2 + 32}', 'sp')
    for o in range(2):
        for p in range(2): a.lg(f'ds_read_b64_tr_b16 v[{XT+4*o+2*p}:{XT+1+4*o+2*p}], v{vXT} offset:{S0 + S_XT + 4096*o + 512*p}', 'xr')
    for m in range(3):
        for p in range(2): a.lg(f'ds_read_b64_tr_b16 v[{112+4*m+2*p}:{113+4*m+2*p}], v{vFT} offset:{1024*m + 512*p}', 'xr')
    a.wlg('sp')
    padd(12, 12, 16, 4, False); padd(12, 12, 14, 2, False)
    finstat(12)
    a.lg('ds_write_b64 v43, v[12:13]')
    for o in range(2):
        for k in range(4): a.lg(f'ds_read_b128 {vr(MSR + 16*o + 4*k, 4)}, v{vMS} offset:{S0 + S_ST + 16 + 256*o + 16*k}', ('ms', o))
    a.wlg('xr')
    for o in range(2):
        unpack(UT, XT + 4*o, 4)
        a.wlg(('ms', o))
        for i in range(8): a(f'v_sub_f32 v{UT+i}, v{UT+i}, v{MSR+16*o+2*i}')
        for i in range(8): a(f'v_mul_f32 v{UT+i}, v{UT+i}, v{MSR+1+16*o+2*i}')
        for d in range(4): a(f'v_cvt_pk_bf16_f32 v{UP+4*o+d}, v{UT+2*d}, v{UT+1+2*d}')
        a.vm(f'buffer_store_dwordx4 {vr(UP + 4*o, 4)}, v{vUS}, {WS}, s{sUS} offen offset:{1024*o} sc1', 'ust')
    a(f's_setprio {cfg.bprio}')
    st.put('B', 'u_stored')
    LE1, LE2_ = a.label('EX'), a.label('EX')
    a(f's_bitcmp1_b32 s{sW}, 0'); a(f's_cbranch_scc1 {LE1}')
    a(f'ds_write_b128 v{vEX}, {vr(KD + 12, 4)}')
    a(f's_branch {LE2_}')
    a(f'{LE1}:')
    for q in range(3): a(f'ds_write_b128 v{vEX}, {vr(KD + 4*q, 4)} offset:{1024*q}')
    a(f'{LE2_}:')
    signal('KY')
    w2i(cfg.w2n, 16)
    chk_issue('KY', vT)
    L = Lane(12)
    S(sT, [(sPT, 16*UPS), (sCH, 64)]); L(vUD, [(3, 3, UPS), (2, 1, 1024), (0, 2, 16)], f's{sT}')
    S(sT, [(sCH, USZ)], U0); L(tZP, [(0, 5, 16)], f's{sT}')
    a(f's_lshl_b32 s{sT+1}, s{sPT}, 8'); a(f's_sub_u32 s{sT}, s{sT}, s{sT+1}'); a(f's_add_u32 s{sT}, s{sT}, 480'); L(vCU, [(0, 4, 32), (4, 2, 16)], f's{sT}')
    L(vCT, [(0, 1, KCOPY + 4), (1, 3, 4)]); a(f's_sub_u32 s{sT}, s{sKF}, s{sT+1}'); a(f's_add_u32 s{sT}, s{sT}, {4064 - 512 - 64 + KCOPY}')
    a(f'v_sub_u32 v{vCT}, s{sT}, v{vCT}'); L(vCT, [(4, 2, 16)], f'v{vCT}')
    for m in range(1, 4): a(f'v_subrev_u32 v{vCT+m}, {1024*m}, v{vCT}')
    a(f's_lshl_b32 s{sT}, s{sCH}, 4'); a(f'v_and_b32 v{vLs}, s{sT}, v0'); a(f'v_lshl_add_u32 v{vLs}, v{vLs}, 27, v{vL16}')
    S(sT, [(sW, 8192)], CX0); a(f'v_add_u32 v{vCW}, s{sT}, v{vL16}')
    chk_wait('KY', vT, 4)
    for q in range(3): a.lg(f'ds_read_b128 {vr(KP + 4*q, 4)}, v{vEX+1} offset:{1024*q}')
    signal('KQ')
    publish_col('FU', 512, 'ust')
    st.put('B', 'u_flag')
    if cfg.cfpos == 0: spoll(0, 'CF', 3)
    a.wvm('w2'); signal('W2L')
    st.put('B', 'w2l')
    for m in range(3): a.vm(f'buffer_store_dwordx4 {vr(112 + 4*m, 4)}, v{vL16}, {WS}, s{sFD+m} offen sc1', 'f4st')
    if cfg.cfpos == 1: spoll(0, 'CF', 3)
    spin('KQ', 4)
    def expand(sp, vals, tmp):
        for i in range(4): a(f'v_cvt_pk_bf16_f32 v{tmp+i}, v{vals[7-2*i]}, v{vals[6-2*i]}')
        for i in range(4): a(f'v_cvt_pk_bf16_f32 v{tmp+4+i}, v{vals[8-2*i]}, v{vals[7-2*i]}')
        a(f'ds_write_b128 v{vKE}, {vr(tmp, 4)} offset:{1024*(3-sp)}')
        a(f'ds_write_b128 v{vKE}, {vr(tmp+4, 4)} offset:{1024*(3-sp) + KCOPY}')
    LX1, LXE = a.label('EX'), a.label('EX')
    a(f's_bitcmp1_b32 s{sW}, 0'); a(f's_cbranch_scc1 {LX1}')
    a('v_mov_b32 v12, 0')
    padd(KD, KD, KP, 12, False)
    a('s_mov_b64 exec, 1'); a(f'v_add_f32 v{KD}, s67, v{KD}'); a(f'v_cvt_pk_bf16_f32 v12, v{KD}, v12')
    a('s_mov_b64 exec, 0xffff'); a(f'ds_write_b32 v{vKT}, v12 offset:4096'); a('s_mov_b64 exec, -1')
    expand(0, [KD + i for i in range(9)], ET)
    expand(1, [KD + 9 + k for k in (0, 0, 0, 1, 1, 1, 2, 2, 2)], ET + 8)
    a(f's_branch {LXE}')
    a(f'{LX1}:')
    a('s_mov_b32 vcc_lo, 0xaaaaaaaa'); a('s_mov_b32 vcc_hi, vcc_lo')
    padd(KD + 12, KD + 12, KP, 4, False)
    for s_ in range(2):
        lo, hi = KD + 12 + 2*s_, KD + 13 + 2*s_
        a(f'v_cndmask_b32 v12, v{lo}, v{hi}, vcc')
        expand(2 + s_, [lo, lo, lo, lo, 12, hi, hi, hi, hi], ET + 8*s_)
    a(f'{LXE}:')
    st.put('B', 'kexp')
    def ldT(i, nxt):
        t = TR(i); o = (128 if i % 2 == 0 else 0) + (0 if nxt else 16)
        a.lg(f'ds_read2_b32 v[{t}:{t+1}], v{vCT + i//2} offset0:{o} offset1:{o+1}', ('T', i))
        a.lg(f'ds_read2_b32 v[{t+2}:{t+3}], v{vCT + i//2} offset0:{o+2} offset1:{o+3}', ('T', i))
    def ldU(jq): a.lg(f'ds_read_b128 {vr(UF + 4*jq, 4)}, v{vCU} offset:{512*jq}', ('U', jq))
    a(f's_lshl_b32 s{sT}, s{sJP}, 12'); a(f's_add_u32 s{sW3}, s{sW3}, s{sT}')
    if cfg.now3: a(f's_mov_b32 s{sW3}, 0x80000000')
    iss = [0]
    NFR = 36
    G, SEL, CSS, CSF = 8, 12, 16, 20
    def mksel():
        a('s_mov_b32 vcc_lo, 0xaaaa5555'); a('s_mov_b32 vcc_hi, vcc_lo'); a(f'v_mov_b32 v{SEL}, s{sK+4}')
        for i in range(3, -1, -1): a(f'v_cndmask_b32 v{SEL+i}, 0, v{SEL}, vcc')
    def csm(f): M16(CSS if f < 16 else CSF, SEL, W3F + 4*f, None if f in (0, 16) else (CSS if f < 16 else CSF))
    csd = [0]
    def csupto(n):
        while csd[0] < n:
            a.wvm(('w3', csd[0])); csm(csd[0]); csd[0] += 1
    def w3more(n=1, thr=False):
        for _ in range(n):
            f = iss[0]; iss[0] += 1
            if thr and f >= cfg.la3: csupto(f - cfg.la3 + 1)
            if f and f % 4 == 0:
                a(f's_xor_b32 s{sW3}, s{sW3}, 4096')
                if f % 8 == 0: a(f's_addk_i32 s{sW3}, 8192')
            a.vm(f'buffer_load_dwordx4 {vr(W3F + 4*f, 4)}, v{vLs if f < 16 else vL16}, {WS}, s{sW3} offen offset:{1024*(f % 4)} sc1', ('w3', f))
    signal('KE')
    a(f'v_mov_b32 v24, v{tZP}')
    S(sT, [(sW, 256)], S0 + S_CS3); a(f'v_lshl_add_u32 v7, v0, 2, s{sT}')
    for i in range(32): a(f'v_mov_b32 v{CACC+i}, 0')
    a(f's_mov_b32 m0, s{sM0U}')
    mksel()
    spin('CF', 1)
    st.put('B', 'fmt_seen')
    w3more(cfg.la3)
    publish_col('F4', 1536, 'f4st')
    w3more(cfg.w3a - cfg.la3, True)
    spoll(512, 'CU', 1)
    w3more(cfg.w3b, True)
    spin('W', 4)
    a.lg(f'ds_write_b128 v24, {vr(CACC, 4)}')
    st.put('B', 'u_poll')
    spin('CU', 1)
    st.put('B', 'u_seen')
    a.vm(f'buffer_load_dwordx4 v{vUD}, {WS}, s{sUL} offen sc1 lds', 'u')
    a('s_addk_i32 m0, 1024'); a(f's_add_u32 s{sUL}, s{sUL}, {8*UPS}')
    a.vm(f'buffer_load_dwordx4 v{vUD}, {WS}, s{sUL} offen sc1 lds', 'u')
    assert iss[0] >= 17
    spin('KE', 4)
    for q in range(4): ldT(7 - q, False)
    csupto(iss[0])
    a('s_mov_b64 exec, 0xffff'); a.lg(f'ds_write2_b32 v7, v{CSS}, v{CSS+1} offset0:0 offset1:16'); a('s_mov_b64 exec, -1')
    a(f'v_mov_b32 v60, v{CSF}'); a(f'v_mov_b32 v61, v{CSF+1}')
    for q in range(4, 8): ldT(7 - q, False)
    a.wvm('u'); bbar()
    st.put('B', 'conv_go')
    a(f's_setprio {cfg.cprio}')
    for q in range(8): ldU(q)
    a(f'v_subrev_u32 v{vCU}, 64, v{vCU}')
    a('s_waitcnt lgkmcnt(4)')
    for it in range(4):
        w3more(min(cfg.w3d, NFR - iss[0]))
        if it == 2:
            a('v_lshrrev_b32 v62, 3, v0'); a('v_mul_u32_u24 v62, 96, v62'); a('v_lshl_add_u32 v62, v0, 2, v62')
            cp_issue(1536, 5, 62, 'c4')
        if not cfg.noconv or it == 0: a(f's_call_b64 s[{sRET}:{sRET+1}], L_conv')
    st.put('B', 'conv_done')
    nconv = iss[0]
    a('s_nop 1')
    for q in range(8): a.lg(f'ds_write_b128 v{vCW}, {vr(CACC + 4*q, 4)} offset:{1024*q}')
    cp_check(1536, 5, 62, 'c4')
    signal('W3I')
    a.lg(f'ds_read_b32 v5, v{vS} offset:{CN["MODE"]}')
    vGK, vGO, vGE, vGS, vGF, vGC = 8, 9, 10, 11, 6, 7
    S(sT, [(sPT, 32768 + 4096)], W0); a(f'v_add_u32 v{vGK}, s{sT}, v{vL16}'); a(f'v_xor_b32 v{vGO}, 0x1000, v{vGK}')
    S(sT, [(sW, 8192)], E30); a(f'v_add_u32 v{vGE}, s{sT}, v{vL16}')
    a(f'v_and_b32 v{vGS}, 31, v0'); a(f'v_lshlrev_b32 v{vGS}, 3, v{vGS}')
    a(f'v_add_u32 v{vGF}, {W0}, v{vL16}')
    a.lg0()
    w3more(cfg.w3e)
    a(f'v_readfirstlane_b32 s{sMODE}, v5')
    mksel()
    a(f'v_lshrrev_b32 v5, 5, v0'); S(sT, [(sW, 256)], S0 + S_CS3 + 128); a(f'v_lshl_add_u32 v5, v5, 4, s{sT}')
    a(f'v_mov_b32 v{CSF}, v60'); a(f'v_mov_b32 v{CSF+1}, v61')
    csupto(nconv)
    st.put('B', 'b_rdy')
    AK, AO, FR = 28, 44, [16, 24, 60]
    spin('X0', 4)
    a('s_setprio 2')
    st.put('B', 'g3_start')
    so = [8*a_ + 4*(c >> 1) + 2*(c & 1) + r for c in range(4) for a_ in range(2) for r in range(2)]
    AF, CSV, GT, MS = 64, 80, 96, 102
    items = [('S', f, o) for f in so for o in range(2)] + [('F', n, th) for th in range(2) for n in range(32)]
    pool = list(FR); slot = {}; nr = [0]
    def rd(cur):
        while pool and nr[0] < 96 and nr[0] <= cur + cfg.lag:
            n = nr[0]
            if n == 8: chk_wait('XA0', vT, 4); chk_issue('XA', vT)
            if n == 16: chk_wait('XA', vT, 4)
            k_, f, o = items[n]; slot[n] = pool.pop(0); nr[0] += 1
            if k_ == 'S': a.lg(f'ds_read_b128 {vr(slot[n], 4)}, v{vGO if o else vGK} offset:{8192*(f >> 2) + 1024*(f & 3)}', ('s', n))
            else: a.lg(f'ds_read_b128 {vr(slot[n], 4)}, v{vGF} offset:{8192*(f >> 2) + 4096*o + 1024*(f & 3)}', ('s', n))
    def emit(x):
        if isinstance(x, tuple):
            if x[0] == 'vm': a.vm(x[1], x[2])
            elif x[0] == 'lg': a.lg(x[1], x[2])
            elif x[0] == 'wlg': a.wlg(x[1])
            else: x[1]()
        else: a(x)
    cost = lambda x: 1 if isinstance(x, tuple) or x.startswith('s_') else (2 if x.startswith(TRANS) else 1)
    dump = [f'ds_write_b128 v{vGE}, {vr(AK + 4*q, 4)} offset:{1024*q}' for q in range(8)]
    pend = gelu16(AF, CSV, GT, MS, [(sH2, 0, 'h2a'), (sH2, 1024, 'h2a')]); per = sum(cost(x) for x in pend) / cfg.f1span; credit = 0
    rd(0)
    for n in range(96):
        k_, f, o = items[n]
        if n == 1: chk_issue('XA0', vT)
        if n == 56: chk_issue('ST', vT)
        if n == 62: chk_wait('ST', vT, 4)
        if k_ == 'F' and o == 0: a.wvm(('w3', 16 + f))
        a.wlg(('s', min(n + 1, nr[0] - 1) if (n >= 8 and n % 2 == 0) else n))
        if k_ == 'S':
            acc_ = AO if o else AK
            M32(acc_, W3F + 4*f, slot[n], None if n < 2 else acc_)
            if slot[n] < 64 or slot[n] >= 104 or n < 22: pool.append(slot[n])
            if o and (f >= 10 or n < 12): pool.append(W3F + 4*f)
            if n == 22: pool[:] = [p_ for p_ in pool if p_ < 64 or p_ >= 104]
            if n % 3 == 2 and iss[0] < 48: w3more()
        else:
            acc_ = AO if o else AF
            M32(acc_, W3F + 64 + 4*f, slot[n], None if f == 0 else acc_)
            pool.append(slot[n])
            if o == 0 and 16 + f >= nconv: csm(16 + f)
            if o == 0 and f >= 2 and dump:
                a.lg(dump.pop(0))
                if not dump: signal('E3')
            if o == 1 and f == 1:
                a('s_mov_b64 exec, 0xffff'); a.lg(f'ds_write2_b32 v{vGC}, v{CSF}, v{CSF+1} offset0:32 offset1:48'); a('s_mov_b64 exec, -1')
                for q in range(4): a.lg(f'ds_read_b128 {vr(CSV + 4*q, 4)}, v5 offset:{32*q}', 'ex3')
                a.lg(f'ds_read_b64 v[{MS}:{MS+1}], v{vGS} offset:{S0 + S_ST3}', 'ex3')
            if o == 1 and f == 4: a.wlg('ex3')
            if o == 1 and f >= 4:
                credit += per
                while pend and credit >= cost(pend[0]) - 0.5:
                    credit -= cost(pend[0]); emit(pend.pop(0))
        rd(n + 1)
        if n % 32 == 31:
            if n == 95:
                while pend: emit(pend.pop(0))
            st.put('B', f'p{n // 32}')
    assert iss[0] == 48
    for n in range(31, 96): assert slot[n] < 64 or slot[n] >= 104, (n, slot[n])
    a.lg(f'ds_read_b64 v[{MS}:{MS+1}], v{vGS} offset:{S0 + S_ST3 + 256}'); a.lg0()
    a('v_lshlrev_b32 v27, 7, v0')
    tail = gelu16(AO, CSV, GT, MS, [(sH2 + 1, 0, 'h2b'), (sH2 + 1, 1024, 'h2b')], pk=cfg.tailpk)
    k = int(len(tail) * cfg.aflag)
    for x in tail[:k]: emit(x)
    flag(sFO, 384, 'h2a', False, (0xffff, f'buffer_load_dword v25, v27, {WS}, s{sH2} offen sc1'))
    st.put('B', 'h2a_flag')
    for x in tail[k:]: emit(x)
    st.put('B', 'h2_stored')
    X1R, XR, SR_, Z = 128, 144, 160, 176
    sTB, sNT, sO = sT, sT + 1, sT + 2
    a(f's_and_b32 s{sTB}, s{sW}, 1'); a(f's_lshr_b32 s{sNT}, s{sW}, 1')
    a('v_and_b32 v20, 15, v0'); a('v_lshrrev_b32 v21, 4, v0')
    a('v_lshrrev_b32 v22, 5, v0'); a('v_lshlrev_b32 v22, 10, v22'); a('v_lshl_add_u32 v22, v20, 4, v22')
    a('v_and_b32 v23, 1, v21'); a('v_lshl_add_u32 v22, v23, 3, v22')
    a(f's_andn2_b32 s{sT+8}, s{sJ}, 1')
    S(sT + 8, [(sT + 8, 8192), (sNT, 2048), (sTB, 256)], W0); a(f'v_add_u32 v22, s{sT+8}, v22')
    for th in range(2):
        for h in range(2): a.lg(f'ds_read_b64 v[{64+4*th+2*h}:{65+4*th+2*h}], v22 offset:{4096*th + 512*h}', 'pr')
    a('v_lshlrev_b32 v23, 7, v20'); a('v_lshl_add_u32 v23, v21, 4, v23')
    S(sT + 8, [(sTB, 2048), (sNT, 64)]); a(f'v_add_u32 v23, s{sT+8}, v23')
    for th in range(2): a.lg(f'ds_read_b128 {vr(72 + 4*th, 4)}, v23 offset:{S0 + S_XT + 4096*th}', 'pr')
    a('v_bfe_u32 v24, v0, 2, 2'); a('v_lshl_add_u32 v24, v21, 3, v24'); a('v_lshlrev_b32 v24, 7, v24')
    a('v_and_b32 v16, 3, v0'); a('v_lshl_add_u32 v24, v16, 3, v24')
    S(sT + 8, [(sNT, 4096), (sTB, 32)]); a(f'v_add_u32 v24, s{sT+8}, v24')
    a('v_lshlrev_b32 v16, 4, v20'); a('v_lshl_add_u32 v16, v21, 10, v16')
    S(sT + 8, [(sNT, 4096), (sTB, 256)], X0); a(f'v_add_u32 v16, s{sT+8}, v16')
    a('v_lshlrev_b32 v17, 10, v20'); a('v_lshl_add_u32 v17, v21, 4, v17')
    S(sO, [(sC, 65536), (sTB, 16384), (sJ, 128), (sNT, 64)])
    srd(SOUT, 0, 2097152)
    flag(sFO, 512, 'h2b', False, (0xffff, f'buffer_load_dword v26, v27, {WS}, s{sH2+1} offen sc1'))
    a('s_setprio 0')
    st.put('B', 'h2_flag')
    spoll(1024, 'CS')
    a('v_lshrrev_b32 v18, 3, v0'); a(f'v_mul_u32_u24 v18, {SRS - 128}, v18'); a(f'v_add_u32 v18, v18, v{vL16}')
    S(sT + 3, [(sJ, 64*SRS), (sC, 128), (sW, 16*SRS)], WS_ST)
    a(f's_lshl_b32 s{sT+8}, s{sW}, 11'); a(f's_add_u32 m0, s{sT+8}, {S0 + S_KF}')
    spin('CS', 1)
    st.put('B', 's_seen')
    a.vm(f'buffer_load_dwordx4 v18, {WS}, s{sT+3} offen sc1 lds', 'sd')
    a('s_addk_i32 m0, 1024'); a(f's_add_u32 s{sT+3}, s{sT+3}, {8*SRS}')
    a.vm(f'buffer_load_dwordx4 v18, {WS}, s{sT+3} offen sc1 lds', 'sd')
    unpack(X1R, 64, 8); unpack(XR, 72, 8)
    a.vm0(); bbar()
    for th in range(2):
        for p in range(2): a.lg(f'ds_read_b64_tr_b16 v[{80+4*th+2*p}:{81+4*th+2*p}], v24 offset:{S0 + S_KF + 512*p + 64*th}')
    a.lg0()
    unpack(SR_, 80, 8)
    a(f's_mov_b32 s{sK+6}, {hx(-LOG2E)}'); a(f's_mov_b32 s{sK+7}, {hx(-LOG2E)}')
    st.put('B', 'prep')
    for th in range(2):
        spin('D4a' if th == 0 else 'D4b', 4)
        for w2 in range(4):
            for h in range(2): a.lg(f'ds_read_b128 {vr(Z + 8*w2 + 4*h, 4)}, v16 offset:{8192*th + 16384*w2 + 512*h}', ('z', w2))
        z = X1R + 8 * th
        pk = th == 1
        for w2 in range(4):
            a.wlg(('z', w2)); padd(z, z, Z + 8*w2, 8, pk)
        t = Z
        if pk:
            for i in range(0, 8, 2): a(f'v_pk_mul_f32 v[{t+i}:{t+i+1}], v[{z+i}:{z+i+1}], s[{sK+6}:{sK+7}]')
            for i in range(8): a(f'v_exp_f32 v{t+i}, v{t+i}')
            for i in range(0, 8, 2): a(f'v_pk_add_f32 v[{t+i}:{t+i+1}], v[{t+i}:{t+i+1}], 1.0 op_sel_hi:[1,0]')
            for i in range(0, 8, 2): a(f'v_pk_mul_f32 v[{z+i}:{z+i+1}], v[{z+i}:{z+i+1}], v[{SR_+8*th+i}:{SR_+8*th+i+1}]')
            for i in range(8): a(f'v_rcp_f32 v{t+i}, v{t+i}')
            for i in range(0, 8, 2): a(f'v_pk_fma_f32 v[{z+i}:{z+i+1}], v[{z+i}:{z+i+1}], v[{t+i}:{t+i+1}], v[{XR+8*th+i}:{XR+8*th+i+1}]')
        else:
            for i in range(8): a(f'v_mul_f32 v{t+i}, s{sK+6}, v{z+i}')
            for i in range(8): a(f'v_exp_f32 v{t+i}, v{t+i}')
            for i in range(8): a(f'v_add_f32 v{t+i}, 1.0, v{t+i}')
            for i in range(8): a(f'v_mul_f32 v{z+i}, v{z+i}, v{SR_+8*th+i}')
            for i in range(8): a(f'v_rcp_f32 v{t+i}, v{t+i}')
            for i in range(8): a(f'v_fma_f32 v{z+i}, v{z+i}, v{t+i}, v{XR+8*th+i}')
        for i in range(4): a(f'v_cvt_pk_bf16_f32 v{88+4*th+i}, v{z+2*i}, v{z+2*i+1}')
        if th == 1: a(f's_add_u32 s{sO}, s{sO}, 0x8000')
        a.vm(f'buffer_store_dwordx4 {vr(88 + 4*th, 4)}, v17, s[{SOUT}:{SOUT+3}], s{sO} offen {cfg.out_fl}')
        st.put('B', f'out{th}')
    LE2 = a.label('EP')
    a(f's_add_u32 s{sT}, s2, s{sW}'); a(f's_cmp_lg_u32 s{sT}, 0'); a(f's_cbranch_scc1 {LE2}')
    a('s_mov_b64 exec, 1'); a(f'v_mov_b32 v{vT}, s{sEP}')
    a(f'buffer_store_dword v{vT}, off, {WS}, 0 sc1')
    a('s_mov_b64 exec, -1')
    a(f'{LE2}:')
    st.flush('B')
    a('s_endpgm')
    a('L_conv:')
    a.reset()
    a('s_waitcnt lgkmcnt(12)')
    for i in range(7, 3, -1):
        for jq in range(0, 8 - i): M16(CACC + 4*(i + jq), TR(i), UF + 4*jq, CACC + 4*(i + jq))
        ldT(i, True)
    a(f's_waitcnt lgkmcnt({len(a.lgq)})')
    for jq in range(8):
        for i in range(3, -1, -1):
            if i + jq <= 7: M16(CACC + 4*(i + jq), TR(i), UF + 4*jq, CACC + 4*(i + jq))
        ldU(jq)
        if jq >= 4: ldT(7 - jq, True)
    a(f'v_subrev_u32 v{vCU}, 64, v{vCU}')
    for m in range(4): a(f'v_subrev_u32 v{vCT+m}, 64, v{vCT+m}')
    a(f's_setpc_b64 s[{sRET}:{sRET+1}]')
    a('L_codeend:')

def build(path):
    prologue(); role_A(); role_B()
    body, npad = a.finalize()
    K = NAME + '_kernel'
    hdr = open('cdna_kernels/' + NAME + '.s.ref').read().split('; Override launch geometry')[0]
    o = hdr + '; @launch grid=(256,1,1) block=(512,1,1) lds=163840\n'
    o += f'.amdgcn_target "amdgcn-amd-amdhsa--gfx950"\n.text\n.globl {K}\n.p2align 8\n.type {K},@function\n{K}:\n'
    o += '\n'.join(('' if l.endswith(':') else '  ') + l for l in body) + '\n'
    o += f""".section .rodata,"a"
.p2align 6
.amdhsa_kernel {K}
  .amdhsa_next_free_vgpr 256
  .amdhsa_next_free_sgpr 102
  .amdhsa_accum_offset 256
  .amdhsa_group_segment_fixed_size 0
  .amdhsa_kernarg_size 136
  .amdhsa_user_sgpr_count 2
  .amdhsa_user_sgpr_kernarg_segment_ptr 1
  .amdhsa_system_sgpr_workgroup_id_x 1
.end_amdhsa_kernel
"""
    open(path, 'w').write(o)
    json.dump(st.names, open(path + '.stamps.json', 'w'))
    print('instrs', len(body), 'pads', npad)

if __name__ == '__main__':
    out = sys.argv[1]
    for kv in sys.argv[2:]:
        k, v = kv.split('=', 1); setattr(cfg, k, eval(v))
    build(out)
```

```python
import sys, math, struct, json
from asmlib import *
NAME = 'recurrent_scan__ssm_conv_s4__mixer_s_mlp__prompt'
def f2u(x): return struct.unpack('<I', struct.pack('<f', x))[0]
def hx(x): return hex(f2u(x))

class Cfg:
    stamps = False
    xev = 30
    laa = 8
    pumps = 2
    pumpb = 12
    la1 = 6
    g1sync = (1, 3)
    g2sync = (0, 1, 3)
    w2pre = 24
    la3 = 8
    w3a = 12
    w3b = 8
    w3d = 4
    w3f = 6
    la4 = 4
    s_ks = 16
    psleep = 0
    csleep = 2
    touch_nt = 'nt'
    touch = True
    out_fl = ''
    uprio = 3
    bprio = 0
    force_slow = False
    f1span = 24
    lag = 6
    w3e = 4
    w4a = 3
    w4ev = 20
    tailpk = False
    aprio = 3
    g4prio = 1
    pbf = 5
    cfpos = 1
    w2n = 8
    cprio = 0
    rt = False
    diag = 0
    ssleep = 0
    w1l2 = False
    w4first = False
    w4s = False
    f4fl = 'nt'
    fpos = 16
    w2first = True
    now3 = False
    now4 = False
    noconv = False
    w2l2 = False
    aflag = 0.5
    gbound = 200000
    lbound = 1000000
cfg = Cfg()

S0, W0, X0 = 0, 32768, 98304
S_KF, S_XT, S_STP, S_CS1, S_ST, S_ST3, S_CS3, S_CNT = 0, 16640, 24832, 26880, 27904, 28480, 28992, 30016
CN = {n: S_CNT + 4 * i for i, n in enumerate(
    ['S', 'SA', 'XA0', 'XA1', 'KW', 'KR', 'WC0', 'WC1', 'WC2', 'WC3', 'G1', 'W2I', 'W2L', 'W', 'HC0', 'HC1', 'HC2', 'HC3', 'X0', 'XA',
     'B', 'STAT', 'FF', 'FU', 'F4', 'FS', 'D4a', 'D4b', 'MODE', 'CS4', 'W3I', 'E3', 'KY', 'CF', 'CU', 'CS', 'ST', 'KQ', 'KE'])}
U0, USZ, KCOPY = X0 + 49152, 4608, 4160
CX0 = X0
E30 = X0 + 32768
KROW, KSZ = 528, 16896
KB0 = W0 + 65536 - 2 * KSZ
FSCR = S0 + 30720
WS_FLAG = 0x10000
WS_CFLAG = 0x8000
WS_XS = 0x40000
WS_H, WS_X1, WS_H2, WS_UT, WS_ST, WS_W3, WS_W4, WS_STAMP = 0x100000, 0x300000, 0x500000, 0xA80000, 0xCC0000, 0xF00000, 0x1080000, 0x1400000
UPS, SRS = 8320, 4224
H2C, FMT = 2 * 88 * 1024, 196608
sW, sJ, sC, sIDX, sDEL = 3, 4, 5, 6, 7
SX, SW1, SW2, SW3, SWS, SOUT = 8, 12, 16, 20, 28, 32
sMODE, sFL, sCFO, sCPB = 24, 25, 26, 27
sEP = 68
sT = 70
sK = 80
sRET, sWSP, sTAB, sST = 88, 90, 92, 94
EPS = 1e-5
LOG2E = math.log2(math.e)
GA = 2 * math.sqrt(2 / math.pi) * LOG2E
GB = GA * 0.044715
ALPHA = GB ** (1 / 3)
GK = GA / ALPHA
WS = f's[{SWS}:{SWS+3}]'

a = Asm()
vL, vS, vOne, vT = 0, 1, 2, 3

class Stamps:
    def __init__(self): self.names = {'A': [], 'B': []}
    def put(self, role, name):
        if not cfg.stamps: return
        i = len(self.names[role]); self.names[role].append(name)
        if i > 0: a(f'v_writelane_b32 v{vOne}, s{sST + 2*((i-1) & 1)}, {i + 1}')
        r = sST + 2 * (i & 1)
        a(f's_mem{"real" if cfg.rt else ""}time s[{r}:{r+1}]')
    def flush(self, role):
        if not cfg.stamps: return
        a('s_memrealtime s[8:9]'); a('s_memtime s[10:11]')
        a('s_waitcnt lgkmcnt(0)')
        a(f'v_writelane_b32 v{vOne}, s8, 62'); a(f'v_writelane_b32 v{vOne}, s10, 61')
        i = len(self.names[role])
        a(f'v_writelane_b32 v{vOne}, s{sST + 2*((i-1) & 1)}, {i + 1}')
        a(f'v_writelane_b32 v{vOne}, s98, 1')
        a(f'v_writelane_b32 v{vOne}, s100, 63')
        a('v_lshlrev_b32 v5, 2, v0')
        a(f's_lshl_b32 s{sT}, s2, 11'); a(f's_lshl_b32 s{sT+1}, s{sW}, 8'); a(f's_add_u32 s{sT}, s{sT}, s{sT+1}')
        a(f's_add_u32 s{sT}, s{sT}, {WS_STAMP + (1024 if role == "B" else 0)}')
        a(f'buffer_store_dword v{vOne}, v5, {WS}, s{sT} offen sc1')
st = Stamps()

def S(dst, terms, const=0):
    first = True
    for r, m in terms:
        t = dst if first else sT + 9
        if m == 1: src = f's{r}'
        else:
            if m & (m - 1) == 0: a(f's_lshl_b32 s{t}, s{r}, {m.bit_length()-1}')
            else: a(f's_mul_i32 s{t}, s{r}, {m}')
            src = f's{t}'
        if first:
            if m == 1:
                if const: a(f's_add_u32 s{dst}, {src}, {const & 0xffffffff}'); const = 0
                elif r != dst: a(f's_mov_b32 s{dst}, {src}')
            first = False
        else: a(f's_add_u32 s{dst}, s{dst}, {src}')
    if const: a(f's_add_u32 s{dst}, s{dst}, {const & 0xffffffff}')

def srd(d, b, n):
    a(f's_mov_b32 s{d}, s{b}'); a(f's_mov_b32 s{d+1}, s{b+1}'); a(f's_mov_b32 s{d+2}, {n}'); a(f's_mov_b32 s{d+3}, 0x20000')

def signal(cn):
    a('s_mov_b64 exec, 1'); a.lg(f'ds_add_u32 v{vS}, v{vOne} offset:{CN[cn]}'); a('s_mov_b64 exec, -1')

def spin(cn, target, sleep=0, base=None):
    L = a.label('SP'); E = a.label('SPE')
    a(f's_mov_b32 s{sT+9}, {cfg.lbound}')
    a(f'{L}:')
    a(f'ds_read_b32 v{vT}, v{vS if base is None else base} offset:{CN[cn]}')
    a('s_waitcnt lgkmcnt(0)')
    a(f'v_readfirstlane_b32 s{sT+8}, v{vT}')
    a(f's_cmp_ge_u32 s{sT+8}, {target}')
    a(f's_cbranch_scc1 {E}')
    if sleep or cfg.ssleep: a(f's_sleep {max(sleep, cfg.ssleep)}')
    a(f's_sub_u32 s{sT+9}, s{sT+9}, 1')
    a(f's_cbranch_scc0 {L}')
    a(f'{E}:')
    a.lgq = []

def chk_issue(cn, v):
    a.lg(f'ds_read_b32 v{v}, v{vS} offset:{CN[cn]}', ('chk', cn))
def chk_wait(cn, v, target):
    LOK = a.label('OK')
    a.wlg(('chk', cn))
    a(f'v_readfirstlane_b32 s{sT+8}, v{v}'); a(f's_cmp_ge_u32 s{sT+8}, {target}'); a(f's_cbranch_scc1 {LOK}')
    saved = list(a.lgq)
    spin(cn, target)
    a.lgq = saved
    a(f'{LOK}:')

def publish_col(cn, off, tag=None, last=3):
    E = a.label('PB')
    if tag is None: a.vm0()
    else: a.wvm(tag)
    a('s_mov_b64 exec, 1')
    a(f'ds_add_rtn_u32 v{vT}, v{vS}, v{vOne} offset:{CN[cn]}')
    a.lg0()
    a(f'v_readfirstlane_b32 s{sT+8}, v{vT}')
    a(f's_cmp_eq_u32 s{sT+8}, {last}')
    a(f's_cbranch_scc0 {E}')
    a(f'v_mov_b32 v{vT}, s{sEP}')
    a(f'buffer_store_dword v{vT}, off, {WS}, s{sCFO} offset:{off} sc1')
    a(f'{E}:')
    a('s_mov_b64 exec, -1')

def flag(sown, off, tag, release, touch=None):
    LS, LE = a.label('FS'), a.label('FE')
    a.wvm(tag)
    a(f'v_mov_b32 v{vT}, s{sEP}')
    a('s_mov_b64 exec, 1')
    a(f's_cmp_lg_u32 s{sMODE}, 1'); a(f's_cbranch_scc1 {LS}')
    a(f'buffer_store_dword v{vT}, off, {WS}, s{sown} offset:{off}')
    a(f's_branch {LE}')
    a(f'{LS}:')
    if release: a('buffer_wbl2 sc1'); a('s_waitcnt vmcnt(0)')
    a(f'buffer_store_dword v{vT}, off, {WS}, s{sown} offset:{off} sc1')
    a(f'{LE}:')
    a.vmq.append('flag')
    if touch and cfg.touch:
        mask, ins = touch
        a(f's_mov_b32 exec_lo, {mask if isinstance(mask, str) else hex(mask)}')
        a.vm(ins, 'touch')
    a('s_mov_b64 exec, -1')

def pollc(sbase, off, nl, vl4, v, sleep=None):
    L = a.label('PL'); E = a.label('PLE'); LF = a.label('PLF')
    sleep = cfg.psleep if sleep is None else sleep
    a(f's_mov_b32 s{sT+9}, {cfg.gbound}')
    a(f's_mov_b64 exec, {hex((1 << nl) - 1)}') if nl < 32 else a('s_mov_b32 exec_hi, 0')
    a(f'{L}:')
    a(f'buffer_load_dword v{v}, v{vl4}, {WS}, s{sbase} offen offset:{off} sc1')
    a('s_waitcnt vmcnt(0)')
    a(f'v_cmp_ne_u32 vcc, s{sEP}, v{v}')
    a(f's_cbranch_vccz {E}')
    if sleep: a(f's_sleep {sleep}')
    a(f's_sub_u32 s{sT+9}, s{sT+9}, 1')
    a(f's_cbranch_scc0 {L}')
    a(f'{E}:')
    a('s_mov_b64 exec, -1')
    a(f's_cmp_eq_u32 s{sMODE}, 1'); a(f's_cbranch_scc1 {LF}')
    a('buffer_inv sc1'); a('s_waitcnt vmcnt(0)')
    a(f'{LF}:')
    a.vmq = []

def cp_issue(off, v, va, tag):
    a('s_mov_b32 exec_hi, 0'); a.vm(f'buffer_load_dword v{v}, v{va}, {WS}, s{sCPB} offen offset:{off} sc1', tag); a('s_mov_b32 exec_hi, -1')
def cp_check(off, v, va, tag):
    L = a.label('CP'); E = a.label('CPE')
    a.wvm(tag)
    a(f's_mov_b32 s{sT+9}, {cfg.gbound}')
    a('s_mov_b32 exec_hi, 0')
    a(f'{L}:')
    a(f'v_cmp_ne_u32 vcc, s{sEP}, v{v}')
    a(f's_cbranch_vccz {E}')
    a(f's_sleep {cfg.csleep}')
    a(f'buffer_load_dword v{v}, v{va}, {WS}, s{sCPB} offen offset:{off} sc1')
    a('s_waitcnt vmcnt(0)')
    a(f's_sub_u32 s{sT+9}, s{sT+9}, 1')
    a(f's_cbranch_scc0 {L}')
    a(f'{E}:')
    a('s_mov_b32 exec_hi, -1')

ZONE = [8, 16, 52, 60]
def spoll(off, cn, wave=0, ZONE=ZONE):
    L = a.label('SC'); E = a.label('SCE'); X = a.label('SCX')
    a(f's_cmp_lg_u32 s{sW}, {wave}'); a(f's_cbranch_scc1 {X}')
    a(f's_add_u32 s92, s{sWSP}, s{sCPB}'); a(f's_addc_u32 s93, s{sWSP+1}, 0')
    a(f's_mov_b32 s{sT+9}, {cfg.gbound}')
    a(f'{L}:')
    for k in range(4): a(f's_load_dwordx8 s[{ZONE[k]}:{ZONE[k]+7}], s[92:93], {off + 128*k} glc')
    a('s_waitcnt lgkmcnt(0)')
    prs = [z + 2*i for z in ZONE for i in range(4)]
    for p in prs: a(f's_xor_b64 s[{p}:{p+1}], s[{p}:{p+1}], s[{sEP}:{sEP+1}]')
    for p in prs[1:]: a(f's_or_b64 s[8:9], s[8:9], s[{p}:{p+1}]')
    a(f's_cbranch_scc0 {E}')
    a(f's_sleep {cfg.csleep}')
    a(f's_sub_u32 s{sT+9}, s{sT+9}, 1')
    a(f's_cbranch_scc0 {L}')
    a(f'{E}:')
    n = len(a.lgq); signal(cn); del a.lgq[n:]
    a(f'{X}:')

def gelu_ops(p, t, dst, pk):
    o = []
    if pk:
        o.append(f'v_pk_fma_f32 v[{t}:{t+1}], v[{p}:{p+1}], v[{p}:{p+1}], s[{sK}:{sK+1}]')
        o.append(f'v_pk_mul_f32 v[{t}:{t+1}], v[{t}:{t+1}], v[{p}:{p+1}]')
    else:
        for i in range(2): o.append(f'v_fma_f32 v{t+i}, -v{p+i}, v{p+i}, -s{sK}')
        for i in range(2): o.append(f'v_mul_f32 v{t+i}, v{t+i}, v{p+i}')
    for i in range(2): o.append(f'v_exp_f32 v{t+i}, {"-" if pk else ""}v{t+i}')
    if pk: o.append(f'v_pk_fma_f32 v[{t}:{t+1}], v[{t}:{t+1}], s[{sK+2}:{sK+3}], s[{sK+2}:{sK+3}]')
    else:
        for i in range(2): o.append(f'v_fma_f32 v{t+i}, v{t+i}, s{sK+2}, s{sK+2}')
    for i in range(2): o.append(f'v_rcp_f32 v{t+i}, v{t+i}')
    if pk: o.append(f'v_pk_mul_f32 v[{t}:{t+1}], v[{t}:{t+1}], v[{p}:{p+1}]')
    else:
        for i in range(2): o.append(f'v_mul_f32 v{t+i}, v{t+i}, v{p+i}')
    o.append(f'v_cvt_pk_bf16_f32 v{dst}, v{t}, v{t+1}')
    return o

def interleave(lists):
    out = []; n = max(len(l) for l in lists)
    for i in range(n):
        for l in lists:
            if i < len(l): out.append(l[i])
    return out

def padd(d, x, y, n, pk=True):
    if pk:
        for i in range(0, n, 2): a(f'v_pk_add_f32 v[{d+i}:{d+i+1}], v[{x+i}:{x+i+1}], v[{y+i}:{y+i+1}]')
    else:
        for i in range(n): a(f'v_add_f32 v{d+i}, v{x+i}, v{y+i}')

def unpack(dst, src, n):
    for d in range(n):
        a(f'v_lshlrev_b32 v{dst+2*d}, 16, v{src+d}'); a(f'v_and_b32 v{dst+2*d+1}, 0xffff0000, v{src+d}')

def finstat(m):
    a(f'v_mul_f32 v{m}, {hx(1/512)}, v{m}'); a(f'v_mul_f32 v{m+1}, {hx(1/512)}, v{m+1}')
    a(f'v_fma_f32 v{m+1}, -v{m}, v{m}, v{m+1}'); a(f'v_max_f32 v{m+1}, 0, v{m+1}'); a(f'v_add_f32 v{m+1}, {hx(EPS)}, v{m+1}')
    a(f'v_rsq_f32 v{m+1}, v{m+1}')

def M32(d, x, y, c): a(f'v_mfma_f32_32x32x16_bf16 {vr(d, 16)}, {vr(x, 4)}, {vr(y, 4)}, {"0" if c is None else vr(c, 16)}')
def M16(d, x, y, c): a(f'v_mfma_f32_16x16x32_bf16 {vr(d, 4)}, {vr(x, 4)}, {vr(y, 4)}, {"0" if c is None else vr(c, 4)}')


class Lane:
    def __init__(self, tmp): self.tmp = tmp; self.cache = {}
    def field(self, off, wd):
        if (off, wd) == (0, 6): return 0
        if (off, wd) not in self.cache:
            r = self.tmp + len(self.cache); self.cache[(off, wd)] = r
            if off == 0: a(f'v_and_b32 v{r}, {(1 << wd) - 1}, v0')
            elif off + wd == 6: a(f'v_lshrrev_b32 v{r}, {off}, v0')
            else: a(f'v_bfe_u32 v{r}, v0, {off}, {wd}')
        return self.cache[(off, wd)]
    def __call__(self, dst, terms, base=None):
        cur = base
        if isinstance(cur, int) and not (0 <= cur <= 64): late = cur; cur = None
        else: late = None
        terms = sorted(terms, key=lambda t: (t[2] & (t[2] - 1)) == 0)
        for off, wd, m in terms:
            f = self.field(off, wd)
            if m & (m - 1) == 0:
                sh = m.bit_length() - 1
                if cur is None: a(f'v_lshlrev_b32 v{dst}, {sh}, v{f}')
                else: a(f'v_lshl_add_u32 v{dst}, v{f}, {sh}, {cur}')
            else:
                assert cur != f'v{dst}'
                a(f'v_mul_u32_u24 v{dst}, {m}, v{f}')
                if cur is not None: a(f'v_add_u32 v{dst}, {cur}, v{dst}')
            cur = f'v{dst}'
        if late is not None: a(f'v_add_u32 v{dst}, {late}, v{dst}')

def gelu16(A_, CSV, GT, MS, stores, zero=None, pk=False):
    o = []
    for hf in range(2):
        for pr in range(2):
            chains = []
            for kk in range(2):
                p = A_ + 8*hf + 4*pr + 2*kk; c = CSV + 8*hf + 4*pr + 2*kk
                if pk:
                    chn = [f'v_pk_fma_f32 v[{p}:{p+1}], v[{c}:{c+1}], v[{MS}:{MS+1}], v[{p}:{p+1}] op_sel_hi:[1,0,1] neg_lo:[0,1,0] neg_hi:[0,1,0]',
                           f'v_pk_mul_f32 v[{p}:{p+1}], v[{MS}:{MS+1}], v[{p}:{p+1}] op_sel:[1,0] op_sel_hi:[1,1]']
                else:
                    chn = [f'v_fma_f32 v{p+i}, -v{c+i}, v{MS}, v{p+i}' for i in range(2)] + [f'v_mul_f32 v{p+i}, v{p+i}, v{MS+1}' for i in range(2)]
                chn += gelu_ops(p, GT + 2*kk, A_ + 8*hf + 2*pr + kk, pk)
                chains.append(chn)
            o += interleave(chains)
        if zero is not None and hf == 0: o += [f'v_and_b32 v{A_+i}, s{zero}, v{A_+i}' for i in range(4)]
        so_, off, tag = stores[hf]
        o.append(('vm', f'buffer_store_dwordx4 {vr(A_ + 8*hf, 4)}, v4, {WS}, s{so_} offen offset:{off} sc1', tag))
    return o

def consts():
    a(f's_mov_b32 s{sK}, {hx(GK)}'); a(f's_mov_b32 s{sK+1}, {hx(GK)}')
    a(f's_mov_b32 s{sK+2}, {hx(ALPHA)}'); a(f's_mov_b32 s{sK+3}, {hx(ALPHA)}')
    a(f's_mov_b32 s{sK+4}, 0x3f803f80')
    S(sFL, [(sC, 1024)], WS_FLAG)
    S(sCPB, [(sJ, 2048)], WS_CFLAG)

SWP = {}
def swp(y, ys):
    SWP[y] = ys
    return [f'v_mov_b32 v{ys}, v{y+1}', f'v_mov_b32 v{ys+1}, v{y}']
def cmul(d, x, y):
    ys = SWP[y]
    return [f'v_pk_mul_f32 v[{d}:{d+1}], v[{x}:{x+1}], v[{y}:{y+1}] op_sel_hi:[0,1]',
            f'v_pk_fma_f32 v[{d}:{d+1}], v[{x}:{x+1}], v[{ys}:{ys+1}], v[{d}:{d+1}] op_sel:[1,0,0] neg_lo:[0,1,0]']

def kpre(P, nmul, E, tmp):
    a('s_waitcnt lgkmcnt(0)')
    a(f's_bitcmp1_b32 s{sW}, 1'); a(f's_cselect_b32 s{sT}, 0, 16')
    a(f's_lshl_b32 s66, s66, s{sT}'); a('s_and_b32 s66, s66, 0xffff0000'); a(f's_lshl_b32 s67, s67, s{sT}'); a('s_and_b32 s67, s67, 0xffff0000')
    a(f'v_mov_b32 v{P+6}, {hx(LOG2E)}'); a(f'v_mul_f32 v{P+6}, s66, v{P+6}'); a(f'v_exp_f32 v{P+6}, v{P+6}')
    for i in range(6 if nmul == 4 else 2): a(f'v_lshlrev_b32 v{P+i}, 16, v{P+i}')
    a(f'v_cvt_pk_bf16_f32 v{P+6}, v{P+6}, v{P+6}'); a(f'v_and_b32 v{P+6}, 0xffff0000, v{P+6}')
    for i in range(nmul): a(f'v_mul_f32 v{P+i}, v{P+6}, v{P+i}')
    chains = []
    for n, (l, r) in enumerate(E.items()):
        t = tmp + 2 * n
        chains.append([f'v_mul_f32 v{t}, {hx(l*LOG2E)}, v{P}', f'v_mul_f32 v{t+1}, {hx(l/(2*math.pi))}, v{P+1}', f'v_exp_f32 v{t}, v{t}', f'v_fract_f32 v{t+1}, v{t+1}',
                       f'v_cos_f32 v{r}, v{t+1}', f'v_sin_f32 v{r+1}, v{t+1}', f'v_mul_f32 v{r}, v{r}, v{t}', f'v_mul_f32 v{r+1}, v{r+1}, v{t}'])
    for x in interleave(chains): a(x)

vL16 = 4
sD = sT + 4
def prologue():
    if cfg.stamps or cfg.diag:
        a('s_memtime s[98:99]'); a('s_memrealtime s[100:101]')
    a('s_load_dwordx16 s[36:51], s[0:1], 0')
    a('s_load_dwordx8 s[56:63], s[0:1], 80')
    a(f's_load_dwordx2 s[{sWSP}:{sWSP+1}], s[0:1], 128')
    a('s_load_dwordx2 s[52:53], s[0:1], 64')
    a('s_load_dwordx2 s[64:65], s[0:1], 112')
    a('s_cmp_ge_u32 s2, 256'); a('s_cbranch_scc1 L_exit')
    a('v_lshrrev_b32 v3, 6, v0')
    a('v_and_b32 v0, 63, v0')
    a(f'v_readfirstlane_b32 s{sW}, v3')
    a(f's_getpc_b64 s[{sT+2}:{sT+3}]')
    a('L_pc:')
    a(f's_lshr_b32 s{sJ}, s2, 3'); a(f's_and_b32 s{sJ}, s{sJ}, 7')
    a('v_lshlrev_b32 v5, 7, v0'); a(f'v_lshlrev_b32 v{vL16}, 4, v0')
    a(f's_cmp_lg_u32 s{sW}, 7'); a('s_cbranch_scc1 L_nocode')
    a(f's_and_b32 s{sT}, s{sJ}, 3'); a(f's_lshl_b32 s{sT}, s{sT}, 13'); a(f'v_add_u32 v6, s{sT}, v5')
    a(f'v_min_u32 v6, L_codeend-L_pc-4, v6')
    a(f'global_load_dword v127, v6, s[{sT+2}:{sT+3}]')
    a('L_nocode:')
    a(f's_and_b32 s{sC}, s2, 7'); a(f's_lshl_b32 s{sC}, s{sC}, 2'); a(f's_lshr_b32 s{sT}, s2, 6'); a(f's_add_u32 s{sC}, s{sC}, s{sT}')
    a(f's_lshl_b32 s{sIDX}, s{sC}, 3')
    a(f's_lshr_b32 s{sT}, s{sJ}, 2'); a(f's_add_u32 s{sDEL}, s{sT}, 1')
    a(f's_sub_u32 s{sT}, 0, s{sDEL}')
    a(f's_bitcmp1_b32 s{sJ}, 1'); a(f's_cselect_b32 s{sDEL}, s{sDEL}, s{sT}')
    a(f'v_mov_b32 v{vS}, {S0}'); a(f'v_mov_b32 v{vOne}, 1')
    a(f's_cmp_lt_u32 s{sW}, 4'); a('s_cbranch_scc1 L_A')
    a('s_setprio 3')
    a(f's_sub_u32 s{sW}, s{sW}, 4')
    a(f's_bfe_u32 s{sT}, s{sW}, 0x10001'); S(sD, [(sJ, 64), (sC, 2), (sT, 1)])
    a(f's_and_b32 s{sT+1}, s{sW}, 1'); S(sT, [(sD, 256), (sT + 1, 128)])
    a(f'v_lshl_add_u32 v8, v0, 1, s{sT}')
    a(f's_lshl_b32 s{sT+6}, s{sD}, 1'); a(f's_andn2_b32 s{sT+6}, s{sT+6}, 3')
    a(f's_add_u32 s{sT}, s{sIDX}, s{sJ}')
    a(f's_lshl_b32 s{sT+1}, s{sT}, 13'); a(f'v_add_u32 v6, s{sT+1}, v5')
    a(f's_lshl_b32 s{sT+1}, s{sT}, 11'); a(f'v_add_u32 v7, s{sT+1}, v5')
    a(f'v_lshlrev_b32 v10, 2, v0'); a('v_mov_b32 v11, 0')
    a(f'ds_write_b32 v10, v11 offset:{S_CNT}')
    S(sT, [(sC, 1024)], WS_FLAG); a(f'v_add_u32 v10, s{sT}, v5')
    a('v_lshrrev_b32 v12, 2, v0'); a('v_mul_u32_u24 v12, 2688, v12'); a(f'v_add_u32 v12, v12, v{vL16}')
    S(73, [(sC, 16*2752), (sJ, 352), (sW, 192)])
    a(f's_cmp_ge_u32 s{sJ}, 6'); a(f's_cselect_b32 s{sT}, 32, 0'); a(f's_sub_u32 s73, s73, s{sT}')
    a('v_lshrrev_b32 v60, 3, v0'); a(f'v_mul_u32_u24 v60, 896, v60'); a(f'v_add_u32 v60, v60, v{vL16}')
    a(f's_cmp_lt_i32 s{sDEL}, 0'); a(f's_cselect_b32 s75, 64, -2'); a(f's_add_u32 s75, s75, s{sDEL}')
    S(sT, [(sC, 65536), (75, 1024)]); a(f'v_lshl_add_u32 v61, v0, 5, s{sT}')
    S(77, [(sC, 65536), (sJ, 128), (sW, 16384)])
    a(f's_lshl_b32 s{sT+1}, s{sW}, 11'); a(f's_add_u32 m0, s{sT+1}, {S0 + S_XT}')
    a('s_waitcnt lgkmcnt(0)')
    nt = cfg.touch_nt
    for i in range(6): a(f'global_load_ushort v{48+i}, v8, s[{38+2*i}:{39+2*i}] {nt}')
    a(f's_load_dword s66, s[50:51], s{sT+6}'); a(f's_load_dword s67, s[52:53], s{sT+6}')
    a(f's_load_dword s{sEP}, s[{sWSP}:{sWSP+1}], 0')
    srd(SX, 36, 2097152)
    a(f's_cmp_eq_u32 s{sW}, 2'); a('s_cbranch_scc1 L_f2b')
    a(f's_cmp_eq_u32 s{sW}, 3'); a('s_cbranch_scc1 L_f2c')
    srd(SW3, 60, 1409024)
    for m in range(3): a(f'buffer_load_dwordx4 {vr(240 + 4*m, 4)}, v12, s[{SW3}:{SW3+3}], s73 offen offset:{64*m} {nt}')
    a('s_branch L_f2d')
    a('L_f2b:')
    a(f'global_load_dword v56, v6, s[36:37] {nt}')
    a('s_mov_b64 exec, 0xffff')
    a('global_load_dword v57, v7, s[56:57]')
    a('global_load_dword v58, v7, s[58:59]')
    a('s_branch L_f2d')
    a('L_f2c:')
    for k in range(2): a(f'buffer_load_dwordx4 {vr(232 + 4*k, 4)}, v61, s[{SX}:{SX+3}], 0 offen offset:{16*k}')
    a('s_mov_b64 exec, 0x1f')
    a(f'global_load_dword v56, v10, s[{sWSP}:{sWSP+1}] sc1')
    a('L_f2d:')
    a('s_mov_b64 exec, -1')
    a(f'buffer_load_dwordx4 v60, s[{SX}:{SX+3}], s77 offen lds')
    a('s_addk_i32 m0, 1024'); a('s_addk_i32 s77, 8192')
    a(f'buffer_load_dwordx4 v60, s[{SX}:{SX+3}], s77 offen lds')
    a('s_barrier')
    a('s_setprio 1')
    a('s_branch L_B')
    a('L_exit:')
    a('s_endpgm')
    a('L_A:')

his = list(range(9)) + [256, 258, 260, 262, 264, 512, 516, 520, 768, 772, 776, 1024, 1032, 1280, 1288, 1536, 1544, 1792, 1800]
h0 = list(range(9)) + [512, 516, 520, 1024, 1032, 1536, 1544]
h1 = [256, 256, 258, 260, 260, 260, 262, 264, 264, 768, 772, 776, 1280, 1288, 1792, 1800]
rowof = lambda v, half: (v & 3) + 8 * (v >> 2) + 4 * half
xrows = {h: [rowof(v, 0) for v, x in enumerate(h0) if x == h] + [rowof(v, 1) for v, x in enumerate(h1) if x == h] for h in his}

def role_A():
    vXF = list(range(16, 24)); vW1 = list(range(24, 28))
    vW, vL4, vXA, vSW, vSR, vCR, vW2, vW2b, vXT, vST, vHF, vXS, vS3 = range(28, 41)
    vCP, vSD, vDW, vL4b = 12, 13, 14, 15
    vCK = 7
    XF, RG, ACC, CSA = 128, 64, 96, 112
    s16W, sOWN, sPB, sJP, sFO, sFP = sT + 5, 40, 41, 42, 43, 44
    sOA, sOB, sH, sX1, sXS, sXSL, sW4, sHL, sX1L, sSD, sH2, sXC = sT + 6, 46, 47, 48, 49, 50, 51, 52, 53, 54, 55, 38
    a('v_lshrrev_b32 v10, 4, v0'); a('v_and_b32 v11, 15, v0')
    a('v_xor_b32 v11, v11, v10'); a('v_lshlrev_b32 v11, 4, v11')
    S(sT, [(sC, 65536), (sDEL, 1024), (sW, 256)])
    a(f'v_lshl_add_u32 v12, v10, 10, s{sT}')
    for m in range(4):
        if m == 0: a('v_add_u32 v56, v12, v11')
        else:
            a(f'v_xor_b32 v13, {64*m}, v11'); a(f'v_add_u32 v13, {4096*m}, v13'); a(f'v_add_u32 v{56+m}, v12, v13')
    a('v_add_u32 v60, 0x4000, v56')
    a(f's_mov_b32 s{sT+2}, 0x4000'); a(f's_mov_b32 s{sT+3}, 0x8000'); a(f's_mov_b32 s{sT+4}, 0xc000')
    a(f's_lshl_b32 s{s16W}, s{sW}, 14')
    a('s_setprio 2')
    a(f's_mov_b32 s{sK+4}, 0x3f803f80')
    S(sOA, [(sW, 131072), (sJ, 128)])
    sTH, sNH, sSS, sHS, sZ, sTM = 66, 67, 39, 58, 60, 61
    a(f's_lshr_b32 s{sTH}, s{sW}, 1'); a(f's_and_b32 s{sNH}, s{sW}, 1')
    L = Lane(100)
    hf_, l15 = L.field(5, 1), L.field(0, 4)
    a(f'v_xor_b32 v8, v{l15}, v{hf_}')
    S(sT, [(sTH, 8192), (sW, 16384)]); L(9, [(0, 5, 256)], f's{sT}'); a('v_lshl_add_u32 v8, v8, 4, v9')
    a(f's_mov_b32 s{sT}, {X0}')
    for c_ in range(4):
        a(f'v_xor_b32 v9, {c_ << 14}, v8'); a(f'v_add_u32 v{XF + 32*c_}, s{sT}, v9')
        for ks in range(1, 8): a(f'v_xor_b32 v{XF + 32*c_ + 4*ks}, {ks << 5}, v{XF + 32*c_}')
    for ks in range(8): a(f'v_xor_b32 v{RG + 4*ks}, 0x2000, v{XF + 4*ks}')
    L(9, [(2, 2, 128), (4, 1, 32), (0, 2, 8), (3, 1, 64)]); a(f's_lshl_b32 s{sT}, s{sNH}, 6'); a(f'v_xor_b32 v9, s{sT}, v9')
    L(8, [(5, 1, 1024)], 'v9'); a(f'v_add_u32 v8, s{s16W}, v8')
    for q in range(4): a(f'v_xor_b32 v{vW1[q]}, {q << 14}, v8')
    L(vW, [(3, 3, 1024), (0, 3, 16)]); L(8, [(4, 1, 64)]); a(f'v_xor_b32 v{vW}, v{vW}, v8')
    L(vL4, [(0, 6, 4)])
    a(f's_lshl_b32 s{sT}, s{sW}, 8'); a(f'v_add_u32 v{vSW}, s{sT}, v{vL4}')
    S(sT, [(sT, 1), (sTH, 1024)]); a(f'v_add_u32 v{vXA}, s{sT}, v{vL4}'); a(f'v_xor_b32 v16, 0x400, v{vXA}')
    a('v_mov_b32 v17, v9')
    a('s_waitcnt lgkmcnt(0)')
    srd(SX, 36, 2097152)
    a('s_barrier')
    a(f's_load_dword s{sEP}, s[{sWSP}:{sWSP+1}], 0')
    srd(SW1, 56, 524288); srd(SWS, sWSP, 268435456); srd(SW2, 58, 524288)
    srd(SW3, 62, 1409024)
    sF4 = 36
    S(sF4, [(sC, 48*1024), (sJ, 128)])
    a('v_lshrrev_b32 v47, 2, v0'); a('v_mul_u32_u24 v47, 960, v47'); a(f'v_add_u32 v47, v47, v{vL16}')
    a(f's_lshr_b32 s{sOB}, s2, 3'); S(sOB, [(sOB, 16384), (sW, 4096)])
    def dmaX(i, first=False):
        m, blk = i & 3, i >> 2
        v = 60 if (m == 0 and blk > 0) else 56 + m
        b = blk - 1 if (m == 0 and blk > 0) else blk
        so = '0' if b == 0 else f's{sT+1+b}'
        if first: a(f's_add_u32 m0, s{s16W}, {X0 + 1024*i}')
        else: a('s_addk_i32 m0, 1024')
        a.vm(f'buffer_load_dwordx4 v{v}, s[{SX}:{SX+3}], {so} offen lds', ('x', i))
    st.put('A', 'setup')
    consts()
    a(f's_and_b32 s{sJP}, s{sJ}, 1')
    S(sOWN, [(sIDX, 8192), (sJ, 8192)]); S(sPB, [(sW, 16384), (sIDX, 8192), (sJP, 8192)])
    S(sFO, [(sJ, 16), (sW, 4), (sFL, 1)]); S(sFP, [(sW, 32), (sFL, 1)])
    S(sH, [(sW, 2048), (sOWN, 1)], WS_H); a(f's_add_u32 s{sX1}, s{sH}, {WS_X1 - WS_H}')
    a(f's_lshr_b32 s{sXS}, s{sOWN}, 3'); S(sXS, [(sXS, 1), (sW, 256)], WS_XS); S(sXSL, [(sIDX, 1024)], WS_XS)
    S(sW4, [(sW, 22*2048), (sJ, FMT)], WS_W4)
    a(f's_cmp_eq_u32 s{sW}, 3'); a(f's_cselect_b32 s{sT}, 2048, 0'); a(f's_sub_u32 s{sW4}, s{sW4}, s{sT}')
    a(f's_add_u32 s{sHL}, s{sPB}, {WS_H}'); a(f's_add_u32 s{sX1L}, s{sPB}, {WS_X1}')
    S(sH2, [(sC, H2C), (sW, 22*1024)], WS_H2)
    S(sSS, [(sJ, 64*SRS), (sC, 2*SRS), (sTH, SRS), (sNH, 2048)], WS_ST)
    S(sHS, [(sC, H2C), (sJ, 11*1024), (sTH, 2048), (sNH, 88*1024)], WS_H2 + 8192)
    a(f's_cmp_ge_u32 s{sW}, 2'); a(f's_cselect_b32 s{sHS+1}, 0x80000000, s{sHS}'); a(f's_cselect_b32 s{sTM}, 0xff, -1'); a(f's_and_b32 s{sTM}, s{sTM}, 0xffff')
    a(f's_or_b32 s{sT}, s{sJ}, 2'); S(sT, [(sT, 2), (sTH, 1)]); a(f's_cmp_eq_u32 s{sT}, 15'); a(f's_cselect_b32 s{sZ}, 0, -1')
    a(f's_lshr_b32 s{sT}, s{sC}, 3'); a(f's_and_b32 s{sT+1}, s{sC}, 7'); S(sCFO, [(sT, 128), (sT + 1, 4), (sCPB, 1)])
    S(sT, [(sJP, 8192)], X0); L(vW2, [(5, 1, 512)], 'v17'); a(f'v_add_u32 v{vW2}, s{sT}, v{vW2}'); a(f'v_xor_b32 v{vW2b}, 0x2000, v{vW2}')
    S(sT, [(sTH, 1024)], S0 + S_STP); L(vSR, [(0, 5, 4)], f's{sT}')
    a(f's_lshl_b32 s{sT}, s{sNH}, 8'); L(vCR, [(5, 1, 16)], f's{sT}')
    S(sT, [(sTH, 4096), (sNH, 64)]); L(vXT, [(0, 5, 128), (5, 1, 8)], f's{sT}')
    a(f's_lshl_b32 s{sT}, s{sTH}, 8'); L(vST, [(0, 5, 8)], f's{sT}')
    S(sT, [(sTH, 4096)], W0); a(f'v_add_u32 v{vHF}, s{sT}, v{vL16}')
    S(sT, [(sTH, 512), (sNH, 64)]); L(vXS, [(4, 1, 256), (5, 1, 128), (0, 4, 4)], f's{sT}')
    a(f's_lshl_b32 s{sT}, s{sW}, 7'); L(vS3, [(0, 4, 8)], f's{sT}')
    S(sT, [(sW, 8192), (sNH, 4096)], CX0); L(43, [(1, 4, 16), (0, 1, 512), (5, 1, 1024)], f's{sT}')
    S(sT, [(sTH, 512)], S0 + S_CS3); L(44, [(5, 1, 16)], f's{sT}')
    a(f's_lshl_b32 s{sT}, s{sNH}, 8'); L(45, [(0, 5, 8)], f's{sT}')
    L(41, [(3, 3, 128), (0, 3, 4)])
    st.put('A', 'setup2')
    def fdma():
        for k in range(2):
            a(f's_add_u32 s{sT}, s{sW}, {4*k}'); a(f's_cmp_ge_u32 s{sT}, 3'); a(f's_cselect_b32 s{sT+1}, 1, 0')
            a(f's_lshl_b32 s{sT+8}, s{sT+1}, 10'); a(f's_lshl_b32 s{sT+9}, s{sT}, 10'); a(f's_add_u32 s{sT+8}, s{sT+8}, s{sT+9}')
            a(f's_min_u32 s{sT+8}, s{sT+8}, 7168'); a(f's_add_u32 m0, s{sT+8}, {S0 + S_KF + 8192}')
            a(f's_mul_i32 s{sT+1}, s{sT+1}, {(64 - 3*16384) & 0xffffffff}'); a(f's_lshl_b32 s{sT+9}, s{sT}, 14'); a(f's_add_u32 s{sT+1}, s{sT+1}, s{sT+9}')
            a(f's_add_u32 s{sT+1}, s{sT+1}, s{sF4}'); a(f's_cmp_ge_u32 s{sT}, 6'); a(f's_cselect_b32 s{sT+1}, 0x80000000, s{sT+1}')
            a.vm(f'buffer_load_dwordx4 v47, s[{SW3}:{SW3+3}], s{sT+1} offen {cfg.f4fl} lds', 'f')
    for i in range(16):
        if i == cfg.fpos: fdma()
        dmaX(i, i in (0, cfg.fpos))
    if cfg.fpos == 16: fdma()
    nq = [0]
    def pump(n=1):
        for _ in range(n):
            i = nq[0]
            if i >= 16: return
            nq[0] += 1
            if i == 0: a(f's_add_u32 m0, s{s16W}, {W0}')
            else: a('s_addk_i32 m0, 1024'); a(f's_addk_i32 s{sOA}, 8192')
            a.vm(f'buffer_load_dwordx4 v{vW}, s[{SW1}:{SW1+3}], s{sOA} offen lds', ('w1', i >> 3))
    for i in range(48, 52): a(f'v_mov_b32 v{i}, 0')
    for i in range(60, 64): a(f'v_mov_b32 v{i}, s{sK+4}')
    a('s_setprio 2')
    LT1, LTE = a.label('TH'), a.label('TH')
    a(f's_cmp_eq_u32 s{sTH}, 1'); a(f's_cbranch_scc1 {LT1}')
    saved = (list(a.vmq), list(a.lgq))
    for var in range(2):
        if var:
            a(f'{LT1}:'); a.vmq, a.lgq = list(saved[0]), list(saved[1]); nq[0] = 0
        for ph in range(2):
            own = (ph == var); B_ = XF if own else RG; acc_ = 48 if own else 50
            a.wvm(('x', 8*ph + 7))
            if ph: signal('XA1')
            for ks in range(8): a.lg(f'ds_read_b128 {vr(B_ + 4*ks, 4)}, v{B_ + 4*ks}', ('xs', ph, ks))
            for ks in range(8):
                pump()
                a.wlg(('xs', ph, ks))
                for d in range(4):
                    r = B_ + 4*ks + d
                    a(f'v_dot2c_f32_bf16 v{acc_}, s{sK+4}, v{r}'); a(f'v_dot2c_f32_bf16 v{acc_+1}, v{r}, v{r}')
                if ph and ks == 4: chk_issue('XA1', vCK)
        if var == 0: a(f's_branch {LTE}')
    a(f'{LTE}:')
    a('s_nop 2')
    chk_wait('XA1', vCK, 4)
    rest = [n for n in range(8, 32) if (n & 7) < 4] + [n for n in range(8, 32) if (n & 7) >= 4]
    for n in rest[:8]: a.lg(f'ds_read_b128 {vr(XF + 4*n, 4)}, v{XF + 4*n}')
    a('v_permlane32_swap_b32 v48, v49'); a('v_permlane32_swap_b32 v50, v51'); a('v_add_f32 v48, v48, v49'); a('v_add_f32 v50, v50, v51')
    a.lg(f'ds_write_b32 v{vXA}, v48 offset:{S0 + S_STP}'); a.lg(f'ds_write_b32 v16, v50 offset:{S0 + S_STP}')
    a.wvm('f')
    signal('S')
    st.put('A', 'S')
    if cfg.w4s:
        a('s_mov_b64 exec, 0x7ff'); a.vm(f'buffer_load_dword v47, v5, s[{SW3}:{SW3+3}], s45 offen', 'tw4'); a('s_mov_b64 exec, -1')
    if cfg.w2l2:
        a('s_mov_b32 exec_hi, 0'); a.vm(f'buffer_load_dword v55, v5, s[{SW2}:{SW2+3}], s{sOB} offen', 'tw2'); a('s_mov_b32 exec_hi, -1')
    for n in rest[8:]: a.lg(f'ds_read_b128 {vr(XF + 4*n, 4)}, v{XF + 4*n}')
    a.wvm(('w1', 0)); signal('WC0')
    spin('WC0', 4)
    st.put('A', 'g1_go')
    seq = [8*c_ + ks for c_ in range(4) for ks in range(4)] + [8*c_ + ks for c_ in range(4) for ks in range(4, 8)]
    def rdw(pos):
        n = seq[pos]
        for p in range(2):
            a.lg(f'ds_read_b64_tr_b16 {vr(RG + 4*(pos % 8) + 2*p, 2)}, v{vW1[n >> 3]} offset:{W0 + 2048*(n & 7) + 512*p}', ('wf', pos))
    LA = cfg.la1
    for pos in range(LA): rdw(pos)
    mark = len(a.L)
    padd(8, 8, 12, 4, False); padd(52, 8, 10, 2, False)
    finstat(52)
    a('v_mul_f32 v8, v53, v53'); a(f'v_mov_b32 v9, {hx(1 + EPS)}'); a(f'v_fmac_f32 v9, {hx(-EPS)}, v8')
    a('v_rsq_f32 v9, v9')
    a(f'v_mul_f32 v53, s{sK+2}, v53'); a('v_mul_f32 v53, v53, v9')
    a(f's_add_u32 s{sEP}, s{sEP}, 1'); a(f's_mov_b32 s{sEP+1}, s{sEP}')
    a(f's_getreg_b32 s{sXC}, hwreg(HW_REG_XCC_ID, 0, 4)')
    if cfg.force_slow: a(f's_mov_b32 s{sXC}, s{sJ}')
    a(f's_lshl_b32 s{sXC}, s{sXC}, 28'); a(f's_add_u32 s{sXC}, s{sXC}, s{sEP}')
    side = a.L[mark:]; del a.L[mark:]
    for pos in range(32):
        n = seq[pos]
        if pos == 1:
            for w2 in range(4): a.lg(f'ds_read2_b32 v[{8+2*w2}:{9+2*w2}], v{vSR} offset0:{64*w2} offset1:{64*w2+32}', 'sp')
        if pos == 16 - LA - 4: a.wvm(('w1', 1)); signal('WC1')
        if pos == 16 - LA - 2: chk_issue('WC1', vCK)
        if pos == 16 - LA: chk_wait('WC1', vCK, 4)
        if pos == 20:
            a('s_mov_b64 exec, 0xff'); a.vm(f'buffer_load_dword v54, v{vL4}, {WS}, s{sFL} offen offset:768 sc1', 'md'); a('s_mov_b64 exec, -1')
        if pos + LA < 32: rdw(pos + LA)
        a.wlg(('wf', pos))
        if n < 16: M32(CSA, 60, RG + 4*(pos % 8), None if pos == 0 else CSA)
        M32(ACC, RG + 4*(pos % 8), XF + 4*n, None if pos == 0 else ACC)
        if pos >= 11:
            for _ in range(2):
                if side: a(side.pop(0))
        if pos == 26:
            a.lg(f'ds_write_b32 v{vSW}, v{CSA} offset:{S0 + S_CS1}')
            signal('G1')
        if pos == 29: chk_issue('G1', vCK)
    assert not side
    st.put('A', 'g1_mfma')
    chk_wait('G1', vCK, 4)
    CSR = XF
    for q in range(4):
        for s_ in range(2): a.lg(f'ds_read_b128 {vr(CSR + 16*s_ + 4*q, 4)}, v{vCR} offset:{S0 + S_CS1 + 512*s_ + 32*q}', ('cs', q >> 1))
    for hf in range(2):
        a.wlg(('cs', hf))
        padd(CSR + 8*hf, CSR + 8*hf, CSR + 16 + 8*hf, 8)
        chains = []
        for i in range(0, 8, 2):
            o = ACC + 8*hf + i; c = CSR + 8*hf + i
            ch = [f'v_pk_fma_f32 v[{o}:{o+1}], v[{c}:{c+1}], v[52:53], v[{o}:{o+1}] op_sel_hi:[1,0,1] neg_lo:[0,1,0] neg_hi:[0,1,0]',
                  f'v_pk_mul_f32 v[{o}:{o+1}], v[52:53], v[{o}:{o+1}] op_sel:[1,0] op_sel_hi:[1,1]']
            ch += gelu_ops(o, RG + i, 56 + 4*hf + i // 2, True)
            chains.append(ch)
        for x in interleave(chains): a(x)
        a.vm(f'buffer_store_dwordx4 {vr(56 + 4*hf, 4)}, v{vL16}, {WS}, s{sH} offen offset:{1024*hf} sc1', 'hst')
    st.put('A', 'h_stored')
    LMP, LME = a.label('MD'), a.label('MD')
    a.wvm('md')
    a(f's_mov_b32 s{sT+9}, {cfg.gbound}')
    a('s_mov_b64 exec, 0xff')
    a(f'{LMP}:')
    a(f'v_subrev_u32 v8, s{sEP}, v54'); a('v_and_b32 v8, 0x0fffffff, v8')
    a('v_cmp_ne_u32 vcc, 0, v8')
    a(f's_cbranch_vccz {LME}')
    a(f's_sleep {cfg.csleep}')
    a(f'buffer_load_dword v54, v{vL4}, {WS}, s{sFL} offen offset:768 sc1')
    a('s_waitcnt vmcnt(0)')
    a(f's_sub_u32 s{sT+9}, s{sT+9}, 1'); a(f's_cbranch_scc0 {LMP}')
    a(f'{LME}:')
    a(f'v_cmp_ne_u32 vcc, s{sXC}, v54')
    a('s_cmp_eq_u64 vcc, 0'); a(f's_cselect_b32 s{sMODE}, 1, 2')
    a(f'v_mov_b32 v8, s{sMODE}')
    a('s_mov_b64 exec, 1'); a.lg(f'ds_write_b32 v{vS}, v8 offset:{CN["MODE"]}'); a('s_mov_b64 exec, -1')
    spin('W2L', 4)
    def rdw2(n):
        for p in range(2):
            a.lg(f'ds_read_b64_tr_b16 {vr(XF + 4*n + 2*p, 2)}, v{vW2b if n & 4 else vW2} offset:{2048*(n & ~4) + 1024*p}', 'w2f')
    for q in range(4): a.lg(f'ds_read_b64 v[{8+2*q}:{9+2*q}], v{vXT} offset:{S0 + S_XT + 16*q}', 'xt')
    a.lg(f'ds_read_b64 v[50:51], v{vST} offset:{S0 + S_ST + 16}', 'xt')
    for n in range(cfg.w2pre): rdw2(n)
    flag(sFO, 0, 'hst', False)
    st.put('A', 'h_flag')
    for n in range(cfg.w2pre, 32): rdw2(n)
    signal('W')
    a.wlg('xt')
    unpack(ACC, 8, 8)
    for i in range(16): a(f'v_sub_f32 v{ACC+i}, v{ACC+i}, v50')
    for i in range(16): a(f'v_mul_f32 v{ACC+i}, v{ACC+i}, v51')
    st.put('A', 'rdy')
    def image(sbase, tag, c):
        pp, rh = c >> 1, c & 1
        if c == 2: a(f's_xor_b32 s{sbase}, s{sbase}, 8192')
        if rh == 0: a(f's_add_u32 s{sOB}, s{sbase}, 4096')
        for th in range(2):
            a(f's_add_u32 m0, s{s16W}, {W0 + 8192*pp + 4096*th}')
            for r in range(2*rh, 2*rh + 2):
                a.vm(f'buffer_load_dwordx4 v{vL16}, {WS}, s{sOB if th else sbase} offen offset:{1024*r} sc1 lds', (tag, c))
    pollc(sFP, 0, 8, vL4, 48)
    st.put('A', 'h_seen')
    for c in range(3): image(sHL, 'h', c)
    seq2 = [8*w2 + 4*(c >> 1) + 2*(c & 1) + r for c in range(4) for w2 in range(4) for r in range(2)]
    def rdh(pos):
        n = seq2[pos]
        a.lg(f'ds_read_b128 {vr(RG + 4*(pos % 8), 4)}, v{vHF} offset:{8192*(n >> 2) + 1024*(n & 3)}', ('hf', pos))
    g2s = cfg.g2sync
    a.wvm(('h', g2s[0])); signal('HC0'); image(sHL, 'h', 3); spin('HC0', 4)
    st.put('A', 'g2_go')
    LA2 = 5
    for pos in range(LA2): rdh(pos)
    for pos in range(32):
        c = pos >> 3
        if c in g2s[:-1]:
            nx = g2s[g2s.index(c) + 1]
            if pos % 8 == 0: a.wvm(('h', nx)); signal(f'HC{nx}')
            if pos % 8 == 1: chk_issue(f'HC{nx}', vCK)
            if pos % 8 == 8 - LA2: chk_wait(f'HC{nx}', vCK, 4)
        if pos + LA2 < 32: rdh(pos + LA2)
        a.wlg(('hf', pos))
        M32(ACC, XF + 4*seq2[pos], RG + 4*(pos % 8), ACC)
    st.put('A', 'g2_mfma')
    for hf in range(2):
        for i in range(4): a(f'v_cvt_pk_bf16_f32 v{56+4*hf+i}, v{ACC+8*hf+2*i}, v{ACC+8*hf+2*i+1}')
        a.vm(f'buffer_store_dwordx4 {vr(56 + 4*hf, 4)}, v{vL16}, {WS}, s{sX1} offen offset:{1024*hf} sc1', 'x1st')
    for k in range(2):
        a(f'v_add_f32 v{8+2*k}, v{ACC+8*k}, v{ACC+8*k+1}'); a(f'v_mul_f32 v{9+2*k}, v{ACC+8*k}, v{ACC+8*k}')
    for i in range(1, 8):
        for k in range(2):
            if i > 1: a(f'v_add_f32 v{8+2*k}, v{8+2*k}, v{ACC+8*k+i}')
            a(f'v_fmac_f32 v{9+2*k}, v{ACC+8*k+i}, v{ACC+8*k+i}')
    a('v_add_f32 v8, v8, v10'); a('v_add_f32 v9, v9, v11')
    a('v_permlane32_swap_b32 v8, v9'); a('v_add_f32 v8, v8, v9')
    for q in range(1, 4): a(f'v_mov_b32_dpp v{8+q}, v8 quad_perm:[{q},{q},{q},{q}] row_mask:0xf bank_mask:0xf')
    a('s_mov_b32 exec_lo, 0x11111111'); a('s_mov_b32 exec_hi, 0x11111111')
    a.vm(f'buffer_store_dwordx4 v[8:11], v{vL4}, {WS}, s{sXS} offen sc1', 'x1st')
    a('s_mov_b64 exec, -1')
    st.put('A', 'x1_stored')
    a(f'v_mov_b32 v{vCP}, v41')
    a(f's_add_u32 s{sT}, s{s16W}, {X0}'); a(f'v_add_u32 v{vDW}, s{sT}, v{vL16}')
    W4F, ACC4, RING = 80, 48, 16
    flag(sFO, 128, 'x1st', False)
    st.put('A', 'x1_flag')
    pollc(sFL, 128, 32, vL4, 48)
    st.put('A', 'x1_seen')
    for c in range(3): image(sX1L, 'x1', c)
    chk_issue('W3I', vCK)
    a.wvm(('x1', 0)); signal('X0')
    image(sX1L, 'x1', 3)
    a.wvm(('x1', 1)); signal('XA0')
    for q in range(8):
        if q == 4: a(f's_addk_i32 s{sXSL}, 4096')
        a.vm(f'buffer_load_dword v{48+q}, v{vXS}, {WS}, s{sXSL} offen offset:{1024*(q & 3)} sc1', 'xs')
    chk_wait('W3I', vCK, 4)
    a.wvm(('x1', 3)); signal('XA')
    st.put('A', 'x1_in')
    def w4issue(ks):
        for nt_ in range(2):
            a.vm(f'buffer_load_dwordx4 {vr(W4F + 8*ks + 4*nt_, 4)}, v{vL16}, {WS}, s{sW4} offen offset:{2048*(ks & 1) + 1024*nt_} sc1', ('w4', ks))
        if ks & 1: a(f's_addk_i32 s{sW4}, 4096')
    if cfg.now4: a(f's_mov_b32 s{sW4}, 0x80000000')
    nw = [0]
    def w4more(n=1):
        for _ in range(n):
            ks = nw[0]
            if ks >= 22: return
            nw[0] += 1
            if ks >= cfg.la4: a.wvm(('w4', ks - cfg.la4))
            w4issue(ks)
    w4more(cfg.la4)
    a(f's_setprio {cfg.aprio}')
    a.wvm('xs')
    padd(48, 48, 52, 4, False); padd(48, 48, 50, 2, False)
    a('v_add_f32 v48, v48, v49')
    a('v_mov_b32 v49, v48')
    a('v_permlane16_swap_b32 v48, v49'); a('v_add_f32 v48, v48, v49')
    a('v_mov_b32 v49, v48')
    a('v_permlane32_swap_b32 v48, v49')
    finstat(48)
    a(f'v_mul_f32 v49, s{sK+2}, v49')
    a.lg(f'ds_write_b64 v{vS3}, v[48:49] offset:{S0 + S_ST3}')
    signal('ST')
    a('v_xor_b32 v8, 0x2000, v43')
    for pr in range(2):
        for h in range(2):
            a.lg(f'ds_read_b128 {vr(48 + 8*pr + 4*h, 4)}, v43 offset:{2048*pr + 256*h}', ('c', pr))
            a.lg(f'ds_read_b128 {vr(64 + 8*pr + 4*h, 4)}, v8 offset:{2048*pr + 256*h}', ('c', pr))
    for pr in range(2):
        a.wlg(('c', pr))
        padd(48 + 8*pr, 48 + 8*pr, 64 + 8*pr, 8, False)
        for d in range(4): a(f'v_cvt_pk_bf16_f32 v{64+8*pr+d}, v{48+8*pr+2*d}, v{48+8*pr+2*d+1}')
        a.vm(f'buffer_store_dwordx4 {vr(64 + 8*pr, 4)}, v{vL16}, {WS}, s{sSS} offen offset:{1024*pr} sc1', 'sst')
    EA, EB, EC, ED = 48, 64, 16, 32
    a('v_mov_b32 v9, v44'); a('v_mov_b32 v10, v45')
    S(sT, [(sW, 8192)], E30); a(f'v_add_u32 v8, s{sT}, v{vL16}'); a('v_xor_b32 v11, 0x3000, v8')
    for q in range(4):
        a.lg(f'ds_read_b128 {vr(EC + 4*q, 4)}, v9 offset:{32*q}', 'e0'); a.lg(f'ds_read_b128 {vr(ED + 4*q, 4)}, v9 offset:{256 + 32*q}', 'e0')
    w4more(cfg.w4a)
    spin('ST', 4)
    padd(EC, EC, ED, 16, False)
    a.lg(f'ds_read_b64 v[38:39], v10 offset:{S0 + S_ST3}', 'e2')
    spin('E3', 4)
    st.put('A', 'e3')
    EA, EB = 48, 240
    for q in range(4):
        a.lg(f'ds_read_b128 {vr(EA + 4*q, 4)}, v8 offset:{1024*q}', ('e1', q)); a.lg(f'ds_read_b128 {vr(EB + 4*q, 4)}, v11 offset:{1024*q}', ('e1', q))
    signal('E3')
    for q in range(4):
        a.wlg(('e1', q)); padd(EA + 4*q, EA + 4*q, EB + 4*q, 4, False)
    for k, x in enumerate(gelu16(EA, EC, 32, 38, [(sHS, 0, 'h2s'), (sHS + 1, 1024, 'h2s')], zero=sZ)):
        if isinstance(x, tuple): a.vm(x[1], x[2])
        else: a(x)
        if k % cfg.w4ev == cfg.w4ev - 1: w4more()
    st.put('A', 'gs')
    a('s_setprio 0')
    publish_col('FS', 1024, 'sst')
    w4more(cfg.la4)
    a('v_lshlrev_b32 v9, 7, v0')
    flag(sFO, 256, 'h2s', False, (f's{sTM}', f'buffer_load_dword v9, v9, {WS}, s{sHS} offen sc1'))
    st.put('A', 'hs_flag')
    w4more(22)
    st.put('A', 'w4_issued')
    spin('E3', 8)
    pollc(sFP, 256, 16, vCP, 6)
    st.put('A', 'h2a_seen')
    a(f's_setprio {cfg.g4prio}')
    def h2issue(f):
        th, ks = divmod(f, 22)
        if ks % 4 == 0: a(f's_add_u32 s{sT+1}, s{sH2}, {88*1024*th + 1024*ks}')
        a.vm(f'buffer_load_dwordx4 {vr(RING + 4*(f % 8), 4)}, v{vL16}, {WS}, s{sT+1} offen offset:{1024*(ks % 4)} sc1', ('h2', f))
    for f in range(8): h2issue(f)
    for f in range(44):
        th, ks = divmod(f, 22)
        if f == 14:
            LOK = a.label('HB')
            a.wvm('pb')
            a('s_mov_b64 exec, 0xff'); a(f'v_cmp_ne_u32 vcc, s{sEP}, v6'); a('s_mov_b64 exec, -1')
            a(f's_cmp_eq_u32 s{sMODE}, 1'); a('s_cselect_b64 vcc, vcc, -1')
            a(f's_cbranch_vccz {LOK}')
            saved = list(a.vmq)
            pollc(sFP, 512, 8, vCP, 6)
            a.vmq = saved
            a(f'{LOK}:')
            st.put('A', 'h2b_seen')
        a.wvm(('h2', f))
        if f == 22: a.wlg(('d', 0))
        M32(ACC4, W4F + 8*ks, RING + 4*(f % 8), None if ks == 0 else ACC4)
        if f == 22: a.wlg(('d', 1))
        M32(ACC4 + 16, W4F + 8*ks + 4, RING + 4*(f % 8), None if ks == 0 else ACC4 + 16)
        if f + 8 < 44: h2issue(f + 8)
        if f == cfg.pbf:
            a('s_mov_b64 exec, 0xff'); a.vm(f'buffer_load_dword v6, v{vCP}, {WS}, s{sFP} offen offset:512 sc1', 'pb'); a('s_mov_b64 exec, -1')
        if ks == 21:
            for q in range(8): a.lg(f'ds_write_b128 v{vDW}, {vr(ACC4 + 4*q, 4)} offset:{8192*th + 1024*q}', ('d', q >> 2))
            signal('D4a' if th == 0 else 'D4b')
            st.put('A', f'g4_{th}')
    st.flush('A')
    a('s_endpgm')

class BBar:
    n = 0
def bbar(sleep=0):
    BBar.n += 1
    signal('B'); spin('B', 4 * BBar.n, sleep=sleep)

def role_B():
    vKE, vKT, vFW, vFT, vXV, vF4, vPA, vXT, vMS, vUS, tZP, vKX, vKY = range(28, 41)
    a('L_B:')
    a.reset()
    vLs, vCU, vCT, CACC, UF, W3F = 5, 6, 8, 28, 224, 64
    TR = lambda i: 12 + 4*i if i < 4 else 192 + 4*i
    vCP, vUD, vCW, vCR = 60, 62, 63, 7
    sXC, sFD, sXR, sW3, sUS, sUL, sF4, sSS, sFO, sZ, sH2, sM0U, sJP = 36, 37, 40, 41, 42, 43, 44, 45, 46, 47, 48, 72, 73
    sCH, sPT, sKF = 75, 76, 60
    a(f's_lshr_b32 s{sCH}, s{sW}, 1'); a(f's_and_b32 s{sPT}, s{sW}, 1')
    L = Lane(12)
    SL = 224
    a('v_and_b32 v8, 1, v0'); a('v_lshlrev_b32 v8, 4, v8'); a('v_mov_b32 v9, 0x3f80'); a('v_lshlrev_b32 v8, v8, v9')
    for jh in range(2):
        for d in range(4):
            lo = (3 << (2*d)) << (16*jh)
            a(f's_mov_b32 vcc_lo, {hex(lo)}'); a(f's_mov_b32 vcc_hi, {hex(lo << 8)}')
            a(f'v_cndmask_b32 v{SL + 4*jh + d}, 0, v8, vcc')
    YV = 64
    srd(SWS, sWSP, 268435456); srd(SOUT, 58, 524288); a('s_mov_b64 s[0:1], s[64:65]')
    consts()
    a(f's_lshr_b32 s{sT}, s{sC}, 3'); a(f's_and_b32 s{sT+1}, s{sC}, 7'); S(sCFO, [(sT, 128), (sT + 1, 4), (sCPB, 1)])
    a(f's_and_b32 s{sJP}, s{sJ}, 1')
    a(f's_cmp_lt_i32 s{sDEL}, 0'); a(f's_cselect_b32 s{sXR}, 64, -2'); a(f's_add_u32 s{sXR}, s{sXR}, s{sDEL}')
    S(sW3, [(sJ, FMT), (sW, 49152)], WS_W3)
    S(sFD, [(sJ, FMT), (sC, 1024), (sW, 3*49152)], WS_W3 + 16384)
    a(f's_lshr_b32 s{sT}, s{sC}, 4'); a(f's_and_b32 s{sT+1}, s{sC}, 15'); S(sT, [(sT, 49152), (sT + 1, 1024), (sJ, FMT)], WS_W3)
    a(f's_add_u32 s{sFD+1}, s{sFD}, 49152'); a(f's_add_u32 s{sFD+2}, s{sFD}, {2*49152}'); a(f's_add_u32 s{sT+1}, s{sT}, {2*49152}')
    a(f's_cmp_eq_u32 s{sW}, 1'); a(f's_cselect_b32 s{sFD+1}, s{sT}, s{sFD+1}'); a(f's_cselect_b32 s{sFD+2}, s{sT+1}, s{sFD+2}')
    S(sT, [(sW, 1024), (sJ, FMT), (sC, 6144)], WS_W4 - 2048)
    a(f's_cmp_ge_u32 s{sW}, 2'); a(f's_cselect_b32 s{sFD}, s{sT}, s{sFD}')
    a(f's_add_u32 s{sT}, s{sT}, 2048'); a(f's_add_u32 s{sT+1}, s{sT}, 2048')
    a(f's_cmp_ge_u32 s{sW}, 2'); a(f's_cselect_b32 s{sFD+1}, s{sT}, s{sFD+1}'); a(f's_cselect_b32 s{sFD+2}, s{sT+1}, s{sFD+2}')
    S(sUS, [(sJ, 32*UPS), (sC, UPS)], WS_UT)
    a(f's_lshr_b32 s{sT}, s{sC}, 3'); a(f's_and_b32 s{sT+1}, s{sC}, 7'); S(sUL, [(sT, 2048), (sT + 1, 128), (sJ, 32*UPS)], WS_UT)
    a(f's_and_b32 s{sT+1}, s{sW}, 1'); a(f's_lshr_b32 s{sT}, s{sW}, 1')
    S(sM0U, [(sT, USZ), (sT + 1, 2048)], U0 + 512)
    S(sFO, [(sJ, 16), (sW, 4), (sFL, 1)])
    S(sH2 + 4, [(sC, H2C), (sJ, 11*1024)], WS_H2)
    S(sH2, [(sW, 2048), (sH2 + 4, 1)]); a(f's_add_u32 s{sH2+1}, s{sH2}, {88*1024}')
    a('s_waitcnt vmcnt(5)')
    st.put('B', 'par')
    kpre(48, 4, {8: YV + 2, 1: 44, 256: 46}, 192)
    XV = 128
    xi = {h: XV + 2 * i for i, h in enumerate(his)}
    a(f'v_mov_b32 v{YV}, 1.0'); a(f'v_mov_b32 v{YV+1}, 0')
    for x in swp(YV+2, 16) + swp(44, 18) + swp(46, 20) + swp(50, 22): a(x)
    ych = cmul(YV+4, YV+2, YV+2) + cmul(YV+6, YV+4, YV+2) + cmul(YV+8, YV+6, YV+2) + swp(YV+8, 24)
    for g in range(5, 32, 4):
        blk = []
        for j in range(g, min(g + 4, 32)): blk += cmul(YV + 2*j, YV + 2*(j-4), YV + 8)
        ych += blk[0::2] + blk[1::2]
    xch = cmul(xi[0], 52, 50)
    for h in range(1, 9): xch += cmul(xi[h], xi[h-1], 44)
    for lvl in ([256, 258, 260, 262, 264], [512, 516, 520], [768, 772, 776], [1024, 1032], [1280, 1288], [1536, 1544], [1792, 1800]):
        blk = []
        for h in lvl: blk += cmul(xi[h], xi[h-256], 46)
        xch += blk[0::2] + blk[1::2]
    for x in interleave([ych, xch]): a(x)
    st.put('B', 'k1')
    src = {'Y': [YV + 2*j for j in range(32)], 'X': [None] * 32}
    for h in his:
        for row in xrows[h]: src['X'][row] = xi[h]
    PB = [192, 208]
    TL = [12, 28]
    groups = [('Y', 0), ('Y', 1), ('X', 0), ('X', 1)]
    FRK = {'Y': 64, 'X': 128}
    def pack(gi):
        op, part = groups[gi]; P = PB[gi & 1]; ng = '-' if (op == 'X' and part) else ''
        o = [f'v_cvt_pk_bf16_f32 v{P+i}, {ng}v{src[op][2*i]+part}, {ng}v{src[op][2*i+1]+part}' for i in range(16)]
        o += [f'v_permlane32_swap_b32 v{P+8*jh+d}, v{P+8*jh+4+d}' for jh in range(2) for d in range(4)]
        return o
    def tr(gi, T):
        P = PB[gi & 1]
        return [(T + 16*nh, P + 8*jh + 4*nh, SL + 4*jh, jh) for nh in range(2) for jh in range(2)]
    def repack(gi, T):
        op, part = groups[gi]
        return [f'v_cvt_pk_bf16_f32 v{FRK[op] + 16*part + i}, v{T+2*i}, v{T+2*i+1}' for i in range(16)]
    for x in pack(0) + pack(1): a(x)
    TA, TB = 96, 16
    def mm(lst, fill):
        per = -(-len(fill) // 4) if fill else 0
        for (d, x, y, jh) in lst:
            M32(d, x, y, d if jh else None)
            for _ in range(per):
                if fill: a(fill.pop(0))
    mm(tr(0, TA), [])
    mm(tr(1, TB), pack(2))
    f = repack(0, TA)
    for x in f: a(x)
    mm(tr(2, TA), pack(3) + repack(1, TB))
    mm(tr(3, TB), [])
    for x in repack(2, TA) + repack(3, TB): a(x)
    FY, FX, KD, KP, ET = 64, 128, 192, 96, 208
    st.put('B', 'k2')
    mark = len(a.L)
    vEX = vKX
    S(sT, [(sW, 4096)], S0 + S_KF); a(f'v_add_u32 v{vEX}, s{sT}, v{vL16}'); a(f'v_xor_b32 v{vEX+1}, 0x1000, v{vEX}')
    S(sT, [(sDEL, 8)], S0 + S_ST + 16); a(f'v_lshl_add_u32 v43, v0, 3, s{sT}')
    S(sKF, [(sCH, 2*KCOPY)], S0 + S_KF)
    a(f's_add_u32 s{sT}, s{sKF}, {4080 - 3072}'); a(f'v_sub_u32 v{vKE}, s{sT}, v{vL16}')
    a(f's_add_u32 s{sT}, s{sKF}, {KCOPY}'); L(vKT, [(3, 1, KCOPY)]); a(f'v_sub_u32 v{vKT}, s{sT}, v{vKT}'); L(vKT, [(0, 3, 4)], f'v{vKT}')
    S(sT, [(sW, 4096)], S0 + S_KF); L(vFT, [(5, 1, 256), (2, 2, 64), (4, 1, 32), (0, 2, 8)], f's{sT}')
    L(vPA, [(5, 1, 1024), (0, 5, 4)], S0 + S_STP)
    L(46, [(4, 1, 64)]); a('v_xor_b32 v41, v60, v46')
    a(f's_lshl_b32 s{sT}, s{sW}, 5'); L(vXT, [(4, 2, 1024), (2, 2, 128), (0, 2, 8)], f's{sT}')
    L(vMS, [(4, 2, 64)])
    a(f's_lshl_b32 s{sT}, s{sW}, 11'); L(vUS, [(0, 4, 64), (4, 2, 16)], f's{sT}')
    side = a.L[mark:]; del a.L[mark:]
    per = -(-len(side) // 8)
    for ks in range(8):
        M32(KD, FX + 4*ks, FY + 4*ks, None if ks == 0 else KD)
        for _ in range(per):
            if side: a(side.pop(0))
    a(f's_add_u32 s{sEP}, s{sEP}, 1'); a(f's_mov_b32 s{sEP+1}, s{sEP}')
    a(f's_getreg_b32 s{sXC}, hwreg(HW_REG_XCC_ID, 0, 4)')
    if cfg.force_slow: a(f's_mov_b32 s{sXC}, s{sJ}')
    a(f's_lshl_b32 s{sXC}, s{sXC}, 28'); a(f's_add_u32 s{sXC}, s{sXC}, s{sEP}')
    st.put('B', 'kmfma')
    a.vm0()
    LG, LGE = a.label('FM'), a.label('FM')
    a(f's_cmp_ge_u32 s{sW}, 2'); a(f's_cbranch_scc1 {LG}')
    for m in range(3): a(f'ds_write_b128 v{vEX}, {vr(240 + 4*m, 4)} offset:{1024*m}')
    for m in range(3):
        for p in range(2): a(f'ds_read_b64_tr_b16 v[{112+4*m+2*p}:{113+4*m+2*p}], v{vFT} offset:{1024*m + 512*p}')
    a('s_waitcnt lgkmcnt(0)')
    for m in range(3): a(f'buffer_store_dwordx4 {vr(112 + 4*m, 4)}, v{vL16}, {WS}, s{sFD+m} offen sc1')
    for m in range(3): a(f's_mov_b32 s{sFD+m}, 0x80000000')
    a(f's_branch {LGE}')
    a(f'{LG}:')
    a(f's_cmp_lg_u32 s{sW}, 3'); a(f's_cbranch_scc1 {LGE}')
    S(sT, [(sJ, 4), (sFL, 1)])
    a(f'v_mov_b32 v{vT}, s{sXC}')
    a('s_mov_b64 exec, 1'); a(f'buffer_store_dword v{vT}, off, {WS}, s{sT} offset:768 sc1'); a('s_mov_b64 exec, -1')
    for k in range(4): a(f'v_mov_b32 v{12+k}, 0')
    for d in range(8):
        a(f'v_lshlrev_b32 v16, 16, v{232+d}'); a(f'v_and_b32 v17, 0xffff0000, v{232+d}')
        a('v_add_f32 v12, v12, v16'); a('v_fmac_f32 v13, v16, v16'); a('v_add_f32 v14, v14, v17'); a('v_fmac_f32 v15, v17, v17')
    a('v_add_f32 v12, v12, v14'); a('v_add_f32 v13, v13, v15')
    a('v_permlane16_swap_b32 v12, v13'); a('v_add_f32 v12, v12, v13')
    for sh in (8, 4, 2, 1): a(f'v_add_f32_dpp v12, v12, v12 row_ror:{sh} row_mask:0xf bank_mask:0xf')
    a('v_mov_b32 v13, v12'); a('v_permlane16_swap_b32 v12, v13')
    finstat(12)
    S(sT, [(sXR, 8)], S0 + S_ST + 16); a('v_lshrrev_b32 v14, 5, v0'); a(f'v_lshl_add_u32 v14, v14, 3, s{sT}')
    a('s_mov_b32 exec_lo, 1'); a('s_mov_b32 exec_hi, 1'); a('ds_write_b64 v14, v[12:13]'); a('s_mov_b64 exec, -1')
    a(f'{LGE}:')
    st.put('B', 'fmt_st')
    a(f's_setprio {cfg.uprio}')
    a.vmq = []
    signal('S')
    LFF = a.label('FF')
    a(f's_cmp_ge_u32 s{sW}, 2'); a(f's_cbranch_scc1 {LFF}')
    publish_col('FF', 0, None, 1)
    a(f'{LFF}:')
    spin('S', 8)
    st.put('B', 'S_seen')
    sW2 = 77
    spin('WC0', 4)
    S(sW2, [(sW, 131072), (sJ, 128)]); S(sT + 1, [(sW, 16384)], X0); a(f's_mov_b32 m0, s{sT+1}')
    def w2i(lo, hi):
        for i in range(lo, hi):
            if i: a('s_addk_i32 m0, 1024'); a(f's_addk_i32 s{sW2}, 8192')
            a.vm(f'buffer_load_dwordx4 v41, s[{SOUT}:{SOUT+3}], s{sW2} offen lds', 'w2')
    w2i(0, cfg.w2n)
    XT, MSR, UT, UP = 128, 136, 168, 176
    for w2 in range(4): a.lg(f'ds_read2_b32 v[{12+2*w2}:{13+2*w2}], v{vPA} offset0:{64*w2} offset1:{64*w2 + 32}', 'sp')
    for o in range(2):
        for p in range(2): a.lg(f'ds_read_b64_tr_b16 v[{XT+4*o+2*p}:{XT+1+4*o+2*p}], v{vXT} offset:{S0 + S_XT + 4096*o + 512*p}', 'xr')
    for m in range(3):
        for p in range(2): a.lg(f'ds_read_b64_tr_b16 v[{112+4*m+2*p}:{113+4*m+2*p}], v{vFT} offset:{1024*m + 512*p}', 'xr')
    a.wlg('sp')
    padd(12, 12, 16, 4, False); padd(12, 12, 14, 2, False)
    finstat(12)
    a.lg('ds_write_b64 v43, v[12:13]')
    for o in range(2):
        for k in range(4): a.lg(f'ds_read_b128 {vr(MSR + 16*o + 4*k, 4)}, v{vMS} offset:{S0 + S_ST + 16 + 256*o + 16*k}', ('ms', o))
    a.wlg('xr')
    for o in range(2):
        unpack(UT, XT + 4*o, 4)
        a.wlg(('ms', o))
        for i in range(8): a(f'v_sub_f32 v{UT+i}, v{UT+i}, v{MSR+16*o+2*i}')
        for i in range(8): a(f'v_mul_f32 v{UT+i}, v{UT+i}, v{MSR+1+16*o+2*i}')
        for d in range(4): a(f'v_cvt_pk_bf16_f32 v{UP+4*o+d}, v{UT+2*d}, v{UT+1+2*d}')
        a.vm(f'buffer_store_dwordx4 {vr(UP + 4*o, 4)}, v{vUS}, {WS}, s{sUS} offen offset:{1024*o} sc1', 'ust')
    a(f's_setprio {cfg.bprio}')
    st.put('B', 'u_stored')
    LE1, LE2_ = a.label('EX'), a.label('EX')
    a(f's_bitcmp1_b32 s{sW}, 0'); a(f's_cbranch_scc1 {LE1}')
    a(f'ds_write_b128 v{vEX}, {vr(KD + 12, 4)}')
    a(f's_branch {LE2_}')
    a(f'{LE1}:')
    for q in range(3): a(f'ds_write_b128 v{vEX}, {vr(KD + 4*q, 4)} offset:{1024*q}')
    a(f'{LE2_}:')
    signal('KY')
    w2i(cfg.w2n, 16)
    chk_issue('KY', vT)
    L = Lane(12)
    S(sT, [(sPT, 16*UPS), (sCH, 64)]); L(vUD, [(3, 3, UPS), (2, 1, 1024), (0, 2, 16)], f's{sT}')
    S(sT, [(sCH, USZ)], U0); L(tZP, [(0, 5, 16)], f's{sT}')
    a(f's_lshl_b32 s{sT+1}, s{sPT}, 8'); a(f's_sub_u32 s{sT}, s{sT}, s{sT+1}'); a(f's_add_u32 s{sT}, s{sT}, 480'); L(vCU, [(0, 4, 32), (4, 2, 16)], f's{sT}')
    L(vCT, [(0, 1, KCOPY + 4), (1, 3, 4)]); a(f's_sub_u32 s{sT}, s{sKF}, s{sT+1}'); a(f's_add_u32 s{sT}, s{sT}, {4064 - 512 - 64 + KCOPY}')
    a(f'v_sub_u32 v{vCT}, s{sT}, v{vCT}'); L(vCT, [(4, 2, 16)], f'v{vCT}')
    for m in range(1, 4): a(f'v_subrev_u32 v{vCT+m}, {1024*m}, v{vCT}')
    a(f's_lshl_b32 s{sT}, s{sCH}, 4'); a(f'v_and_b32 v{vLs}, s{sT}, v0'); a(f'v_lshl_add_u32 v{vLs}, v{vLs}, 27, v{vL16}')
    S(sT, [(sW, 8192)], CX0); a(f'v_add_u32 v{vCW}, s{sT}, v{vL16}')
    chk_wait('KY', vT, 4)
    for q in range(3): a.lg(f'ds_read_b128 {vr(KP + 4*q, 4)}, v{vEX+1} offset:{1024*q}')
    signal('KQ')
    publish_col('FU', 512, 'ust')
    st.put('B', 'u_flag')
    if cfg.cfpos == 0: spoll(0, 'CF', 3)
    a.wvm('w2'); signal('W2L')
    st.put('B', 'w2l')
    for m in range(3): a.vm(f'buffer_store_dwordx4 {vr(112 + 4*m, 4)}, v{vL16}, {WS}, s{sFD+m} offen sc1', 'f4st')
    if cfg.cfpos == 1: spoll(0, 'CF', 3)
    spin('KQ', 4)
    def expand(sp, vals, tmp):
        for i in range(4): a(f'v_cvt_pk_bf16_f32 v{tmp+i}, v{vals[7-2*i]}, v{vals[6-2*i]}')
        for i in range(4): a(f'v_cvt_pk_bf16_f32 v{tmp+4+i}, v{vals[8-2*i]}, v{vals[7-2*i]}')
        a(f'ds_write_b128 v{vKE}, {vr(tmp, 4)} offset:{1024*(3-sp)}')
        a(f'ds_write_b128 v{vKE}, {vr(tmp+4, 4)} offset:{1024*(3-sp) + KCOPY}')
    LX1, LXE = a.label('EX'), a.label('EX')
    a(f's_bitcmp1_b32 s{sW}, 0'); a(f's_cbranch_scc1 {LX1}')
    a('v_mov_b32 v12, 0')
    padd(KD, KD, KP, 12, False)
    a('s_mov_b64 exec, 1'); a(f'v_add_f32 v{KD}, s67, v{KD}'); a(f'v_cvt_pk_bf16_f32 v12, v{KD}, v12')
    a('s_mov_b64 exec, 0xffff'); a(f'ds_write_b32 v{vKT}, v12 offset:4096'); a('s_mov_b64 exec, -1')
    expand(0, [KD + i for i in range(9)], ET)
    expand(1, [KD + 9 + k for k in (0, 0, 0, 1, 1, 1, 2, 2, 2)], ET + 8)
    a(f's_branch {LXE}')
    a(f'{LX1}:')
    a('s_mov_b32 vcc_lo, 0xaaaaaaaa'); a('s_mov_b32 vcc_hi, vcc_lo')
    padd(KD + 12, KD + 12, KP, 4, False)
    for s_ in range(2):
        lo, hi = KD + 12 + 2*s_, KD + 13 + 2*s_
        a(f'v_cndmask_b32 v12, v{lo}, v{hi}, vcc')
        expand(2 + s_, [lo, lo, lo, lo, 12, hi, hi, hi, hi], ET + 8*s_)
    a(f'{LXE}:')
    st.put('B', 'kexp')
    def ldT(i, nxt):
        t = TR(i); o = (128 if i % 2 == 0 else 0) + (0 if nxt else 16)
        a.lg(f'ds_read2_b32 v[{t}:{t+1}], v{vCT + i//2} offset0:{o} offset1:{o+1}', ('T', i))
        a.lg(f'ds_read2_b32 v[{t+2}:{t+3}], v{vCT + i//2} offset0:{o+2} offset1:{o+3}', ('T', i))
    def ldU(jq): a.lg(f'ds_read_b128 {vr(UF + 4*jq, 4)}, v{vCU} offset:{512*jq}', ('U', jq))
    a(f's_lshl_b32 s{sT}, s{sJP}, 12'); a(f's_add_u32 s{sW3}, s{sW3}, s{sT}')
    if cfg.now3: a(f's_mov_b32 s{sW3}, 0x80000000')
    iss = [0]
    NFR = 36
    G, SEL, CSS, CSF = 8, 12, 16, 20
    def mksel():
        a('s_mov_b32 vcc_lo, 0xaaaa5555'); a('s_mov_b32 vcc_hi, vcc_lo'); a(f'v_mov_b32 v{SEL}, s{sK+4}')
        for i in range(3, -1, -1): a(f'v_cndmask_b32 v{SEL+i}, 0, v{SEL}, vcc')
    def csm(f): M16(CSS if f < 16 else CSF, SEL, W3F + 4*f, None if f in (0, 16) else (CSS if f < 16 else CSF))
    csd = [0]
    def csupto(n):
        while csd[0] < n:
            a.wvm(('w3', csd[0])); csm(csd[0]); csd[0] += 1
    def w3more(n=1, thr=False):
        for _ in range(n):
            f = iss[0]; iss[0] += 1
            if thr and f >= cfg.la3: csupto(f - cfg.la3 + 1)
            if f and f % 4 == 0:
                a(f's_xor_b32 s{sW3}, s{sW3}, 4096')
                if f % 8 == 0: a(f's_addk_i32 s{sW3}, 8192')
            a.vm(f'buffer_load_dwordx4 {vr(W3F + 4*f, 4)}, v{vLs if f < 16 else vL16}, {WS}, s{sW3} offen offset:{1024*(f % 4)} sc1', ('w3', f))
    signal('KE')
    a(f'v_mov_b32 v24, v{tZP}')
    S(sT, [(sW, 256)], S0 + S_CS3); a(f'v_lshl_add_u32 v7, v0, 2, s{sT}')
    for i in range(32): a(f'v_mov_b32 v{CACC+i}, 0')
    a(f's_mov_b32 m0, s{sM0U}')
    mksel()
    spin('CF', 1)
    st.put('B', 'fmt_seen')
    w3more(cfg.la3)
    publish_col('F4', 1536, 'f4st')
    w3more(cfg.w3a - cfg.la3, True)
    spoll(512, 'CU', 1)
    w3more(cfg.w3b, True)
    spin('W', 4)
    a.lg(f'ds_write_b128 v24, {vr(CACC, 4)}')
    st.put('B', 'u_poll')
    spin('CU', 1)
    st.put('B', 'u_seen')
    a.vm(f'buffer_load_dwordx4 v{vUD}, {WS}, s{sUL} offen sc1 lds', 'u')
    a('s_addk_i32 m0, 1024'); a(f's_add_u32 s{sUL}, s{sUL}, {8*UPS}')
    a.vm(f'buffer_load_dwordx4 v{vUD}, {WS}, s{sUL} offen sc1 lds', 'u')
    assert iss[0] >= 17
    spin('KE', 4)
    for q in range(4): ldT(7 - q, False)
    csupto(iss[0])
    a('s_mov_b64 exec, 0xffff'); a.lg(f'ds_write2_b32 v7, v{CSS}, v{CSS+1} offset0:0 offset1:16'); a('s_mov_b64 exec, -1')
    a(f'v_mov_b32 v60, v{CSF}'); a(f'v_mov_b32 v61, v{CSF+1}')
    for q in range(4, 8): ldT(7 - q, False)
    a.wvm('u'); bbar()
    st.put('B', 'conv_go')
    a(f's_setprio {cfg.cprio}')
    for q in range(8): ldU(q)
    a(f'v_subrev_u32 v{vCU}, 64, v{vCU}')
    a('s_waitcnt lgkmcnt(4)')
    for it in range(4):
        w3more(min(cfg.w3d, NFR - iss[0]))
        if it == 2:
            a('v_lshrrev_b32 v62, 3, v0'); a('v_mul_u32_u24 v62, 96, v62'); a('v_lshl_add_u32 v62, v0, 2, v62')
            cp_issue(1536, 5, 62, 'c4')
        if not cfg.noconv or it == 0: a(f's_call_b64 s[{sRET}:{sRET+1}], L_conv')
    st.put('B', 'conv_done')
    nconv = iss[0]
    a('s_nop 1')
    for q in range(8): a.lg(f'ds_write_b128 v{vCW}, {vr(CACC + 4*q, 4)} offset:{1024*q}')
    cp_check(1536, 5, 62, 'c4')
    signal('W3I')
    a.lg(f'ds_read_b32 v5, v{vS} offset:{CN["MODE"]}')
    vGK, vGO, vGE, vGS, vGF, vGC = 8, 9, 10, 11, 6, 7
    S(sT, [(sPT, 32768 + 4096)], W0); a(f'v_add_u32 v{vGK}, s{sT}, v{vL16}'); a(f'v_xor_b32 v{vGO}, 0x1000, v{vGK}')
    S(sT, [(sW, 8192)], E30); a(f'v_add_u32 v{vGE}, s{sT}, v{vL16}')
    a(f'v_and_b32 v{vGS}, 31, v0'); a(f'v_lshlrev_b32 v{vGS}, 3, v{vGS}')
    a(f'v_add_u32 v{vGF}, {W0}, v{vL16}')
    a.lg0()
    w3more(cfg.w3e)
    a(f'v_readfirstlane_b32 s{sMODE}, v5')
    mksel()
    a(f'v_lshrrev_b32 v5, 5, v0'); S(sT, [(sW, 256)], S0 + S_CS3 + 128); a(f'v_lshl_add_u32 v5, v5, 4, s{sT}')
    a(f'v_mov_b32 v{CSF}, v60'); a(f'v_mov_b32 v{CSF+1}, v61')
    csupto(nconv)
    st.put('B', 'b_rdy')
    AK, AO, FR = 28, 44, [16, 24, 60]
    spin('X0', 4)
    a('s_setprio 2')
    st.put('B', 'g3_start')
    so = [8*a_ + 4*(c >> 1) + 2*(c & 1) + r for c in range(4) for a_ in range(2) for r in range(2)]
    AF, CSV, GT, MS = 64, 80, 96, 102
    items = [('S', f, o) for f in so for o in range(2)] + [('F', n, th) for th in range(2) for n in range(32)]
    pool = list(FR); slot = {}; nr = [0]
    def rd(cur):
        while pool and nr[0] < 96 and nr[0] <= cur + cfg.lag:
            n = nr[0]
            if n == 8: chk_wait('XA0', vT, 4); chk_issue('XA', vT)
            if n == 16: chk_wait('XA', vT, 4)
            k_, f, o = items[n]; slot[n] = pool.pop(0); nr[0] += 1
            if k_ == 'S': a.lg(f'ds_read_b128 {vr(slot[n], 4)}, v{vGO if o else vGK} offset:{8192*(f >> 2) + 1024*(f & 3)}', ('s', n))
            else: a.lg(f'ds_read_b128 {vr(slot[n], 4)}, v{vGF} offset:{8192*(f >> 2) + 4096*o + 1024*(f & 3)}', ('s', n))
    def emit(x):
        if isinstance(x, tuple):
            if x[0] == 'vm': a.vm(x[1], x[2])
            elif x[0] == 'lg': a.lg(x[1], x[2])
            elif x[0] == 'wlg': a.wlg(x[1])
            else: x[1]()
        else: a(x)
    cost = lambda x: 1 if isinstance(x, tuple) or x.startswith('s_') else (2 if x.startswith(TRANS) else 1)
    dump = [f'ds_write_b128 v{vGE}, {vr(AK + 4*q, 4)} offset:{1024*q}' for q in range(8)]
    pend = gelu16(AF, CSV, GT, MS, [(sH2, 0, 'h2a'), (sH2, 1024, 'h2a')]); per = sum(cost(x) for x in pend) / cfg.f1span; credit = 0
    rd(0)
    for n in range(96):
        k_, f, o = items[n]
        if n == 1: chk_issue('XA0', vT)
        if n == 56: chk_issue('ST', vT)
        if n == 62: chk_wait('ST', vT, 4)
        if k_ == 'F' and o == 0: a.wvm(('w3', 16 + f))
        a.wlg(('s', min(n + 1, nr[0] - 1) if (n >= 8 and n % 2 == 0) else n))
        if k_ == 'S':
            acc_ = AO if o else AK
            M32(acc_, W3F + 4*f, slot[n], None if n < 2 else acc_)
            if slot[n] < 64 or slot[n] >= 104 or n < 22: pool.append(slot[n])
            if o and (f >= 10 or n < 12): pool.append(W3F + 4*f)
            if n == 22: pool[:] = [p_ for p_ in pool if p_ < 64 or p_ >= 104]
            if n % 3 == 2 and iss[0] < 48: w3more()
        else:
            acc_ = AO if o else AF
            M32(acc_, W3F + 64 + 4*f, slot[n], None if f == 0 else acc_)
            pool.append(slot[n])
            if o == 0 and 16 + f >= nconv: csm(16 + f)
            if o == 0 and f >= 2 and dump:
                a.lg(dump.pop(0))
                if not dump: signal('E3')
            if o == 1 and f == 1:
                a('s_mov_b64 exec, 0xffff'); a.lg(f'ds_write2_b32 v{vGC}, v{CSF}, v{CSF+1} offset0:32 offset1:48'); a('s_mov_b64 exec, -1')
                for q in range(4): a.lg(f'ds_read_b128 {vr(CSV + 4*q, 4)}, v5 offset:{32*q}', 'ex3')
                a.lg(f'ds_read_b64 v[{MS}:{MS+1}], v{vGS} offset:{S0 + S_ST3}', 'ex3')
            if o == 1 and f == 4: a.wlg('ex3')
            if o == 1 and f >= 4:
                credit += per
                while pend and credit >= cost(pend[0]) - 0.5:
                    credit -= cost(pend[0]); emit(pend.pop(0))
        rd(n + 1)
        if n % 32 == 31:
            if n == 95:
                while pend: emit(pend.pop(0))
            st.put('B', f'p{n // 32}')
    assert iss[0] == 48
    for n in range(31, 96): assert slot[n] < 64 or slot[n] >= 104, (n, slot[n])
    a.lg(f'ds_read_b64 v[{MS}:{MS+1}], v{vGS} offset:{S0 + S_ST3 + 256}'); a.lg0()
    a('v_lshlrev_b32 v27, 7, v0')
    tail = gelu16(AO, CSV, GT, MS, [(sH2 + 1, 0, 'h2b'), (sH2 + 1, 1024, 'h2b')], pk=cfg.tailpk)
    k = int(len(tail) * cfg.aflag)
    for x in tail[:k]: emit(x)
    flag(sFO, 384, 'h2a', False, (0xffff, f'buffer_load_dword v25, v27, {WS}, s{sH2} offen sc1'))
    st.put('B', 'h2a_flag')
    for x in tail[k:]: emit(x)
    st.put('B', 'h2_stored')
    X1R, XR, SR_, Z = 128, 144, 160, 176
    sTB, sNT, sO = sT, sT + 1, sT + 2
    a(f's_and_b32 s{sTB}, s{sW}, 1'); a(f's_lshr_b32 s{sNT}, s{sW}, 1')
    a('v_and_b32 v20, 15, v0'); a('v_lshrrev_b32 v21, 4, v0')
    a('v_lshrrev_b32 v22, 5, v0'); a('v_lshlrev_b32 v22, 10, v22'); a('v_lshl_add_u32 v22, v20, 4, v22')
    a('v_and_b32 v23, 1, v21'); a('v_lshl_add_u32 v22, v23, 3, v22')
    a(f's_andn2_b32 s{sT+8}, s{sJ}, 1')
    S(sT + 8, [(sT + 8, 8192), (sNT, 2048), (sTB, 256)], W0); a(f'v_add_u32 v22, s{sT+8}, v22')
    for th in range(2):
        for h in range(2): a.lg(f'ds_read_b64 v[{64+4*th+2*h}:{65+4*th+2*h}], v22 offset:{4096*th + 512*h}', 'pr')
    a('v_lshlrev_b32 v23, 7, v20'); a('v_lshl_add_u32 v23, v21, 4, v23')
    S(sT + 8, [(sTB, 2048), (sNT, 64)]); a(f'v_add_u32 v23, s{sT+8}, v23')
    for th in range(2): a.lg(f'ds_read_b128 {vr(72 + 4*th, 4)}, v23 offset:{S0 + S_XT + 4096*th}', 'pr')
    a('v_bfe_u32 v24, v0, 2, 2'); a('v_lshl_add_u32 v24, v21, 3, v24'); a('v_lshlrev_b32 v24, 7, v24')
    a('v_and_b32 v16, 3, v0'); a('v_lshl_add_u32 v24, v16, 3, v24')
    S(sT + 8, [(sNT, 4096), (sTB, 32)]); a(f'v_add_u32 v24, s{sT+8}, v24')
    a('v_lshlrev_b32 v16, 4, v20'); a('v_lshl_add_u32 v16, v21, 10, v16')
    S(sT + 8, [(sNT, 4096), (sTB, 256)], X0); a(f'v_add_u32 v16, s{sT+8}, v16')
    a('v_lshlrev_b32 v17, 10, v20'); a('v_lshl_add_u32 v17, v21, 4, v17')
    S(sO, [(sC, 65536), (sTB, 16384), (sJ, 128), (sNT, 64)])
    srd(SOUT, 0, 2097152)
    flag(sFO, 512, 'h2b', False, (0xffff, f'buffer_load_dword v26, v27, {WS}, s{sH2+1} offen sc1'))
    a('s_setprio 0')
    st.put('B', 'h2_flag')
    spoll(1024, 'CS')
    a('v_lshrrev_b32 v18, 3, v0'); a(f'v_mul_u32_u24 v18, {SRS - 128}, v18'); a(f'v_add_u32 v18, v18, v{vL16}')
    S(sT + 3, [(sJ, 64*SRS), (sC, 128), (sW, 16*SRS)], WS_ST)
    a(f's_lshl_b32 s{sT+8}, s{sW}, 11'); a(f's_add_u32 m0, s{sT+8}, {S0 + S_KF}')
    spin('CS', 1)
    st.put('B', 's_seen')
    a.vm(f'buffer_load_dwordx4 v18, {WS}, s{sT+3} offen sc1 lds', 'sd')
    a('s_addk_i32 m0, 1024'); a(f's_add_u32 s{sT+3}, s{sT+3}, {8*SRS}')
    a.vm(f'buffer_load_dwordx4 v18, {WS}, s{sT+3} offen sc1 lds', 'sd')
    unpack(X1R, 64, 8); unpack(XR, 72, 8)
    a.vm0(); bbar()
    for th in range(2):
        for p in range(2): a.lg(f'ds_read_b64_tr_b16 v[{80+4*th+2*p}:{81+4*th+2*p}], v24 offset:{S0 + S_KF + 512*p + 64*th}')
    a.lg0()
    unpack(SR_, 80, 8)
    a(f's_mov_b32 s{sK+6}, {hx(-LOG2E)}'); a(f's_mov_b32 s{sK+7}, {hx(-LOG2E)}')
    st.put('B', 'prep')
    for th in range(2):
        spin('D4a' if th == 0 else 'D4b', 4)
        for w2 in range(4):
            for h in range(2): a.lg(f'ds_read_b128 {vr(Z + 8*w2 + 4*h, 4)}, v16 offset:{8192*th + 16384*w2 + 512*h}', ('z', w2))
        z = X1R + 8 * th
        pk = th == 1
        for w2 in range(4):
            a.wlg(('z', w2)); padd(z, z, Z + 8*w2, 8, pk)
        t = Z
        if pk:
            for i in range(0, 8, 2): a(f'v_pk_mul_f32 v[{t+i}:{t+i+1}], v[{z+i}:{z+i+1}], s[{sK+6}:{sK+7}]')
            for i in range(8): a(f'v_exp_f32 v{t+i}, v{t+i}')
            for i in range(0, 8, 2): a(f'v_pk_add_f32 v[{t+i}:{t+i+1}], v[{t+i}:{t+i+1}], 1.0 op_sel_hi:[1,0]')
            for i in range(0, 8, 2): a(f'v_pk_mul_f32 v[{z+i}:{z+i+1}], v[{z+i}:{z+i+1}], v[{SR_+8*th+i}:{SR_+8*th+i+1}]')
            for i in range(8): a(f'v_rcp_f32 v{t+i}, v{t+i}')
            for i in range(0, 8, 2): a(f'v_pk_fma_f32 v[{z+i}:{z+i+1}], v[{z+i}:{z+i+1}], v[{t+i}:{t+i+1}], v[{XR+8*th+i}:{XR+8*th+i+1}]')
        else:
            for i in range(8): a(f'v_mul_f32 v{t+i}, s{sK+6}, v{z+i}')
            for i in range(8): a(f'v_exp_f32 v{t+i}, v{t+i}')
            for i in range(8): a(f'v_add_f32 v{t+i}, 1.0, v{t+i}')
            for i in range(8): a(f'v_mul_f32 v{z+i}, v{z+i}, v{SR_+8*th+i}')
            for i in range(8): a(f'v_rcp_f32 v{t+i}, v{t+i}')
            for i in range(8): a(f'v_fma_f32 v{z+i}, v{z+i}, v{t+i}, v{XR+8*th+i}')
        for i in range(4): a(f'v_cvt_pk_bf16_f32 v{88+4*th+i}, v{z+2*i}, v{z+2*i+1}')
        if th == 1: a(f's_add_u32 s{sO}, s{sO}, 0x8000')
        a.vm(f'buffer_store_dwordx4 {vr(88 + 4*th, 4)}, v17, s[{SOUT}:{SOUT+3}], s{sO} offen {cfg.out_fl}')
        st.put('B', f'out{th}')
    LE2 = a.label('EP')
    a(f's_add_u32 s{sT}, s2, s{sW}'); a(f's_cmp_lg_u32 s{sT}, 0'); a(f's_cbranch_scc1 {LE2}')
    a('s_mov_b64 exec, 1'); a(f'v_mov_b32 v{vT}, s{sEP}')
    a(f'buffer_store_dword v{vT}, off, {WS}, 0 sc1')
    a('s_mov_b64 exec, -1')
    a(f'{LE2}:')
    st.flush('B')
    if cfg.diag:
        a('L_diag:')
        a('s_memrealtime s[8:9]'); a('s_waitcnt lgkmcnt(0)')
        a('s_sub_u32 s8, s8, s100'); a(f's_cmp_lt_u32 s8, {cfg.diag}'); a('s_cbranch_scc1 L_diag')
    a('s_endpgm')
    a('L_conv:')
    a.reset()
    a('s_waitcnt lgkmcnt(12)')
    for i in range(7, 3, -1):
        for jq in range(0, 8 - i): M16(CACC + 4*(i + jq), TR(i), UF + 4*jq, CACC + 4*(i + jq))
        ldT(i, True)
    a(f's_waitcnt lgkmcnt({len(a.lgq)})')
    for jq in range(8):
        for i in range(3, -1, -1):
            if i + jq <= 7: M16(CACC + 4*(i + jq), TR(i), UF + 4*jq, CACC + 4*(i + jq))
        ldU(jq)
        if jq >= 4: ldT(7 - jq, True)
    a(f'v_subrev_u32 v{vCU}, 64, v{vCU}')
    for m in range(4): a(f'v_subrev_u32 v{vCT+m}, 64, v{vCT+m}')
    a(f's_setpc_b64 s[{sRET}:{sRET+1}]')
    a('L_codeend:')

def build(path):
    prologue(); role_A(); role_B()
    body, npad = a.finalize()
    K = NAME + '_kernel'
    hdr = open('cdna_kernels/' + NAME + '.s.ref').read().split('; Override launch geometry')[0]
    o = hdr + '; @launch grid=(256,1,1) block=(512,1,1) lds=163840\n'
    o += f'.amdgcn_target "amdgcn-amd-amdhsa--gfx950"\n.text\n.globl {K}\n.p2align 8\n.type {K},@function\n{K}:\n'
    o += '\n'.join(('' if l.endswith(':') else '  ') + l for l in body) + '\n'
    o += f""".section .rodata,"a"
.p2align 6
.amdhsa_kernel {K}
  .amdhsa_next_free_vgpr 256
  .amdhsa_next_free_sgpr 102
  .amdhsa_accum_offset 256
  .amdhsa_group_segment_fixed_size 0
  .amdhsa_kernarg_size 136
  .amdhsa_user_sgpr_count 2
  .amdhsa_user_sgpr_kernarg_segment_ptr 1
  .amdhsa_system_sgpr_workgroup_id_x 1
.end_amdhsa_kernel
"""
    open(path, 'w').write(o)
    json.dump(st.names, open(path + '.stamps.json', 'w'))
    print('instrs', len(body), 'pads', npad)

if __name__ == '__main__':
    out = sys.argv[1]
    for kv in sys.argv[2:]:
        k, v = kv.split('=', 1); setattr(cfg, k, eval(v))
    build(out)
```

```python
import sys, math, struct, json
from asmlib import *
NAME = 'recurrent_scan__ssm_conv_s4__mixer_s_mlp__prompt'
def f2u(x): return struct.unpack('<I', struct.pack('<f', x))[0]
def hx(x): return hex(f2u(x))

class Cfg:
    stamps = False
    xev = 30
    laa = 8
    pumps = 2
    pumpb = 12
    la1 = 8
    la2 = 6
    dper = 2
    w4b = 2
    fsearly = True
    w4stop = 1000
    oprio = 0
    g1sync = (1, 3)
    g2sync = (0, 1, 3)
    w2pre = 24
    la3 = 8
    w3a = 12
    w3b = 8
    w3d = 4
    w3f = 6
    la4 = 5
    s_ks = 16
    psleep = 0
    csleep = 2
    touch_nt = 'nt'
    touch = False
    out_fl = ''
    uprio = 3
    bprio = 3
    force_slow = False
    f1span = 24
    lag = 6
    w3e = 4
    w4a = 3
    w4ev = 12
    tailpk = True
    hx = ''
    ptouch = 'f'
    h2p = False
    aprio = 1
    g4prio = 1
    pbf = 5
    cfpos = 1
    w2n = 8
    cprio = 0
    rt = False
    ssleep = 0
    w1l2 = False
    w4first = False
    w4s = False
    f4fl = 'nt'
    fpos = 16
    w2first = True
    now3 = False
    now4 = False
    noconv = False
    w2l2 = False
    aflag = 0.5
    gbound = 200000
    lbound = 1000000
cfg = Cfg()

S0, W0, X0 = 0, 32768, 98304
S_KF, S_XT, S_STP, S_CS1, S_ST, S_ST3, S_CS3, S_CNT = 0, 16640, 24832, 26880, 27904, 28480, 28992, 30016
CN = {n: S_CNT + 4 * i for i, n in enumerate(
    ['S', 'SA', 'XA0', 'XA1', 'KW', 'KR', 'WC0', 'WC1', 'WC2', 'WC3', 'G1', 'W2I', 'W2L', 'W', 'HC0', 'HC1', 'HC2', 'HC3', 'X0', 'XA',
     'B', 'STAT', 'FF', 'FU', 'F4', 'FS', 'D4a', 'D4b', 'MODE', 'CS4', 'W3I', 'E3', 'KY', 'CF', 'CU', 'CS', 'ST', 'KQ', 'KE'])}
U0, USZ, KCOPY = X0 + 49152, 4608, 4160
CX0 = X0
E30 = X0 + 32768
KROW, KSZ = 528, 16896
KB0 = W0 + 65536 - 2 * KSZ
FSCR = S0 + 30720
WS_FLAG = 0x10000
WS_CFLAG = 0x8000
WS_XS = 0x40000
WS_H, WS_X1, WS_H2, WS_UT, WS_ST, WS_W3, WS_W4, WS_STAMP = 0x100000, 0x300000, 0x500000, 0xA80000, 0xCC0000, 0xF00000, 0x1080000, 0x1400000
UPS, SRS = 8320, 4224
H2C, FMT = 2 * 88 * 1024, 196608
sW, sJ, sC, sIDX, sDEL = 3, 4, 5, 6, 7
SX, SW1, SW2, SW3, SWS, SOUT = 8, 12, 16, 20, 28, 32
sMODE, sFL, sCFO, sCPB = 24, 25, 26, 27
sEP = 68
sT = 70
sK = 80
sRET, sWSP, sTAB, sST = 88, 90, 92, 94
EPS = 1e-5
LOG2E = math.log2(math.e)
GA = 2 * math.sqrt(2 / math.pi) * LOG2E
GB = GA * 0.044715
ALPHA = GB ** (1 / 3)
GK = GA / ALPHA
WS = f's[{SWS}:{SWS+3}]'

a = Asm()
vL, vS, vOne, vT = 0, 1, 2, 3

class Stamps:
    def __init__(self): self.names = {'A': [], 'B': []}
    def put(self, role, name):
        if not cfg.stamps: return
        i = len(self.names[role]); self.names[role].append(name)
        if i > 0: a(f'v_writelane_b32 v{vOne}, s{sST + 2*((i-1) & 1)}, {i + 1}')
        r = sST + 2 * (i & 1)
        a(f's_mem{"real" if cfg.rt else ""}time s[{r}:{r+1}]')
    def flush(self, role):
        if not cfg.stamps: return
        a('s_memrealtime s[8:9]'); a('s_memtime s[10:11]')
        a('s_waitcnt lgkmcnt(0)')
        a(f'v_writelane_b32 v{vOne}, s8, 62'); a(f'v_writelane_b32 v{vOne}, s10, 61')
        i = len(self.names[role])
        a(f'v_writelane_b32 v{vOne}, s{sST + 2*((i-1) & 1)}, {i + 1}')
        a(f'v_writelane_b32 v{vOne}, s98, 1')
        a(f'v_writelane_b32 v{vOne}, s100, 63')
        a('v_lshlrev_b32 v5, 2, v0')
        a(f's_lshl_b32 s{sT}, s2, 11'); a(f's_lshl_b32 s{sT+1}, s{sW}, 8'); a(f's_add_u32 s{sT}, s{sT}, s{sT+1}')
        a(f's_add_u32 s{sT}, s{sT}, {WS_STAMP + (1024 if role == "B" else 0)}')
        a(f'buffer_store_dword v{vOne}, v5, {WS}, s{sT} offen sc1')
st = Stamps()

def S(dst, terms, const=0):
    first = True
    for r, m in terms:
        t = dst if first else sT + 9
        if m == 1: src = f's{r}'
        else:
            if m & (m - 1) == 0: a(f's_lshl_b32 s{t}, s{r}, {m.bit_length()-1}')
            else: a(f's_mul_i32 s{t}, s{r}, {m}')
            src = f's{t}'
        if first:
            if m == 1:
                if const: a(f's_add_u32 s{dst}, {src}, {const & 0xffffffff}'); const = 0
                elif r != dst: a(f's_mov_b32 s{dst}, {src}')
            first = False
        else: a(f's_add_u32 s{dst}, s{dst}, {src}')
    if const: a(f's_add_u32 s{dst}, s{dst}, {const & 0xffffffff}')

def srd(d, b, n):
    a(f's_mov_b32 s{d}, s{b}'); a(f's_mov_b32 s{d+1}, s{b+1}'); a(f's_mov_b32 s{d+2}, {n}'); a(f's_mov_b32 s{d+3}, 0x20000')

def signal(cn):
    a('s_mov_b64 exec, 1'); a.lg(f'ds_add_u32 v{vS}, v{vOne} offset:{CN[cn]}'); a('s_mov_b64 exec, -1')

def spin(cn, target, sleep=0, base=None):
    L = a.label('SP'); E = a.label('SPE')
    a(f's_mov_b32 s{sT+9}, {cfg.lbound}')
    a(f'{L}:')
    a(f'ds_read_b32 v{vT}, v{vS if base is None else base} offset:{CN[cn]}')
    a('s_waitcnt lgkmcnt(0)')
    a(f'v_readfirstlane_b32 s{sT+8}, v{vT}')
    a(f's_cmp_ge_u32 s{sT+8}, {target}')
    a(f's_cbranch_scc1 {E}')
    if sleep or cfg.ssleep: a(f's_sleep {max(sleep, cfg.ssleep)}')
    a(f's_sub_u32 s{sT+9}, s{sT+9}, 1')
    a(f's_cbranch_scc0 {L}')
    a(f'{E}:')
    a.lgq = []

def chk_issue(cn, v):
    a.lg(f'ds_read_b32 v{v}, v{vS} offset:{CN[cn]}', ('chk', cn))
def chk_wait(cn, v, target):
    LOK = a.label('OK')
    a.wlg(('chk', cn))
    a(f'v_readfirstlane_b32 s{sT+8}, v{v}'); a(f's_cmp_ge_u32 s{sT+8}, {target}'); a(f's_cbranch_scc1 {LOK}')
    saved = list(a.lgq)
    spin(cn, target)
    a.lgq = saved
    a(f'{LOK}:')

def publish_col(cn, off, tag=None, last=3):
    E = a.label('PB')
    if tag is None: a.vm0()
    else: a.wvm(tag)
    a('s_mov_b64 exec, 1')
    a(f'ds_add_rtn_u32 v{vT}, v{vS}, v{vOne} offset:{CN[cn]}')
    a.lg0()
    a(f'v_readfirstlane_b32 s{sT+8}, v{vT}')
    a(f's_cmp_eq_u32 s{sT+8}, {last}')
    a(f's_cbranch_scc0 {E}')
    a(f'v_mov_b32 v{vT}, s{sEP}')
    a(f'buffer_store_dword v{vT}, off, {WS}, s{sCFO} offset:{off} sc1')
    a(f'{E}:')
    a('s_mov_b64 exec, -1')

def flag(sown, off, tag, release, touch=None):
    LS, LE = a.label('FS'), a.label('FE')
    a.wvm(tag)
    a(f'v_mov_b32 v{vT}, s{sEP}')
    a('s_mov_b64 exec, 1')
    a(f's_cmp_lg_u32 s{sMODE}, 1'); a(f's_cbranch_scc1 {LS}')
    a(f'buffer_store_dword v{vT}, off, {WS}, s{sown} offset:{off}')
    a(f's_branch {LE}')
    a(f'{LS}:')
    if release: a('buffer_wbl2 sc1'); a('s_waitcnt vmcnt(0)')
    a(f'buffer_store_dword v{vT}, off, {WS}, s{sown} offset:{off} sc1')
    a(f'{LE}:')
    a.vmq.append('flag')
    if touch and cfg.touch:
        mask, ins = touch
        a(f's_mov_b32 exec_lo, {mask if isinstance(mask, str) else hex(mask)}')
        a.vm(ins, 'touch')
    a('s_mov_b64 exec, -1')

def pollc(sbase, off, nl, vl4, v, sleep=None):
    L = a.label('PL'); E = a.label('PLE'); LF = a.label('PLF')
    sleep = cfg.psleep if sleep is None else sleep
    a(f's_mov_b32 s{sT+9}, {cfg.gbound}')
    a(f's_mov_b64 exec, {hex((1 << nl) - 1)}') if nl < 32 else a('s_mov_b32 exec_hi, 0')
    a(f'{L}:')
    a(f'buffer_load_dword v{v}, v{vl4}, {WS}, s{sbase} offen offset:{off} sc1')
    a('s_waitcnt vmcnt(0)')
    a(f'v_cmp_ne_u32 vcc, s{sEP}, v{v}')
    a(f's_cbranch_vccz {E}')
    if sleep: a(f's_sleep {sleep}')
    a(f's_sub_u32 s{sT+9}, s{sT+9}, 1')
    a(f's_cbranch_scc0 {L}')
    a(f'{E}:')
    a('s_mov_b64 exec, -1')
    a(f's_cmp_eq_u32 s{sMODE}, 1'); a(f's_cbranch_scc1 {LF}')
    a('buffer_inv sc1'); a('s_waitcnt vmcnt(0)')
    a(f'{LF}:')
    a.vmq = []

def cp_issue(off, v, va, tag):
    a('s_mov_b32 exec_hi, 0'); a.vm(f'buffer_load_dword v{v}, v{va}, {WS}, s{sCPB} offen offset:{off} sc1', tag); a('s_mov_b32 exec_hi, -1')
def cp_check(off, v, va, tag):
    L = a.label('CP'); E = a.label('CPE')
    a.wvm(tag)
    a(f's_mov_b32 s{sT+9}, {cfg.gbound}')
    a('s_mov_b32 exec_hi, 0')
    a(f'{L}:')
    a(f'v_cmp_ne_u32 vcc, s{sEP}, v{v}')
    a(f's_cbranch_vccz {E}')
    a(f's_sleep {cfg.csleep}')
    a(f'buffer_load_dword v{v}, v{va}, {WS}, s{sCPB} offen offset:{off} sc1')
    a('s_waitcnt vmcnt(0)')
    a(f's_sub_u32 s{sT+9}, s{sT+9}, 1')
    a(f's_cbranch_scc0 {L}')
    a(f'{E}:')
    a('s_mov_b32 exec_hi, -1')

ZONE = [8, 16, 52, 60]
def spoll(off, cn, wave=0, ZONE=ZONE):
    L = a.label('SC'); E = a.label('SCE'); X = a.label('SCX')
    a(f's_cmp_lg_u32 s{sW}, {wave}'); a(f's_cbranch_scc1 {X}')
    a(f's_add_u32 s92, s{sWSP}, s{sCPB}'); a(f's_addc_u32 s93, s{sWSP+1}, 0')
    a(f's_mov_b32 s{sT+9}, {cfg.gbound}')
    a(f'{L}:')
    for k in range(4): a(f's_load_dwordx8 s[{ZONE[k]}:{ZONE[k]+7}], s[92:93], {off + 128*k} glc')
    a('s_waitcnt lgkmcnt(0)')
    prs = [z + 2*i for z in ZONE for i in range(4)]
    for p in prs: a(f's_xor_b64 s[{p}:{p+1}], s[{p}:{p+1}], s[{sEP}:{sEP+1}]')
    for p in prs[1:]: a(f's_or_b64 s[8:9], s[8:9], s[{p}:{p+1}]')
    a(f's_cbranch_scc0 {E}')
    a(f's_sleep {cfg.csleep}')
    a(f's_sub_u32 s{sT+9}, s{sT+9}, 1')
    a(f's_cbranch_scc0 {L}')
    a(f'{E}:')
    n = len(a.lgq); signal(cn); del a.lgq[n:]
    a(f'{X}:')

def gelu_ops(p, t, dst, pk):
    o = []
    if pk:
        o.append(f'v_pk_fma_f32 v[{t}:{t+1}], v[{p}:{p+1}], v[{p}:{p+1}], s[{sK}:{sK+1}]')
        o.append(f'v_pk_mul_f32 v[{t}:{t+1}], v[{t}:{t+1}], v[{p}:{p+1}]')
    else:
        for i in range(2): o.append(f'v_fma_f32 v{t+i}, -v{p+i}, v{p+i}, -s{sK}')
        for i in range(2): o.append(f'v_mul_f32 v{t+i}, v{t+i}, v{p+i}')
    for i in range(2): o.append(f'v_exp_f32 v{t+i}, {"-" if pk else ""}v{t+i}')
    if pk: o.append(f'v_pk_fma_f32 v[{t}:{t+1}], v[{t}:{t+1}], s[{sK+2}:{sK+3}], s[{sK+2}:{sK+3}]')
    else:
        for i in range(2): o.append(f'v_fma_f32 v{t+i}, v{t+i}, s{sK+2}, s{sK+2}')
    for i in range(2): o.append(f'v_rcp_f32 v{t+i}, v{t+i}')
    if pk: o.append(f'v_pk_mul_f32 v[{t}:{t+1}], v[{t}:{t+1}], v[{p}:{p+1}]')
    else:
        for i in range(2): o.append(f'v_mul_f32 v{t+i}, v{t+i}, v{p+i}')
    o.append(f'v_cvt_pk_bf16_f32 v{dst}, v{t}, v{t+1}')
    return o

def interleave(lists):
    out = []; n = max(len(l) for l in lists)
    for i in range(n):
        for l in lists:
            if i < len(l): out.append(l[i])
    return out

def padd(d, x, y, n, pk=True):
    if pk:
        for i in range(0, n, 2): a(f'v_pk_add_f32 v[{d+i}:{d+i+1}], v[{x+i}:{x+i+1}], v[{y+i}:{y+i+1}]')
    else:
        for i in range(n): a(f'v_add_f32 v{d+i}, v{x+i}, v{y+i}')

def unpack(dst, src, n):
    for d in range(n):
        a(f'v_lshlrev_b32 v{dst+2*d}, 16, v{src+d}'); a(f'v_and_b32 v{dst+2*d+1}, 0xffff0000, v{src+d}')

def finstat(m):
    a(f'v_mul_f32 v{m}, {hx(1/512)}, v{m}'); a(f'v_mul_f32 v{m+1}, {hx(1/512)}, v{m+1}')
    a(f'v_fma_f32 v{m+1}, -v{m}, v{m}, v{m+1}'); a(f'v_max_f32 v{m+1}, 0, v{m+1}'); a(f'v_add_f32 v{m+1}, {hx(EPS)}, v{m+1}')
    a(f'v_rsq_f32 v{m+1}, v{m+1}')

def M32(d, x, y, c): a(f'v_mfma_f32_32x32x16_bf16 {vr(d, 16)}, {vr(x, 4)}, {vr(y, 4)}, {"0" if c is None else vr(c, 16)}')
def M16(d, x, y, c): a(f'v_mfma_f32_16x16x32_bf16 {vr(d, 4)}, {vr(x, 4)}, {vr(y, 4)}, {"0" if c is None else vr(c, 4)}')


class Lane:
    def __init__(self, tmp): self.tmp = tmp; self.cache = {}
    def field(self, off, wd):
        if (off, wd) == (0, 6): return 0
        if (off, wd) not in self.cache:
            r = self.tmp + len(self.cache); self.cache[(off, wd)] = r
            if off == 0: a(f'v_and_b32 v{r}, {(1 << wd) - 1}, v0')
            elif off + wd == 6: a(f'v_lshrrev_b32 v{r}, {off}, v0')
            else: a(f'v_bfe_u32 v{r}, v0, {off}, {wd}')
        return self.cache[(off, wd)]
    def __call__(self, dst, terms, base=None):
        cur = base
        if isinstance(cur, int) and not (0 <= cur <= 64): late = cur; cur = None
        else: late = None
        terms = sorted(terms, key=lambda t: (t[2] & (t[2] - 1)) == 0)
        for off, wd, m in terms:
            f = self.field(off, wd)
            if m & (m - 1) == 0:
                sh = m.bit_length() - 1
                if cur is None: a(f'v_lshlrev_b32 v{dst}, {sh}, v{f}')
                else: a(f'v_lshl_add_u32 v{dst}, v{f}, {sh}, {cur}')
            else:
                assert cur != f'v{dst}'
                a(f'v_mul_u32_u24 v{dst}, {m}, v{f}')
                if cur is not None: a(f'v_add_u32 v{dst}, {cur}, v{dst}')
            cur = f'v{dst}'
        if late is not None: a(f'v_add_u32 v{dst}, {late}, v{dst}')

def gelu16(A_, CSV, GT, MS, stores, zero=None, pk=False):
    o = []
    for hf in range(2):
        for pr in range(2):
            chains = []
            for kk in range(2):
                p = A_ + 8*hf + 4*pr + 2*kk; c = CSV + 8*hf + 4*pr + 2*kk
                if pk:
                    chn = [f'v_pk_fma_f32 v[{p}:{p+1}], v[{c}:{c+1}], v[{MS}:{MS+1}], v[{p}:{p+1}] op_sel_hi:[1,0,1] neg_lo:[0,1,0] neg_hi:[0,1,0]',
                           f'v_pk_mul_f32 v[{p}:{p+1}], v[{MS}:{MS+1}], v[{p}:{p+1}] op_sel:[1,0] op_sel_hi:[1,1]']
                else:
                    chn = [f'v_fma_f32 v{p+i}, -v{c+i}, v{MS}, v{p+i}' for i in range(2)] + [f'v_mul_f32 v{p+i}, v{p+i}, v{MS+1}' for i in range(2)]
                chn += gelu_ops(p, GT + 2*kk, A_ + 8*hf + 2*pr + kk, pk)
                chains.append(chn)
            o += interleave(chains)
        if zero is not None and hf == 0: o += [f'v_and_b32 v{A_+i}, s{zero}, v{A_+i}' for i in range(4)]
        so_, off, tag = stores[hf]
        o.append(('vm', f'buffer_store_dwordx4 {vr(A_ + 8*hf, 4)}, v4, {WS}, s{so_} offen offset:{off} sc1', tag))
    return o

def consts():
    a(f's_mov_b32 s{sK}, {hx(GK)}'); a(f's_mov_b32 s{sK+1}, {hx(GK)}')
    a(f's_mov_b32 s{sK+2}, {hx(ALPHA)}'); a(f's_mov_b32 s{sK+3}, {hx(ALPHA)}')
    a(f's_mov_b32 s{sK+4}, 0x3f803f80')
    S(sFL, [(sC, 1024)], WS_FLAG)
    S(sCPB, [(sJ, 2048)], WS_CFLAG)

SWP = {}
def swp(y, ys):
    SWP[y] = ys
    return [f'v_mov_b32 v{ys}, v{y+1}', f'v_mov_b32 v{ys+1}, v{y}']
def cmul(d, x, y):
    ys = SWP[y]
    return [f'v_pk_mul_f32 v[{d}:{d+1}], v[{x}:{x+1}], v[{y}:{y+1}] op_sel_hi:[0,1]',
            f'v_pk_fma_f32 v[{d}:{d+1}], v[{x}:{x+1}], v[{ys}:{ys+1}], v[{d}:{d+1}] op_sel:[1,0,0] neg_lo:[0,1,0]']

def kpre(P, nmul, E, tmp):
    a('s_waitcnt lgkmcnt(0)')
    a(f's_bitcmp1_b32 s{sW}, 1'); a(f's_cselect_b32 s{sT}, 0, 16')
    a(f's_lshl_b32 s66, s66, s{sT}'); a('s_and_b32 s66, s66, 0xffff0000'); a(f's_lshl_b32 s67, s67, s{sT}'); a('s_and_b32 s67, s67, 0xffff0000')
    a(f'v_mov_b32 v{P+6}, {hx(LOG2E)}'); a(f'v_mul_f32 v{P+6}, s66, v{P+6}'); a(f'v_exp_f32 v{P+6}, v{P+6}')
    for i in range(6 if nmul == 4 else 2): a(f'v_lshlrev_b32 v{P+i}, 16, v{P+i}')
    a(f'v_cvt_pk_bf16_f32 v{P+6}, v{P+6}, v{P+6}'); a(f'v_and_b32 v{P+6}, 0xffff0000, v{P+6}')
    for i in range(nmul): a(f'v_mul_f32 v{P+i}, v{P+6}, v{P+i}')
    chains = []
    for n, (l, r) in enumerate(E.items()):
        t = tmp + 2 * n
        chains.append([f'v_mul_f32 v{t}, {hx(l*LOG2E)}, v{P}', f'v_mul_f32 v{t+1}, {hx(l/(2*math.pi))}, v{P+1}', f'v_exp_f32 v{t}, v{t}', f'v_fract_f32 v{t+1}, v{t+1}',
                       f'v_cos_f32 v{r}, v{t+1}', f'v_sin_f32 v{r+1}, v{t+1}', f'v_mul_f32 v{r}, v{r}, v{t}', f'v_mul_f32 v{r+1}, v{r+1}, v{t}'])
    for x in interleave(chains): a(x)

vL16 = 4
sD = sT + 4
def prologue():
    if cfg.stamps:
        a('s_memtime s[98:99]'); a('s_memrealtime s[100:101]')
    a('s_load_dwordx16 s[36:51], s[0:1], 0')
    a('s_load_dwordx8 s[56:63], s[0:1], 80')
    a(f's_load_dwordx2 s[{sWSP}:{sWSP+1}], s[0:1], 128')
    a('s_load_dwordx2 s[52:53], s[0:1], 64')
    a('s_load_dwordx2 s[64:65], s[0:1], 112')
    a('s_cmp_ge_u32 s2, 256'); a('s_cbranch_scc1 L_exit')
    a('v_lshrrev_b32 v3, 6, v0')
    a('v_and_b32 v0, 63, v0')
    a(f'v_readfirstlane_b32 s{sW}, v3')
    a(f's_getpc_b64 s[{sT+2}:{sT+3}]')
    a('L_pc:')
    a(f's_lshr_b32 s{sJ}, s2, 3'); a(f's_and_b32 s{sJ}, s{sJ}, 7')
    a('v_lshlrev_b32 v5, 7, v0'); a(f'v_lshlrev_b32 v{vL16}, 4, v0')
    a(f's_cmp_lg_u32 s{sW}, 7'); a('s_cbranch_scc1 L_nocode')
    a(f's_and_b32 s{sT}, s{sJ}, 3'); a(f's_lshl_b32 s{sT}, s{sT}, 13'); a(f'v_add_u32 v6, s{sT}, v5')
    a(f'v_min_u32 v6, L_codeend-L_pc-4, v6')
    a(f'global_load_dword v127, v6, s[{sT+2}:{sT+3}]')
    a('L_nocode:')
    a(f's_and_b32 s{sC}, s2, 7'); a(f's_lshl_b32 s{sC}, s{sC}, 2'); a(f's_lshr_b32 s{sT}, s2, 6'); a(f's_add_u32 s{sC}, s{sC}, s{sT}')
    a(f's_lshl_b32 s{sIDX}, s{sC}, 3')
    a(f's_lshr_b32 s{sT}, s{sJ}, 2'); a(f's_add_u32 s{sDEL}, s{sT}, 1')
    a(f's_sub_u32 s{sT}, 0, s{sDEL}')
    a(f's_bitcmp1_b32 s{sJ}, 1'); a(f's_cselect_b32 s{sDEL}, s{sDEL}, s{sT}')
    a(f'v_mov_b32 v{vS}, {S0}'); a(f'v_mov_b32 v{vOne}, 1')
    a(f's_cmp_lt_u32 s{sW}, 4'); a('s_cbranch_scc1 L_A')
    a('s_setprio 3')
    a(f's_sub_u32 s{sW}, s{sW}, 4')
    a(f's_bfe_u32 s{sT}, s{sW}, 0x10001'); S(sD, [(sJ, 64), (sC, 2), (sT, 1)])
    a(f's_and_b32 s{sT+1}, s{sW}, 1'); S(sT, [(sD, 256), (sT + 1, 128)])
    a(f'v_lshl_add_u32 v8, v0, 1, s{sT}')
    a(f's_lshl_b32 s{sT+6}, s{sD}, 1'); a(f's_andn2_b32 s{sT+6}, s{sT+6}, 3')
    a(f's_add_u32 s{sT}, s{sIDX}, s{sJ}')
    a(f's_lshl_b32 s{sT+1}, s{sT}, 13'); a(f'v_add_u32 v6, s{sT+1}, v5')
    a(f's_lshl_b32 s{sT+1}, s{sT}, 11'); a(f'v_add_u32 v7, s{sT+1}, v5')
    a(f'v_lshlrev_b32 v10, 2, v0'); a('v_mov_b32 v11, 0')
    a(f'ds_write_b32 v10, v11 offset:{S_CNT}')
    S(sT, [(sC, 1024)], WS_FLAG); a(f'v_add_u32 v10, s{sT}, v5')
    a('v_lshrrev_b32 v12, 2, v0'); a('v_mul_u32_u24 v12, 2688, v12'); a(f'v_add_u32 v12, v12, v{vL16}')
    S(73, [(sC, 16*2752), (sJ, 352), (sW, 192)])
    a(f's_cmp_ge_u32 s{sJ}, 6'); a(f's_cselect_b32 s{sT}, 32, 0'); a(f's_sub_u32 s73, s73, s{sT}')
    a('v_lshrrev_b32 v60, 3, v0'); a(f'v_mul_u32_u24 v60, 896, v60'); a(f'v_add_u32 v60, v60, v{vL16}')
    a(f's_cmp_lt_i32 s{sDEL}, 0'); a(f's_cselect_b32 s75, 64, -2'); a(f's_add_u32 s75, s75, s{sDEL}')
    S(sT, [(sC, 65536), (75, 1024)]); a(f'v_lshl_add_u32 v61, v0, 5, s{sT}')
    S(77, [(sC, 65536), (sJ, 128), (sW, 16384)])
    a(f's_lshl_b32 s{sT+1}, s{sW}, 11'); a(f's_add_u32 m0, s{sT+1}, {S0 + S_XT}')
    a('s_waitcnt lgkmcnt(0)')
    nt = cfg.touch_nt
    for i in range(6): a(f'global_load_ushort v{48+i}, v8, s[{38+2*i}:{39+2*i}] {nt}')
    a(f's_load_dword s66, s[50:51], s{sT+6}'); a(f's_load_dword s67, s[52:53], s{sT+6}')
    a(f's_load_dword s{sEP}, s[{sWSP}:{sWSP+1}], 0')
    srd(SX, 36, 2097152)
    a(f's_cmp_eq_u32 s{sW}, 2'); a('s_cbranch_scc1 L_f2b')
    a(f's_cmp_eq_u32 s{sW}, 3'); a('s_cbranch_scc1 L_f2c')
    srd(SW3, 60, 1409024)
    for m in range(3): a(f'buffer_load_dwordx4 {vr(240 + 4*m, 4)}, v12, s[{SW3}:{SW3+3}], s73 offen offset:{64*m} {nt}')
    a('s_branch L_f2d')
    a('L_f2b:')
    a(f'global_load_dword v56, v6, s[36:37] {nt}')
    a('s_mov_b64 exec, 0xffff')
    a('global_load_dword v57, v7, s[56:57]')
    a('global_load_dword v58, v7, s[58:59]')
    a('s_branch L_f2d')
    a('L_f2c:')
    for k in range(2): a(f'buffer_load_dwordx4 {vr(232 + 4*k, 4)}, v61, s[{SX}:{SX+3}], 0 offen offset:{16*k}')
    a('s_mov_b64 exec, 0x1f')
    a(f'global_load_dword v56, v10, s[{sWSP}:{sWSP+1}] sc1')
    a('L_f2d:')
    a('s_mov_b64 exec, -1')
    a(f'buffer_load_dwordx4 v60, s[{SX}:{SX+3}], s77 offen lds')
    a('s_addk_i32 m0, 1024'); a('s_addk_i32 s77, 8192')
    a(f'buffer_load_dwordx4 v60, s[{SX}:{SX+3}], s77 offen lds')
    a('s_barrier')
    a('s_setprio 1')
    a('s_branch L_B')
    a('L_exit:')
    a('s_endpgm')
    a('L_A:')

his = list(range(9)) + [256, 258, 260, 262, 264, 512, 516, 520, 768, 772, 776, 1024, 1032, 1280, 1288, 1536, 1544, 1792, 1800]
h0 = list(range(9)) + [512, 516, 520, 1024, 1032, 1536, 1544]
h1 = [256, 256, 258, 260, 260, 260, 262, 264, 264, 768, 772, 776, 1280, 1288, 1792, 1800]
rowof = lambda v, half: (v & 3) + 8 * (v >> 2) + 4 * half
xrows = {h: [rowof(v, 0) for v, x in enumerate(h0) if x == h] + [rowof(v, 1) for v, x in enumerate(h1) if x == h] for h in his}

def role_A():
    vXF = list(range(16, 24)); vW1 = list(range(24, 28))
    vW, vL4, vXA, vSW, vSR, vCR, vW2, vW2b, vXT, vST, vHF, vXS, vS3 = range(28, 41)
    vCP, vSD, vDW, vL4b = 12, 13, 14, 15
    vCK = 7
    XF, RG, ACC, CSA = 128, 64, 96, 112
    s16W, sOWN, sPB, sJP, sFO, sFP = sT + 5, 40, 41, 42, 43, 44
    sOA, sOB, sH, sX1, sXS, sXSL, sW4, sHL, sX1L, sSD, sH2, sXC = sT + 6, 46, 47, 48, 49, 50, 51, 52, 53, 54, 55, 38
    a('v_lshrrev_b32 v10, 4, v0'); a('v_and_b32 v11, 15, v0')
    a('v_xor_b32 v11, v11, v10'); a('v_lshlrev_b32 v11, 4, v11')
    S(sT, [(sC, 65536), (sDEL, 1024), (sW, 256)])
    a(f'v_lshl_add_u32 v12, v10, 10, s{sT}')
    for m in range(4):
        if m == 0: a('v_add_u32 v56, v12, v11')
        else:
            a(f'v_xor_b32 v13, {64*m}, v11'); a(f'v_add_u32 v13, {4096*m}, v13'); a(f'v_add_u32 v{56+m}, v12, v13')
    a('v_add_u32 v60, 0x4000, v56')
    a(f's_mov_b32 s{sT+2}, 0x4000'); a(f's_mov_b32 s{sT+3}, 0x8000'); a(f's_mov_b32 s{sT+4}, 0xc000')
    a(f's_lshl_b32 s{s16W}, s{sW}, 14')
    a('s_setprio 2')
    a(f's_mov_b32 s{sK+4}, 0x3f803f80')
    S(sOA, [(sW, 131072), (sJ, 128)])
    sTH, sNH, sSS, sHS, sZ, sTM = 66, 67, 39, 58, 60, 61
    a(f's_lshr_b32 s{sTH}, s{sW}, 1'); a(f's_and_b32 s{sNH}, s{sW}, 1')
    L = Lane(100)
    hf_, l15 = L.field(5, 1), L.field(0, 4)
    a(f'v_xor_b32 v8, v{l15}, v{hf_}')
    S(sT, [(sTH, 8192), (sW, 16384)]); L(9, [(0, 5, 256)], f's{sT}'); a('v_lshl_add_u32 v8, v8, 4, v9')
    a(f's_mov_b32 s{sT}, {X0}')
    for c_ in range(4):
        a(f'v_xor_b32 v9, {c_ << 14}, v8'); a(f'v_add_u32 v{XF + 32*c_}, s{sT}, v9')
        for ks in range(1, 8): a(f'v_xor_b32 v{XF + 32*c_ + 4*ks}, {ks << 5}, v{XF + 32*c_}')
    for ks in range(8): a(f'v_xor_b32 v{RG + 4*ks}, 0x2000, v{XF + 4*ks}')
    L(9, [(2, 2, 128), (4, 1, 32), (0, 2, 8), (3, 1, 64)]); a(f's_lshl_b32 s{sT}, s{sNH}, 6'); a(f'v_xor_b32 v9, s{sT}, v9')
    L(8, [(5, 1, 1024)], 'v9'); a(f'v_add_u32 v8, s{s16W}, v8')
    for q in range(4): a(f'v_xor_b32 v{vW1[q]}, {q << 14}, v8')
    L(vW, [(3, 3, 1024), (0, 3, 16)]); L(8, [(4, 1, 64)]); a(f'v_xor_b32 v{vW}, v{vW}, v8')
    L(vL4, [(0, 6, 4)])
    a(f's_lshl_b32 s{sT}, s{sW}, 8'); a(f'v_add_u32 v{vSW}, s{sT}, v{vL4}')
    S(sT, [(sT, 1), (sTH, 1024)]); a(f'v_add_u32 v{vXA}, s{sT}, v{vL4}'); a(f'v_xor_b32 v16, 0x400, v{vXA}')
    a('v_mov_b32 v17, v9')
    a('s_waitcnt lgkmcnt(0)')
    srd(SX, 36, 2097152)
    a('s_barrier')
    a(f's_load_dword s{sEP}, s[{sWSP}:{sWSP+1}], 0')
    srd(SW1, 56, 524288); srd(SWS, sWSP, 268435456); srd(SW2, 58, 524288)
    srd(SW3, 62, 1409024)
    sF4 = 36
    S(sF4, [(sC, 48*1024), (sJ, 128)])
    a('v_lshrrev_b32 v47, 2, v0'); a('v_mul_u32_u24 v47, 960, v47'); a(f'v_add_u32 v47, v47, v{vL16}')
    a(f's_lshr_b32 s{sOB}, s2, 3'); S(sOB, [(sOB, 16384), (sW, 4096)])
    def dmaX(i, first=False):
        m, blk = i & 3, i >> 2
        v = 60 if (m == 0 and blk > 0) else 56 + m
        b = blk - 1 if (m == 0 and blk > 0) else blk
        so = '0' if b == 0 else f's{sT+1+b}'
        if first: a(f's_add_u32 m0, s{s16W}, {X0 + 1024*i}')
        else: a('s_addk_i32 m0, 1024')
        a.vm(f'buffer_load_dwordx4 v{v}, s[{SX}:{SX+3}], {so} offen lds', ('x', i))
    st.put('A', 'setup')
    consts()
    a(f's_and_b32 s{sJP}, s{sJ}, 1')
    S(sOWN, [(sIDX, 8192), (sJ, 8192)]); S(sPB, [(sW, 16384), (sIDX, 8192), (sJP, 8192)])
    S(sFO, [(sJ, 16), (sW, 4), (sFL, 1)]); S(sFP, [(sW, 32), (sFL, 1)])
    S(sH, [(sW, 2048), (sOWN, 1)], WS_H); a(f's_add_u32 s{sX1}, s{sH}, {WS_X1 - WS_H}')
    a(f's_lshr_b32 s{sXS}, s{sOWN}, 3'); S(sXS, [(sXS, 1), (sW, 256)], WS_XS); S(sXSL, [(sIDX, 1024)], WS_XS)
    S(sW4, [(sW, 22*2048), (sJ, FMT)], WS_W4)
    a(f's_cmp_eq_u32 s{sW}, 3'); a(f's_cselect_b32 s{sT}, 2048, 0'); a(f's_sub_u32 s{sW4}, s{sW4}, s{sT}')
    a(f's_add_u32 s{sHL}, s{sPB}, {WS_H}'); a(f's_add_u32 s{sX1L}, s{sPB}, {WS_X1}')
    S(sH2, [(sC, H2C), (sW, 22*1024)], WS_H2)
    S(sSS, [(sJ, 64*SRS), (sC, 2*SRS), (sTH, SRS), (sNH, 2048)], WS_ST)
    S(sHS, [(sC, H2C), (sJ, 11*1024), (sTH, 2048), (sNH, 88*1024)], WS_H2 + 8192)
    a(f's_cmp_ge_u32 s{sW}, 2'); a(f's_cselect_b32 s{sHS+1}, 0x80000000, s{sHS}'); a(f's_cselect_b32 s{sTM}, 0xff, -1'); a(f's_and_b32 s{sTM}, s{sTM}, 0xffff')
    a(f's_or_b32 s{sT}, s{sJ}, 2'); S(sT, [(sT, 2), (sTH, 1)]); a(f's_cmp_eq_u32 s{sT}, 15'); a(f's_cselect_b32 s{sZ}, 0, -1')
    a(f's_lshr_b32 s{sT}, s{sC}, 3'); a(f's_and_b32 s{sT+1}, s{sC}, 7'); S(sCFO, [(sT, 128), (sT + 1, 4), (sCPB, 1)])
    S(sT, [(sJP, 8192), (sW, 16384)]); L(vW2, [(5, 1, 512)], 'v17'); a(f'v_add_u32 v{vW2}, s{sT}, v{vW2}')
    S(sT, [(sTH, 1024)], S0 + S_STP); L(vSR, [(0, 5, 4)], f's{sT}')
    a(f'v_add_u32 v20, {S0 + S_CS1}, v{vSW}')
    a(f's_lshl_b32 s{sT}, s{sNH}, 8'); L(vCR, [(5, 1, 16)], f's{sT}')
    S(sT, [(sTH, 4096), (sNH, 64)]); L(vXT, [(0, 5, 128), (5, 1, 8)], f's{sT}')
    a(f's_lshl_b32 s{sT}, s{sTH}, 8'); L(vST, [(0, 5, 8)], f's{sT}')
    S(sT, [(sTH, 4096), (sW, 16384)]); a(f'v_add_u32 v{vHF}, s{sT}, v{vL16}')
    for q in range(1, 4): a(f'v_xor_b32 v{20+q}, {q << 14}, v{vHF}')
    S(sT, [(sTH, 512), (sNH, 64)]); L(vXS, [(4, 1, 256), (5, 1, 128), (0, 4, 4)], f's{sT}')
    a(f's_lshl_b32 s{sT}, s{sW}, 7'); L(vS3, [(0, 4, 8)], f's{sT}')
    S(sT, [(sW, 8192), (sNH, 4096)], CX0); L(43, [(1, 4, 16), (0, 1, 512), (5, 1, 1024)], f's{sT}')
    S(sT, [(sTH, 512)], S0 + S_CS3); L(44, [(5, 1, 16)], f's{sT}')
    a(f's_lshl_b32 s{sT}, s{sNH}, 8'); L(45, [(0, 5, 8)], f's{sT}')
    L(41, [(3, 3, 128), (0, 3, 4)])
    a(f'v_add_u32 v46, s{sH}, v5'); a('s_mov_b32 exec_lo, 0xffff0000'); a(f'v_add_u32 v46, {WS_X1 - WS_H - 2048}, v46')
    a('s_mov_b32 exec_lo, 0'); a(f's_sub_u32 s{sT}, s{sXS}, 4096'); a(f'v_add_u32 v46, s{sT}, v5'); a('s_mov_b32 exec_lo, -1')
    def ptouch():
        a('s_mov_b32 exec_hi, 3'); a.vm(f'buffer_load_dword v46, v46, {WS}, 0 offen sc1', 'pt'); a('s_mov_b32 exec_hi, -1')
    st.put('A', 'setup2')
    if cfg.hx == '' and cfg.ptouch == '0': ptouch()
    def fdma():
        for k in range(2):
            a(f's_add_u32 s{sT}, s{sW}, {4*k}'); a(f's_cmp_ge_u32 s{sT}, 3'); a(f's_cselect_b32 s{sT+1}, 1, 0')
            a(f's_lshl_b32 s{sT+8}, s{sT+1}, 10'); a(f's_lshl_b32 s{sT+9}, s{sT}, 10'); a(f's_add_u32 s{sT+8}, s{sT+8}, s{sT+9}')
            a(f's_min_u32 s{sT+8}, s{sT+8}, 7168'); a(f's_add_u32 m0, s{sT+8}, {S0 + S_KF + 8192}')
            a(f's_mul_i32 s{sT+1}, s{sT+1}, {(64 - 3*16384) & 0xffffffff}'); a(f's_lshl_b32 s{sT+9}, s{sT}, 14'); a(f's_add_u32 s{sT+1}, s{sT+1}, s{sT+9}')
            a(f's_add_u32 s{sT+1}, s{sT+1}, s{sF4}'); a(f's_cmp_ge_u32 s{sT}, 6'); a(f's_cselect_b32 s{sT+1}, 0x80000000, s{sT+1}')
            a.vm(f'buffer_load_dwordx4 v47, s[{SW3}:{SW3+3}], s{sT+1} offen {cfg.f4fl} lds', 'f')
    for i in range(16):
        if i == cfg.fpos: fdma()
        dmaX(i, i in (0, cfg.fpos))
    if cfg.fpos == 16: fdma()
    if cfg.hx == '' and cfg.ptouch == 'f': ptouch()
    nq = [0]
    def pump(n=1):
        for _ in range(n):
            i = nq[0]
            if i >= 16: return
            nq[0] += 1
            if i == 0: a(f's_add_u32 m0, s{s16W}, {W0}')
            else: a('s_addk_i32 m0, 1024'); a(f's_addk_i32 s{sOA}, 8192')
            a.vm(f'buffer_load_dwordx4 v{vW}, s[{SW1}:{SW1+3}], s{sOA} offen lds', ('w1', i >> 3))
    for i in range(48, 52): a(f'v_mov_b32 v{i}, 0')
    a('s_mov_b32 vcc_lo, 0xaaaa5555'); a('s_mov_b32 vcc_hi, vcc_lo'); a(f'v_mov_b32 v60, s{sK+4}')
    for i in range(63, 59, -1): a(f'v_cndmask_b32 v{i}, 0, v60, vcc')
    a('s_setprio 2')
    LT1, LTE = a.label('TH'), a.label('TH')
    a(f's_cmp_eq_u32 s{sTH}, 1'); a(f's_cbranch_scc1 {LT1}')
    saved = (list(a.vmq), list(a.lgq))
    for var in range(2):
        if var:
            a(f'{LT1}:'); a.vmq, a.lgq = list(saved[0]), list(saved[1]); nq[0] = 0
        for ph in range(2):
            own = (ph == var); B_ = XF if own else RG; acc_ = 48 if own else 50
            a.wvm(('x', 8*ph + 7))
            if ph: signal('XA1')
            for ks in range(8): a.lg(f'ds_read_b128 {vr(B_ + 4*ks, 4)}, v{B_ + 4*ks}', ('xs', ph, ks))
            for ks in range(8):
                pump()
                a.wlg(('xs', ph, ks))
                for d in range(4):
                    r = B_ + 4*ks + d
                    a(f'v_dot2c_f32_bf16 v{acc_}, s{sK+4}, v{r}'); a(f'v_dot2c_f32_bf16 v{acc_+1}, v{r}, v{r}')
                if ph and ks == 4: chk_issue('XA1', vCK)
        if var == 0: a(f's_branch {LTE}')
    a(f'{LTE}:')
    a('s_nop 2')
    chk_wait('XA1', vCK, 4)
    rest = [n for n in range(8, 32) if (n & 7) < 4] + [n for n in range(8, 32) if (n & 7) >= 4]
    for n in rest[:8]: a.lg(f'ds_read_b128 {vr(XF + 4*n, 4)}, v{XF + 4*n}')
    a('v_permlane32_swap_b32 v48, v49'); a('v_permlane32_swap_b32 v50, v51'); a('v_add_f32 v48, v48, v49'); a('v_add_f32 v50, v50, v51')
    a.lg(f'ds_write_b32 v{vXA}, v48 offset:{S0 + S_STP}'); a.lg(f'ds_write_b32 v16, v50 offset:{S0 + S_STP}')
    a.wvm('f')
    signal('S')
    st.put('A', 'S')
    if cfg.hx == '' and cfg.ptouch == 's': ptouch()
    if cfg.w4s:
        a('s_mov_b64 exec, 0x7ff'); a.vm(f'buffer_load_dword v47, v5, s[{SW3}:{SW3+3}], s45 offen', 'tw4'); a('s_mov_b64 exec, -1')
    if cfg.w2l2:
        a('s_mov_b32 exec_hi, 0'); a.vm(f'buffer_load_dword v55, v5, s[{SW2}:{SW2+3}], s{sOB} offen', 'tw2'); a('s_mov_b32 exec_hi, -1')
    for n in rest[8:]: a.lg(f'ds_read_b128 {vr(XF + 4*n, 4)}, v{XF + 4*n}')
    a.wvm(('w1', 0)); signal('WC0')
    st.put('A', 'g1_go')
    seq = [8*c_ + ks for c_ in range(4) for ks in range(4)] + [8*c_ + ks for c_ in range(4) for ks in range(4, 8)]
    RS = [RG + 4*i for i in range(8)] + [116, 120, 124]
    nrd = [0]
    def rdw(upto):
        while nrd[0] < min(upto, 32):
            pos = nrd[0]; n = seq[pos]; nrd[0] += 1
            for p in range(2):
                a.lg(f'ds_read_b64_tr_b16 {vr(RS[pos % 11] + 2*p, 2)}, v{vW1[n >> 3]} offset:{W0 + 2048*(n & 7) + 512*p}', ('wf', pos))
    LA = cfg.la1
    rdw(4)
    chk_issue('WC0', vCK)
    mark = len(a.L)
    padd(8, 8, 12, 4, False); padd(52, 8, 10, 2, False)
    finstat(52)
    a('v_mul_f32 v8, v53, v53'); a(f'v_mov_b32 v9, {hx(1 + EPS)}'); a(f'v_fmac_f32 v9, {hx(-EPS)}, v8')
    a('v_rsq_f32 v9, v9')
    a(f'v_mul_f32 v53, s{sK+2}, v53'); a('v_mul_f32 v53, v53, v9')
    a(f's_add_u32 s{sEP}, s{sEP}, 1'); a(f's_mov_b32 s{sEP+1}, s{sEP}')
    a(f's_getreg_b32 s{sXC}, hwreg(HW_REG_XCC_ID, 0, 4)')
    if cfg.force_slow: a(f's_mov_b32 s{sXC}, s{sJ}')
    a(f's_lshl_b32 s{sXC}, s{sXC}, 28'); a(f's_add_u32 s{sXC}, s{sXC}, s{sEP}')
    side = a.L[mark:]; del a.L[mark:]
    for pos in range(32):
        n = seq[pos]
        if pos == 2:
            chk_wait('WC0', vCK, 4)
        if pos == 5:
            for w2 in range(4): a.lg(f'ds_read2_b32 v[{8+2*w2}:{9+2*w2}], v{vSR} offset0:{64*w2} offset1:{64*w2+32}', 'sp')
        if pos == 16 - LA: a.wvm(('w1', 1)); signal('WC1')
        if pos == 18 - LA: chk_issue('WC1', vCK)
        if pos == 20 - LA: chk_wait('WC1', vCK, 4)
        if pos == 20:
            a('s_mov_b64 exec, 0xff'); a.vm(f'buffer_load_dword v54, v{vL4}, {WS}, s{sFL} offen offset:768 sc1', 'md'); a('s_mov_b64 exec, -1')
        if pos >= 2: rdw(min(pos + LA + 1, nrd[0] + 3))
        a.wlg(('wf', pos))
        M32(ACC, RS[pos % 11], XF + 4*n, None if pos == 0 else ACC)
        if n < 16: M16(CSA, 60, RS[pos % 11], None if pos == 0 else CSA)
        if pos == 14: a.wlg('sp')
        if pos >= 14:
            for _ in range(2):
                if side: a(side.pop(0))
        if pos == 25:
            assert nrd[0] == 32
            a('s_mov_b64 exec, 0xffff'); a.lg(f'ds_write2_b32 v20, v{CSA}, v{CSA+1} offset0:0 offset1:16'); a('s_mov_b64 exec, -1')
            signal('G1')
        if pos == 29: chk_issue('G1', vCK)
    assert not side
    st.put('A', 'g1_mfma')
    chk_wait('G1', vCK, 4)
    CSR = XF
    for q in range(4):
        for s_ in range(2): a.lg(f'ds_read_b128 {vr(CSR + 16*s_ + 4*q, 4)}, v{vCR} offset:{S0 + S_CS1 + 512*s_ + 32*q}', ('cs', q >> 1))
    for hf in range(2):
        a.wlg(('cs', hf))
        padd(CSR + 8*hf, CSR + 8*hf, CSR + 16 + 8*hf, 8)
        chains = []
        for i in range(0, 8, 2):
            o = ACC + 8*hf + i; c = CSR + 8*hf + i
            ch = [f'v_pk_fma_f32 v[{o}:{o+1}], v[{c}:{c+1}], v[52:53], v[{o}:{o+1}] op_sel_hi:[1,0,1] neg_lo:[0,1,0] neg_hi:[0,1,0]',
                  f'v_pk_mul_f32 v[{o}:{o+1}], v[52:53], v[{o}:{o+1}] op_sel:[1,0] op_sel_hi:[1,1]']
            ch += gelu_ops(o, RG + i, 56 + 4*hf + i // 2, True)
            chains.append(ch)
        for x in interleave(chains): a(x)
        a.vm(f'buffer_store_dwordx4 {vr(56 + 4*hf, 4)}, v{vL16}, {WS}, s{sH} offen offset:{1024*hf} {cfg.hx}', 'hst')
    st.put('A', 'h_stored')
    LMP, LME = a.label('MD'), a.label('MD')
    a.wvm('md')
    a(f's_mov_b32 s{sT+9}, {cfg.gbound}')
    a('s_mov_b64 exec, 0xff')
    a(f'{LMP}:')
    a(f'v_subrev_u32 v8, s{sEP}, v54'); a('v_and_b32 v8, 0x0fffffff, v8')
    a('v_cmp_ne_u32 vcc, 0, v8')
    a(f's_cbranch_vccz {LME}')
    a(f's_sleep {cfg.csleep}')
    a(f'buffer_load_dword v54, v{vL4}, {WS}, s{sFL} offen offset:768 sc1')
    a('s_waitcnt vmcnt(0)')
    a(f's_sub_u32 s{sT+9}, s{sT+9}, 1'); a(f's_cbranch_scc0 {LMP}')
    a(f'{LME}:')
    a(f'v_cmp_ne_u32 vcc, s{sXC}, v54')
    a('s_cmp_eq_u64 vcc, 0'); a(f's_cselect_b32 s{sMODE}, 1, 2')
    a(f'v_mov_b32 v8, s{sMODE}')
    a('s_mov_b64 exec, 1'); a.lg(f'ds_write_b32 v{vS}, v8 offset:{CN["MODE"]}'); a('s_mov_b64 exec, -1')
    a(f's_mov_b32 s{sT}, {X0}')
    for g in range(8): a(f'v_xor_b32 v{RG + g}, {8192*g}, v{vW2}'); a(f'v_add_u32 v{RG + g}, s{sT}, v{RG + g}')
    spin('W2L', 4)
    def rdw2(n):
        for p in range(2):
            a.lg(f'ds_read_b64_tr_b16 {vr(XF + 4*n + 2*p, 2)}, v{RG + (n >> 2)} offset:{2048*(n & 3) + 1024*p}', 'w2f')
    for q in range(4): a.lg(f'ds_read_b64 v[{8+2*q}:{9+2*q}], v{vXT} offset:{S0 + S_XT + 16*q}', 'xt')
    a.lg(f'ds_read_b64 v[50:51], v{vST} offset:{S0 + S_ST + 16}', 'xt')
    for n in range(cfg.w2pre): rdw2(n)
    flag(sFO, 0, 'hst', cfg.hx == '')
    st.put('A', 'h_flag')
    for n in range(cfg.w2pre, 32): rdw2(n)
    signal('W')
    a.wlg('xt')
    unpack(ACC, 8, 8)
    for i in range(16): a(f'v_sub_f32 v{ACC+i}, v{ACC+i}, v50')
    for i in range(16): a(f'v_mul_f32 v{ACC+i}, v{ACC+i}, v51')
    st.put('A', 'rdy')
    def image(sbase, tag, c):
        pp, rh = c >> 1, c & 1
        if c == 2: a(f's_xor_b32 s{sbase}, s{sbase}, 8192')
        if rh == 0: a(f's_add_u32 s{sOB}, s{sbase}, 4096')
        for th in range(2):
            a(f's_add_u32 m0, s{s16W}, {W0 + 8192*pp + 4096*th}')
            for r in range(2*rh, 2*rh + 2):
                a.vm(f'buffer_load_dwordx4 v{vL16}, {WS}, s{sOB if th else sbase} offen offset:{1024*r} sc1 lds', (tag, c))
    pollc(sFP, 0, 8, vL4, 48)
    st.put('A', 'h_seen')
    for c in range(3): image(sHL, 'h', c)
    vH4 = [vHF, 21, 22, 23]
    seq2 = [8*w2 + 4*pp + r for pp in range(2) for w2 in range(4) for r in range(4)]
    RS2 = [RG + 4*i for i in range(8)] + [112, 116, 120, 124]
    nr2 = [0]
    def rdh(upto):
        while nr2[0] < min(upto, 32):
            pos = nr2[0]; n = seq2[pos]; nr2[0] += 1
            a.lg(f'ds_read_b128 {vr(RS2[pos % 12], 4)}, v{vH4[n >> 3]} offset:{W0 + 8192*((n >> 2) & 1) + 1024*(n & 3)}', ('hf', pos))
    a.lg0()
    a.wvm(('h', 0)); rdh(2); image(sHL, 'h', 3)
    a.wvm(('h', 1)); signal('HC0'); rdh(4); chk_issue('HC0', vCK)
    st.put('A', 'g2_go')
    LA2 = cfg.la2
    for pos in range(32):
        if pos == 3: chk_wait('HC0', vCK, 4)
        if pos == 16 - LA2: a.wvm(('h', 3)); signal('HC1')
        if pos == 18 - LA2: chk_issue('HC1', vCK)
        if pos == 20 - LA2: chk_wait('HC1', vCK, 4)
        if pos >= 3: rdh(pos + LA2 + 1)
        a.wlg(('hf', pos))
        M32(ACC, XF + 4*seq2[pos], RS2[pos % 12], ACC)
    st.put('A', 'g2_mfma')
    for hf in range(2):
        for i in range(4): a(f'v_cvt_pk_bf16_f32 v{56+4*hf+i}, v{ACC+8*hf+2*i}, v{ACC+8*hf+2*i+1}')
        a.vm(f'buffer_store_dwordx4 {vr(56 + 4*hf, 4)}, v{vL16}, {WS}, s{sX1} offen offset:{1024*hf} {cfg.hx}', 'x1st')
    for k in range(2):
        a(f'v_add_f32 v{8+2*k}, v{ACC+8*k}, v{ACC+8*k+1}'); a(f'v_mul_f32 v{9+2*k}, v{ACC+8*k}, v{ACC+8*k}')
    for i in range(1, 8):
        for k in range(2):
            if i > 1: a(f'v_add_f32 v{8+2*k}, v{8+2*k}, v{ACC+8*k+i}')
            a(f'v_fmac_f32 v{9+2*k}, v{ACC+8*k+i}, v{ACC+8*k+i}')
    a('v_add_f32 v8, v8, v10'); a('v_add_f32 v9, v9, v11')
    a('v_permlane32_swap_b32 v8, v9'); a('v_add_f32 v8, v8, v9')
    for q in range(1, 4): a(f'v_mov_b32_dpp v{8+q}, v8 quad_perm:[{q},{q},{q},{q}] row_mask:0xf bank_mask:0xf')
    a('s_mov_b32 exec_lo, 0x11111111'); a('s_mov_b32 exec_hi, 0x11111111')
    a.vm(f'buffer_store_dwordx4 v[8:11], v{vL4}, {WS}, s{sXS} offen {cfg.hx}', 'x1st')
    a('s_mov_b64 exec, -1')
    st.put('A', 'x1_stored')
    a(f'v_mov_b32 v{vCP}, v41')
    a(f's_add_u32 s{sT}, s{s16W}, {X0}'); a(f'v_add_u32 v{vDW}, s{sT}, v{vL16}')
    W4F, ACC4, RING = 80, 48, 16
    flag(sFO, 128, 'x1st', cfg.hx == '')
    st.put('A', 'x1_flag')
    pollc(sFL, 128, 32, vL4, 48)
    st.put('A', 'x1_seen')
    for c in range(3): image(sX1L, 'x1', c)
    chk_issue('W3I', vCK)
    a.wvm(('x1', 0)); signal('X0')
    image(sX1L, 'x1', 3)
    a.wvm(('x1', 1)); signal('XA0')
    for q in range(8):
        if q == 4: a(f's_addk_i32 s{sXSL}, 4096')
        a.vm(f'buffer_load_dword v{48+q}, v{vXS}, {WS}, s{sXSL} offen offset:{1024*(q & 3)} sc1', 'xs')
    chk_wait('W3I', vCK, 4)
    a.wvm(('x1', 3)); signal('XA')
    st.put('A', 'x1_in')
    def w4issue(ks):
        for nt_ in range(2):
            a.vm(f'buffer_load_dwordx4 {vr(W4F + 8*ks + 4*nt_, 4)}, v{vL16}, {WS}, s{sW4} offen offset:{2048*(ks & 1) + 1024*nt_} sc1', ('w4', ks))
        if ks & 1: a(f's_addk_i32 s{sW4}, 4096')
    if cfg.now4: a(f's_mov_b32 s{sW4}, 0x80000000')
    nw = [0]
    def w4more(n=1):
        for _ in range(n):
            ks = nw[0]
            if ks >= 22: return
            nw[0] += 1
            if ks >= cfg.la4: a.wvm(('w4', ks - cfg.la4))
            w4issue(ks)
    w4more(cfg.la4)
    a(f's_setprio {cfg.aprio}')
    a.wvm('xs')
    padd(48, 48, 52, 4, False); padd(48, 48, 50, 2, False)
    a('v_add_f32 v48, v48, v49')
    a('v_mov_b32 v49, v48')
    a('v_permlane16_swap_b32 v48, v49'); a('v_add_f32 v48, v48, v49')
    a('v_mov_b32 v49, v48')
    a('v_permlane32_swap_b32 v48, v49')
    finstat(48)
    a(f'v_mul_f32 v49, s{sK+2}, v49')
    a.lg(f'ds_write_b64 v{vS3}, v[48:49] offset:{S0 + S_ST3}')
    signal('ST')
    a('v_xor_b32 v8, 0x2000, v43')
    for pr in range(2):
        for h in range(2):
            a.lg(f'ds_read_b128 {vr(48 + 8*pr + 4*h, 4)}, v43 offset:{2048*pr + 256*h}', ('c', pr))
            a.lg(f'ds_read_b128 {vr(64 + 8*pr + 4*h, 4)}, v8 offset:{2048*pr + 256*h}', ('c', pr))
    for pr in range(2):
        a.wlg(('c', pr))
        padd(48 + 8*pr, 48 + 8*pr, 64 + 8*pr, 8, False)
        for d in range(4): a(f'v_cvt_pk_bf16_f32 v{64+8*pr+d}, v{48+8*pr+2*d}, v{48+8*pr+2*d+1}')
        a.vm(f'buffer_store_dwordx4 {vr(64 + 8*pr, 4)}, v{vL16}, {WS}, s{sSS} offen offset:{1024*pr} sc1', 'sst')
    EA, EB, EC, ED = 48, 64, 16, 32
    a('v_mov_b32 v9, v44'); a('v_mov_b32 v10, v45')
    S(sT, [(sW, 8192)], E30); a(f'v_add_u32 v8, s{sT}, v{vL16}'); a('v_xor_b32 v11, 0x3000, v8')
    for q in range(4):
        a.lg(f'ds_read_b128 {vr(EC + 4*q, 4)}, v9 offset:{32*q}', 'e0'); a.lg(f'ds_read_b128 {vr(ED + 4*q, 4)}, v9 offset:{256 + 32*q}', 'e0')
    w4more(cfg.w4a)
    spin('ST', 4)
    padd(EC, EC, ED, 16, False)
    a.lg(f'ds_read_b64 v[38:39], v10 offset:{S0 + S_ST3}', 'e2')
    w4more(cfg.w4b)
    if cfg.fsearly: publish_col('FS', 1024, 'sst')
    spin('E3', 4)
    st.put('A', 'e3')
    EA, EB = 48, 240
    for q in range(4):
        a.lg(f'ds_read_b128 {vr(EA + 4*q, 4)}, v8 offset:{1024*q}', ('e1', q)); a.lg(f'ds_read_b128 {vr(EB + 4*q, 4)}, v11 offset:{1024*q}', ('e1', q))
    signal('E3')
    for q in range(4):
        a.wlg(('e1', q)); padd(EA + 4*q, EA + 4*q, EB + 4*q, 4, False)
    for k, x in enumerate(gelu16(EA, EC, 32, 38, [(sHS, 0, 'h2s'), (sHS + 1, 1024, 'h2s')], zero=sZ)):
        if isinstance(x, tuple): a.vm(x[1], x[2])
        else: a(x)
        if k % cfg.w4ev == cfg.w4ev - 1 and k < cfg.w4stop: w4more()
    st.put('A', 'gs')
    a('s_setprio 0')
    if not cfg.fsearly: publish_col('FS', 1024, 'sst')
    w4more(cfg.la4)
    a('v_lshlrev_b32 v9, 7, v0')
    flag(sFO, 256, 'h2s', False, (f's{sTM}', f'buffer_load_dword v9, v9, {WS}, s{sHS} offen sc1'))
    st.put('A', 'hs_flag')
    w4more(22)
    st.put('A', 'w4_issued')
    spin('E3', 8)
    pollc(sFP, 256, 16, vCP, 6)
    st.put('A', 'h2a_seen')
    a(f's_setprio {cfg.g4prio}')
    def h2issue(f):
        th, ks = divmod(f, 22)
        if ks % 4 == 0: a(f's_add_u32 s{sT+1}, s{sH2}, {88*1024*th + 1024*ks}')
        a.vm(f'buffer_load_dwordx4 {vr(RING + 4*(f % 8), 4)}, v{vL16}, {WS}, s{sT+1} offen offset:{1024*(ks % 4)} sc1', ('h2', f))
    for f in range(8): h2issue(f)
    for f in range(44):
        th, ks = divmod(f, 22)
        if f == 14:
            LOK = a.label('HB')
            a.wvm('pb')
            a('s_mov_b64 exec, 0xff'); a(f'v_cmp_ne_u32 vcc, s{sEP}, v6'); a('s_mov_b64 exec, -1')
            a(f's_cmp_eq_u32 s{sMODE}, 1'); a('s_cselect_b64 vcc, vcc, -1')
            a(f's_cbranch_vccz {LOK}')
            saved = list(a.vmq)
            pollc(sFP, 512, 8, vCP, 6)
            a.vmq = saved
            a(f'{LOK}:')
            st.put('A', 'h2b_seen')
        a.wvm(('h2', f))
        if f == 22: a.wlg(('d', 0))
        M32(ACC4, W4F + 8*ks, RING + 4*(f % 8), None if ks == 0 else ACC4)
        if f == 22: a.wlg(('d', 1))
        M32(ACC4 + 16, W4F + 8*ks + 4, RING + 4*(f % 8), None if ks == 0 else ACC4 + 16)
        if f + 8 < 44: h2issue(f + 8)
        if f == cfg.pbf:
            a('s_mov_b64 exec, 0xff'); a.vm(f'buffer_load_dword v6, v{vCP}, {WS}, s{sFP} offen offset:512 sc1', 'pb'); a('s_mov_b64 exec, -1')
        if ks == 21:
            for q in range(8): a.lg(f'ds_write_b128 v{vDW}, {vr(ACC4 + 4*q, 4)} offset:{8192*th + 1024*q}', ('d', q >> 2))
            signal('D4a' if th == 0 else 'D4b')
            st.put('A', f'g4_{th}')
    st.flush('A')
    a('s_endpgm')

class BBar:
    n = 0
def bbar(sleep=0):
    BBar.n += 1
    signal('B'); spin('B', 4 * BBar.n, sleep=sleep)

def role_B():
    vKE, vKT, vFW, vFT, vXV, vF4, vPA, vXT, vMS, vUS, tZP, vKX, vKY = range(28, 41)
    a('L_B:')
    a.reset()
    vLs, vCU, vCT, CACC, UF, W3F = 5, 6, 8, 28, 224, 64
    TR = lambda i: 12 + 4*i if i < 4 else 192 + 4*i
    vCP, vUD, vCW, vCR = 60, 62, 63, 7
    sXC, sFD, sXR, sW3, sUS, sUL, sF4, sSS, sFO, sZ, sH2, sM0U, sJP = 36, 37, 40, 41, 42, 43, 44, 45, 46, 47, 48, 72, 73
    sCH, sPT, sKF = 75, 76, 60
    a(f's_lshr_b32 s{sCH}, s{sW}, 1'); a(f's_and_b32 s{sPT}, s{sW}, 1')
    L = Lane(12)
    SL = 224
    a('v_and_b32 v8, 1, v0'); a('v_lshlrev_b32 v8, 4, v8'); a('v_mov_b32 v9, 0x3f80'); a('v_lshlrev_b32 v8, v8, v9')
    for jh in range(2):
        for d in range(4):
            lo = (3 << (2*d)) << (16*jh)
            a(f's_mov_b32 vcc_lo, {hex(lo)}'); a(f's_mov_b32 vcc_hi, {hex(lo << 8)}')
            a(f'v_cndmask_b32 v{SL + 4*jh + d}, 0, v8, vcc')
    YV = 64
    srd(SWS, sWSP, 268435456); srd(SOUT, 58, 524288); a('s_mov_b64 s[0:1], s[64:65]')
    consts()
    a(f's_lshr_b32 s{sT}, s{sC}, 3'); a(f's_and_b32 s{sT+1}, s{sC}, 7'); S(sCFO, [(sT, 128), (sT + 1, 4), (sCPB, 1)])
    a(f's_and_b32 s{sJP}, s{sJ}, 1')
    a(f's_cmp_lt_i32 s{sDEL}, 0'); a(f's_cselect_b32 s{sXR}, 64, -2'); a(f's_add_u32 s{sXR}, s{sXR}, s{sDEL}')
    S(sW3, [(sJ, FMT), (sW, 49152)], WS_W3)
    S(sFD, [(sJ, FMT), (sC, 1024), (sW, 3*49152)], WS_W3 + 16384)
    a(f's_lshr_b32 s{sT}, s{sC}, 4'); a(f's_and_b32 s{sT+1}, s{sC}, 15'); S(sT, [(sT, 49152), (sT + 1, 1024), (sJ, FMT)], WS_W3)
    a(f's_add_u32 s{sFD+1}, s{sFD}, 49152'); a(f's_add_u32 s{sFD+2}, s{sFD}, {2*49152}'); a(f's_add_u32 s{sT+1}, s{sT}, {2*49152}')
    a(f's_cmp_eq_u32 s{sW}, 1'); a(f's_cselect_b32 s{sFD+1}, s{sT}, s{sFD+1}'); a(f's_cselect_b32 s{sFD+2}, s{sT+1}, s{sFD+2}')
    S(sT, [(sW, 1024), (sJ, FMT), (sC, 6144)], WS_W4 - 2048)
    a(f's_cmp_ge_u32 s{sW}, 2'); a(f's_cselect_b32 s{sFD}, s{sT}, s{sFD}')
    a(f's_add_u32 s{sT}, s{sT}, 2048'); a(f's_add_u32 s{sT+1}, s{sT}, 2048')
    a(f's_cmp_ge_u32 s{sW}, 2'); a(f's_cselect_b32 s{sFD+1}, s{sT}, s{sFD+1}'); a(f's_cselect_b32 s{sFD+2}, s{sT+1}, s{sFD+2}')
    S(sUS, [(sJ, 32*UPS), (sC, UPS)], WS_UT)
    a(f's_lshr_b32 s{sT}, s{sC}, 3'); a(f's_and_b32 s{sT+1}, s{sC}, 7'); S(sUL, [(sT, 2048), (sT + 1, 128), (sJ, 32*UPS)], WS_UT)
    a(f's_and_b32 s{sT+1}, s{sW}, 1'); a(f's_lshr_b32 s{sT}, s{sW}, 1')
    S(sM0U, [(sT, USZ), (sT + 1, 2048)], U0 + 512)
    S(sFO, [(sJ, 16), (sW, 4), (sFL, 1)])
    S(sH2 + 4, [(sC, H2C), (sJ, 11*1024)], WS_H2)
    S(sH2, [(sW, 2048), (sH2 + 4, 1)]); a(f's_add_u32 s{sH2+1}, s{sH2}, {88*1024}')
    a('s_waitcnt vmcnt(5)')
    st.put('B', 'par')
    kpre(48, 4, {8: YV + 2, 1: 44, 256: 46}, 192)
    XV = 128
    xi = {h: XV + 2 * i for i, h in enumerate(his)}
    a(f'v_mov_b32 v{YV}, 1.0'); a(f'v_mov_b32 v{YV+1}, 0')
    for x in swp(YV+2, 16) + swp(44, 18) + swp(46, 20) + swp(50, 22): a(x)
    ych = cmul(YV+4, YV+2, YV+2) + cmul(YV+6, YV+4, YV+2) + cmul(YV+8, YV+6, YV+2) + swp(YV+8, 24)
    for g in range(5, 32, 4):
        blk = []
        for j in range(g, min(g + 4, 32)): blk += cmul(YV + 2*j, YV + 2*(j-4), YV + 8)
        ych += blk[0::2] + blk[1::2]
    xch = cmul(xi[0], 52, 50)
    for h in range(1, 9): xch += cmul(xi[h], xi[h-1], 44)
    for lvl in ([256, 258, 260, 262, 264], [512, 516, 520], [768, 772, 776], [1024, 1032], [1280, 1288], [1536, 1544], [1792, 1800]):
        blk = []
        for h in lvl: blk += cmul(xi[h], xi[h-256], 46)
        xch += blk[0::2] + blk[1::2]
    for x in interleave([ych, xch]): a(x)
    st.put('B', 'k1')
    src = {'Y': [YV + 2*j for j in range(32)], 'X': [None] * 32}
    for h in his:
        for row in xrows[h]: src['X'][row] = xi[h]
    PB = [192, 208]
    TL = [12, 28]
    groups = [('Y', 0), ('Y', 1), ('X', 0), ('X', 1)]
    FRK = {'Y': 64, 'X': 128}
    def pack(gi):
        op, part = groups[gi]; P = PB[gi & 1]; ng = '-' if (op == 'X' and part) else ''
        o = [f'v_cvt_pk_bf16_f32 v{P+i}, {ng}v{src[op][2*i]+part}, {ng}v{src[op][2*i+1]+part}' for i in range(16)]
        o += [f'v_permlane32_swap_b32 v{P+8*jh+d}, v{P+8*jh+4+d}' for jh in range(2) for d in range(4)]
        return o
    def tr(gi, T):
        P = PB[gi & 1]
        return [(T + 16*nh, P + 8*jh + 4*nh, SL + 4*jh, jh) for nh in range(2) for jh in range(2)]
    def repack(gi, T):
        op, part = groups[gi]
        return [f'v_cvt_pk_bf16_f32 v{FRK[op] + 16*part + i}, v{T+2*i}, v{T+2*i+1}' for i in range(16)]
    for x in pack(0) + pack(1): a(x)
    TA, TB = 96, 16
    def mm(lst, fill):
        per = -(-len(fill) // 4) if fill else 0
        for (d, x, y, jh) in lst:
            M32(d, x, y, d if jh else None)
            for _ in range(per):
                if fill: a(fill.pop(0))
    mm(tr(0, TA), [])
    mm(tr(1, TB), pack(2))
    f = repack(0, TA)
    for x in f: a(x)
    mm(tr(2, TA), pack(3) + repack(1, TB))
    mm(tr(3, TB), [])
    for x in repack(2, TA) + repack(3, TB): a(x)
    FY, FX, KD, KP, ET = 64, 128, 192, 96, 208
    st.put('B', 'k2')
    mark = len(a.L)
    vEX = vKX
    S(sT, [(sW, 4096)], S0 + S_KF); a(f'v_add_u32 v{vEX}, s{sT}, v{vL16}'); a(f'v_xor_b32 v{vEX+1}, 0x1000, v{vEX}')
    S(sT, [(sDEL, 8)], S0 + S_ST + 16); a(f'v_lshl_add_u32 v43, v0, 3, s{sT}')
    S(sKF, [(sCH, 2*KCOPY)], S0 + S_KF)
    a(f's_add_u32 s{sT}, s{sKF}, {4080 - 3072}'); a(f'v_sub_u32 v{vKE}, s{sT}, v{vL16}')
    a(f's_add_u32 s{sT}, s{sKF}, {KCOPY}'); L(vKT, [(3, 1, KCOPY)]); a(f'v_sub_u32 v{vKT}, s{sT}, v{vKT}'); L(vKT, [(0, 3, 4)], f'v{vKT}')
    S(sT, [(sW, 4096)], S0 + S_KF); L(vFT, [(5, 1, 256), (2, 2, 64), (4, 1, 32), (0, 2, 8)], f's{sT}')
    L(vPA, [(5, 1, 1024), (0, 5, 4)], S0 + S_STP)
    L(46, [(4, 1, 64)]); a('v_xor_b32 v41, v60, v46')
    a(f's_lshl_b32 s{sT}, s{sW}, 5'); L(vXT, [(4, 2, 1024), (2, 2, 128), (0, 2, 8)], f's{sT}')
    L(vMS, [(4, 2, 64)])
    a(f's_lshl_b32 s{sT}, s{sW}, 11'); L(vUS, [(0, 4, 64), (4, 2, 16)], f's{sT}')
    side = a.L[mark:]; del a.L[mark:]
    per = -(-len(side) // 8)
    for ks in range(8):
        M32(KD, FX + 4*ks, FY + 4*ks, None if ks == 0 else KD)
        for _ in range(per):
            if side: a(side.pop(0))
    a(f's_add_u32 s{sEP}, s{sEP}, 1'); a(f's_mov_b32 s{sEP+1}, s{sEP}')
    a(f's_getreg_b32 s{sXC}, hwreg(HW_REG_XCC_ID, 0, 4)')
    if cfg.force_slow: a(f's_mov_b32 s{sXC}, s{sJ}')
    a(f's_lshl_b32 s{sXC}, s{sXC}, 28'); a(f's_add_u32 s{sXC}, s{sXC}, s{sEP}')
    st.put('B', 'kmfma')
    a.vm0()
    LG, LGE = a.label('FM'), a.label('FM')
    a(f's_cmp_ge_u32 s{sW}, 2'); a(f's_cbranch_scc1 {LG}')
    for m in range(3): a(f'ds_write_b128 v{vEX}, {vr(240 + 4*m, 4)} offset:{1024*m}')
    for m in range(3):
        for p in range(2): a(f'ds_read_b64_tr_b16 v[{112+4*m+2*p}:{113+4*m+2*p}], v{vFT} offset:{1024*m + 512*p}')
    a('s_waitcnt lgkmcnt(0)')
    for m in range(3): a(f'buffer_store_dwordx4 {vr(112 + 4*m, 4)}, v{vL16}, {WS}, s{sFD+m} offen sc1')
    for m in range(3): a(f's_mov_b32 s{sFD+m}, 0x80000000')
    a(f's_branch {LGE}')
    a(f'{LG}:')
    a(f's_cmp_lg_u32 s{sW}, 3'); a(f's_cbranch_scc1 {LGE}')
    S(sT, [(sJ, 4), (sFL, 1)])
    a(f'v_mov_b32 v{vT}, s{sXC}')
    a('s_mov_b64 exec, 1'); a(f'buffer_store_dword v{vT}, off, {WS}, s{sT} offset:768 sc1'); a('s_mov_b64 exec, -1')
    for k in range(4): a(f'v_mov_b32 v{12+k}, 0')
    for d in range(8):
        a(f'v_lshlrev_b32 v16, 16, v{232+d}'); a(f'v_and_b32 v17, 0xffff0000, v{232+d}')
        a('v_add_f32 v12, v12, v16'); a('v_fmac_f32 v13, v16, v16'); a('v_add_f32 v14, v14, v17'); a('v_fmac_f32 v15, v17, v17')
    a('v_add_f32 v12, v12, v14'); a('v_add_f32 v13, v13, v15')
    a('v_permlane16_swap_b32 v12, v13'); a('v_add_f32 v12, v12, v13')
    for sh in (8, 4, 2, 1): a(f'v_add_f32_dpp v12, v12, v12 row_ror:{sh} row_mask:0xf bank_mask:0xf')
    a('v_mov_b32 v13, v12'); a('v_permlane16_swap_b32 v12, v13')
    finstat(12)
    S(sT, [(sXR, 8)], S0 + S_ST + 16); a('v_lshrrev_b32 v14, 5, v0'); a(f'v_lshl_add_u32 v14, v14, 3, s{sT}')
    a('s_mov_b32 exec_lo, 1'); a('s_mov_b32 exec_hi, 1'); a('ds_write_b64 v14, v[12:13]'); a('s_mov_b64 exec, -1')
    a(f'{LGE}:')
    st.put('B', 'fmt_st')
    a(f's_setprio {cfg.uprio}')
    a.vmq = []
    signal('S')
    LFF = a.label('FF')
    a(f's_cmp_ge_u32 s{sW}, 2'); a(f's_cbranch_scc1 {LFF}')
    publish_col('FF', 0, None, 1)
    a(f'{LFF}:')
    spin('S', 8)
    st.put('B', 'S_seen')
    sW2 = 77
    spin('WC0', 4)
    S(sW2, [(sW, 131072), (sJ, 128)]); S(sT + 1, [(sW, 16384)], X0); a(f's_mov_b32 m0, s{sT+1}')
    def w2i(lo, hi):
        for i in range(lo, hi):
            if i: a('s_addk_i32 m0, 1024'); a(f's_addk_i32 s{sW2}, 8192')
            a.vm(f'buffer_load_dwordx4 v41, s[{SOUT}:{SOUT+3}], s{sW2} offen lds', 'w2')
    w2i(0, cfg.w2n)
    XT, MSR, UT, UP = 128, 136, 168, 176
    for w2 in range(4): a.lg(f'ds_read2_b32 v[{12+2*w2}:{13+2*w2}], v{vPA} offset0:{64*w2} offset1:{64*w2 + 32}', 'sp')
    for o in range(2):
        for p in range(2): a.lg(f'ds_read_b64_tr_b16 v[{XT+4*o+2*p}:{XT+1+4*o+2*p}], v{vXT} offset:{S0 + S_XT + 4096*o + 512*p}', 'xr')
    for m in range(3):
        for p in range(2): a.lg(f'ds_read_b64_tr_b16 v[{112+4*m+2*p}:{113+4*m+2*p}], v{vFT} offset:{1024*m + 512*p}', 'xr')
    a.wlg('sp')
    padd(12, 12, 16, 4, False); padd(12, 12, 14, 2, False)
    finstat(12)
    a.lg('ds_write_b64 v43, v[12:13]')
    for o in range(2):
        for k in range(4): a.lg(f'ds_read_b128 {vr(MSR + 16*o + 4*k, 4)}, v{vMS} offset:{S0 + S_ST + 16 + 256*o + 16*k}', ('ms', o))
    a.wlg('xr')
    for o in range(2):
        unpack(UT, XT + 4*o, 4)
        a.wlg(('ms', o))
        for i in range(8): a(f'v_sub_f32 v{UT+i}, v{UT+i}, v{MSR+16*o+2*i}')
        for i in range(8): a(f'v_mul_f32 v{UT+i}, v{UT+i}, v{MSR+1+16*o+2*i}')
        for d in range(4): a(f'v_cvt_pk_bf16_f32 v{UP+4*o+d}, v{UT+2*d}, v{UT+1+2*d}')
        a.vm(f'buffer_store_dwordx4 {vr(UP + 4*o, 4)}, v{vUS}, {WS}, s{sUS} offen offset:{1024*o} sc1', 'ust')
    a(f's_setprio {cfg.bprio}')
    st.put('B', 'u_stored')
    LE1, LE2_ = a.label('EX'), a.label('EX')
    a(f's_bitcmp1_b32 s{sW}, 0'); a(f's_cbranch_scc1 {LE1}')
    a(f'ds_write_b128 v{vEX}, {vr(KD + 12, 4)}')
    a(f's_branch {LE2_}')
    a(f'{LE1}:')
    for q in range(3): a(f'ds_write_b128 v{vEX}, {vr(KD + 4*q, 4)} offset:{1024*q}')
    a(f'{LE2_}:')
    signal('KY')
    w2i(cfg.w2n, 16)
    chk_issue('KY', vT)
    L = Lane(12)
    S(sT, [(sPT, 16*UPS), (sCH, 64)]); L(vUD, [(3, 3, UPS), (2, 1, 1024), (0, 2, 16)], f's{sT}')
    S(sT, [(sCH, USZ)], U0); L(tZP, [(0, 5, 16)], f's{sT}')
    a(f's_lshl_b32 s{sT+1}, s{sPT}, 8'); a(f's_sub_u32 s{sT}, s{sT}, s{sT+1}'); a(f's_add_u32 s{sT}, s{sT}, 480'); L(vCU, [(0, 4, 32), (4, 2, 16)], f's{sT}')
    L(vCT, [(0, 1, KCOPY + 4), (1, 3, 4)]); a(f's_sub_u32 s{sT}, s{sKF}, s{sT+1}'); a(f's_add_u32 s{sT}, s{sT}, {4064 - 512 - 64 + KCOPY}')
    a(f'v_sub_u32 v{vCT}, s{sT}, v{vCT}'); L(vCT, [(4, 2, 16)], f'v{vCT}')
    for m in range(1, 4): a(f'v_subrev_u32 v{vCT+m}, {1024*m}, v{vCT}')
    a(f's_lshl_b32 s{sT}, s{sCH}, 4'); a(f'v_and_b32 v{vLs}, s{sT}, v0'); a(f'v_lshl_add_u32 v{vLs}, v{vLs}, 27, v{vL16}')
    S(sT, [(sW, 8192)], CX0); a(f'v_add_u32 v{vCW}, s{sT}, v{vL16}')
    chk_wait('KY', vT, 4)
    for q in range(3): a.lg(f'ds_read_b128 {vr(KP + 4*q, 4)}, v{vEX+1} offset:{1024*q}')
    signal('KQ')
    publish_col('FU', 512, 'ust')
    st.put('B', 'u_flag')
    if cfg.cfpos == 0: spoll(0, 'CF', 3)
    a.wvm('w2'); signal('W2L')
    st.put('B', 'w2l')
    for m in range(3): a.vm(f'buffer_store_dwordx4 {vr(112 + 4*m, 4)}, v{vL16}, {WS}, s{sFD+m} offen sc1', 'f4st')
    if cfg.cfpos == 1: spoll(0, 'CF', 3)
    spin('KQ', 4)
    def expand(sp, vals, tmp):
        for i in range(4): a(f'v_cvt_pk_bf16_f32 v{tmp+i}, v{vals[7-2*i]}, v{vals[6-2*i]}')
        for i in range(4): a(f'v_cvt_pk_bf16_f32 v{tmp+4+i}, v{vals[8-2*i]}, v{vals[7-2*i]}')
        a(f'ds_write_b128 v{vKE}, {vr(tmp, 4)} offset:{1024*(3-sp)}')
        a(f'ds_write_b128 v{vKE}, {vr(tmp+4, 4)} offset:{1024*(3-sp) + KCOPY}')
    LX1, LXE = a.label('EX'), a.label('EX')
    a(f's_bitcmp1_b32 s{sW}, 0'); a(f's_cbranch_scc1 {LX1}')
    a('v_mov_b32 v12, 0')
    padd(KD, KD, KP, 12, False)
    a('s_mov_b64 exec, 1'); a(f'v_add_f32 v{KD}, s67, v{KD}'); a(f'v_cvt_pk_bf16_f32 v12, v{KD}, v12')
    a('s_mov_b64 exec, 0xffff'); a(f'ds_write_b32 v{vKT}, v12 offset:4096'); a('s_mov_b64 exec, -1')
    expand(0, [KD + i for i in range(9)], ET)
    expand(1, [KD + 9 + k for k in (0, 0, 0, 1, 1, 1, 2, 2, 2)], ET + 8)
    a(f's_branch {LXE}')
    a(f'{LX1}:')
    a('s_mov_b32 vcc_lo, 0xaaaaaaaa'); a('s_mov_b32 vcc_hi, vcc_lo')
    padd(KD + 12, KD + 12, KP, 4, False)
    for s_ in range(2):
        lo, hi = KD + 12 + 2*s_, KD + 13 + 2*s_
        a(f'v_cndmask_b32 v12, v{lo}, v{hi}, vcc')
        expand(2 + s_, [lo, lo, lo, lo, 12, hi, hi, hi, hi], ET + 8*s_)
    a(f'{LXE}:')
    st.put('B', 'kexp')
    def ldT(i, nxt):
        t = TR(i); o = (128 if i % 2 == 0 else 0) + (0 if nxt else 16)
        a.lg(f'ds_read2_b32 v[{t}:{t+1}], v{vCT + i//2} offset0:{o} offset1:{o+1}', ('T', i))
        a.lg(f'ds_read2_b32 v[{t+2}:{t+3}], v{vCT + i//2} offset0:{o+2} offset1:{o+3}', ('T', i))
    def ldU(jq): a.lg(f'ds_read_b128 {vr(UF + 4*jq, 4)}, v{vCU} offset:{512*jq}', ('U', jq))
    a(f's_lshl_b32 s{sT}, s{sJP}, 12'); a(f's_add_u32 s{sW3}, s{sW3}, s{sT}')
    if cfg.now3: a(f's_mov_b32 s{sW3}, 0x80000000')
    iss = [0]
    NFR = 36
    G, SEL, CSS, CSF = 8, 12, 16, 20
    def mksel():
        a('s_mov_b32 vcc_lo, 0xaaaa5555'); a('s_mov_b32 vcc_hi, vcc_lo'); a(f'v_mov_b32 v{SEL}, s{sK+4}')
        for i in range(3, -1, -1): a(f'v_cndmask_b32 v{SEL+i}, 0, v{SEL}, vcc')
    def csm(f): M16(CSS if f < 16 else CSF, SEL, W3F + 4*f, None if f in (0, 16) else (CSS if f < 16 else CSF))
    csd = [0]
    def csupto(n):
        while csd[0] < n:
            a.wvm(('w3', csd[0])); csm(csd[0]); csd[0] += 1
    def w3more(n=1, thr=False):
        for _ in range(n):
            f = iss[0]; iss[0] += 1
            if thr and f >= cfg.la3: csupto(f - cfg.la3 + 1)
            if f and f % 4 == 0:
                a(f's_xor_b32 s{sW3}, s{sW3}, 4096')
                if f % 8 == 0: a(f's_addk_i32 s{sW3}, 8192')
            a.vm(f'buffer_load_dwordx4 {vr(W3F + 4*f, 4)}, v{vLs if f < 16 else vL16}, {WS}, s{sW3} offen offset:{1024*(f % 4)} sc1', ('w3', f))
    signal('KE')
    a(f'v_mov_b32 v24, v{tZP}')
    S(sT, [(sW, 256)], S0 + S_CS3); a(f'v_lshl_add_u32 v7, v0, 2, s{sT}')
    for i in range(32): a(f'v_mov_b32 v{CACC+i}, 0')
    a(f's_mov_b32 m0, s{sM0U}')
    mksel()
    spin('CF', 1)
    st.put('B', 'fmt_seen')
    w3more(cfg.la3)
    publish_col('F4', 1536, 'f4st')
    w3more(cfg.w3a - cfg.la3, True)
    spoll(512, 'CU', 1)
    w3more(cfg.w3b, True)
    spin('W', 4)
    a.lg(f'ds_write_b128 v24, {vr(CACC, 4)}')
    st.put('B', 'u_poll')
    spin('CU', 1)
    st.put('B', 'u_seen')
    a.vm(f'buffer_load_dwordx4 v{vUD}, {WS}, s{sUL} offen sc1 lds', 'u')
    a('s_addk_i32 m0, 1024'); a(f's_add_u32 s{sUL}, s{sUL}, {8*UPS}')
    a.vm(f'buffer_load_dwordx4 v{vUD}, {WS}, s{sUL} offen sc1 lds', 'u')
    assert iss[0] >= 17
    spin('KE', 4)
    for q in range(4): ldT(7 - q, False)
    csupto(iss[0])
    a('s_mov_b64 exec, 0xffff'); a.lg(f'ds_write2_b32 v7, v{CSS}, v{CSS+1} offset0:0 offset1:16'); a('s_mov_b64 exec, -1')
    a(f'v_mov_b32 v60, v{CSF}'); a(f'v_mov_b32 v61, v{CSF+1}')
    for q in range(4, 8): ldT(7 - q, False)
    a.wvm('u'); bbar()
    st.put('B', 'conv_go')
    a(f's_setprio {cfg.cprio}')
    for q in range(8): ldU(q)
    a(f'v_subrev_u32 v{vCU}, 64, v{vCU}')
    a('s_waitcnt lgkmcnt(4)')
    for it in range(4):
        w3more(min(cfg.w3d, NFR - iss[0]))
        if it == 2:
            a('v_lshrrev_b32 v62, 3, v0'); a('v_mul_u32_u24 v62, 96, v62'); a('v_lshl_add_u32 v62, v0, 2, v62')
            cp_issue(1536, 5, 62, 'c4')
        if not cfg.noconv or it == 0: a(f's_call_b64 s[{sRET}:{sRET+1}], L_conv')
    st.put('B', 'conv_done')
    nconv = iss[0]
    a('s_nop 1')
    for q in range(8): a.lg(f'ds_write_b128 v{vCW}, {vr(CACC + 4*q, 4)} offset:{1024*q}')
    cp_check(1536, 5, 62, 'c4')
    signal('W3I')
    a.lg(f'ds_read_b32 v5, v{vS} offset:{CN["MODE"]}')
    vGK, vGO, vGE, vGS, vGF, vGC = 8, 9, 10, 11, 6, 7
    S(sT, [(sPT, 32768 + 4096)], W0); a(f'v_add_u32 v{vGK}, s{sT}, v{vL16}'); a(f'v_xor_b32 v{vGO}, 0x1000, v{vGK}')
    S(sT, [(sW, 8192)], E30); a(f'v_add_u32 v{vGE}, s{sT}, v{vL16}')
    a(f'v_and_b32 v{vGS}, 31, v0'); a(f'v_lshlrev_b32 v{vGS}, 3, v{vGS}')
    a(f'v_add_u32 v{vGF}, {W0}, v{vL16}')
    a.lg0()
    w3more(cfg.w3e)
    a(f'v_readfirstlane_b32 s{sMODE}, v5')
    mksel()
    a(f'v_lshrrev_b32 v5, 5, v0'); S(sT, [(sW, 256)], S0 + S_CS3 + 128); a(f'v_lshl_add_u32 v5, v5, 4, s{sT}')
    a(f'v_mov_b32 v{CSF}, v60'); a(f'v_mov_b32 v{CSF+1}, v61')
    csupto(nconv)
    st.put('B', 'b_rdy')
    AK, AO, FR = 28, 44, [16, 24, 60]
    spin('X0', 4)
    a('s_setprio 2')
    st.put('B', 'g3_start')
    so = [8*a_ + 4*(c >> 1) + 2*(c & 1) + r for c in range(4) for a_ in range(2) for r in range(2)]
    AF, CSV, GT, MS = 64, 80, 96, 102
    items = [('S', f, o) for f in so for o in range(2)] + [('F', n, th) for th in range(2) for n in range(32)]
    pool = list(FR); slot = {}; nr = [0]
    def rd(cur):
        while pool and nr[0] < 96 and nr[0] <= cur + cfg.lag:
            n = nr[0]
            if n == 8: chk_wait('XA0', vT, 4); chk_issue('XA', vT)
            if n == 16: chk_wait('XA', vT, 4)
            k_, f, o = items[n]; slot[n] = pool.pop(0); nr[0] += 1
            if k_ == 'S': a.lg(f'ds_read_b128 {vr(slot[n], 4)}, v{vGO if o else vGK} offset:{8192*(f >> 2) + 1024*(f & 3)}', ('s', n))
            else: a.lg(f'ds_read_b128 {vr(slot[n], 4)}, v{vGF} offset:{8192*(f >> 2) + 4096*o + 1024*(f & 3)}', ('s', n))
    def emit(x):
        if isinstance(x, tuple):
            if x[0] == 'vm': a.vm(x[1], x[2])
            elif x[0] == 'lg': a.lg(x[1], x[2])
            elif x[0] == 'wlg': a.wlg(x[1])
            else: x[1]()
        else: a(x)
    cost = lambda x: 1 if isinstance(x, tuple) or x.startswith('s_') else (2 if x.startswith(TRANS) else 1)
    dump = [f'ds_write_b128 v{vGE}, {vr(AK + 4*q, 4)} offset:{1024*q}' for q in range(8)]
    pend = gelu16(AF, CSV, GT, MS, [(sH2, 0, 'h2a'), (sH2, 1024, 'h2a')]); per = sum(cost(x) for x in pend) / cfg.f1span; credit = 0
    rd(0)
    for n in range(96):
        k_, f, o = items[n]
        if n == 1: chk_issue('XA0', vT)
        if n == 56: chk_issue('ST', vT)
        if n == 62: chk_wait('ST', vT, 4)
        if k_ == 'F' and o == 0: a.wvm(('w3', 16 + f))
        a.wlg(('s', min(n + 1, nr[0] - 1) if (n >= 8 and n % 2 == 0) else n))
        if k_ == 'S':
            acc_ = AO if o else AK
            M32(acc_, W3F + 4*f, slot[n], None if n < 2 else acc_)
            if slot[n] < 64 or slot[n] >= 104 or n < 22: pool.append(slot[n])
            if o and (f >= 10 or n < 12): pool.append(W3F + 4*f)
            if n == 22: pool[:] = [p_ for p_ in pool if p_ < 64 or p_ >= 104]
            if n % 3 == 2 and iss[0] < 48: w3more()
        else:
            acc_ = AO if o else AF
            M32(acc_, W3F + 64 + 4*f, slot[n], None if f == 0 else acc_)
            pool.append(slot[n])
            if o == 0 and 16 + f >= nconv: csm(16 + f)
            if o == 0 and f >= 1 and dump:
                for _ in range(cfg.dper): a.lg(dump.pop(0))
                if not dump: signal('E3')
            if o == 1 and f == 1:
                a('s_mov_b64 exec, 0xffff'); a.lg(f'ds_write2_b32 v{vGC}, v{CSF}, v{CSF+1} offset0:32 offset1:48'); a('s_mov_b64 exec, -1')
                for q in range(4): a.lg(f'ds_read_b128 {vr(CSV + 4*q, 4)}, v5 offset:{32*q}', 'ex3')
                a.lg(f'ds_read_b64 v[{MS}:{MS+1}], v{vGS} offset:{S0 + S_ST3}', 'ex3')
            if o == 1 and f == 4: a.wlg('ex3')
            if o == 1 and f >= 4:
                credit += per
                while pend and credit >= cost(pend[0]) - 0.5:
                    credit -= cost(pend[0]); emit(pend.pop(0))
        rd(n + 1)
        if n % 32 == 31:
            if n == 95:
                while pend: emit(pend.pop(0))
            st.put('B', f'p{n // 32}')
    assert iss[0] == 48
    for n in range(31, 96): assert slot[n] < 64 or slot[n] >= 104, (n, slot[n])
    a.lg(f'ds_read_b64 v[{MS}:{MS+1}], v{vGS} offset:{S0 + S_ST3 + 256}'); a.lg0()
    a('v_lshlrev_b32 v27, 7, v0')
    tail = gelu16(AO, CSV, GT, MS, [(sH2 + 1, 0, 'h2b'), (sH2 + 1, 1024, 'h2b')], pk=cfg.tailpk)
    k = int(len(tail) * cfg.aflag)
    for x in tail[:k]: emit(x)
    flag(sFO, 384, 'h2a', False, (0xffff, f'buffer_load_dword v25, v27, {WS}, s{sH2} offen sc1'))
    st.put('B', 'h2a_flag')
    for x in tail[k:]: emit(x)
    st.put('B', 'h2_stored')
    X1R, XR, SR_, Z = 128, 144, 160, 176
    sTB, sNT, sO = sT, sT + 1, sT + 2
    a(f's_and_b32 s{sTB}, s{sW}, 1'); a(f's_lshr_b32 s{sNT}, s{sW}, 1')
    a('v_and_b32 v20, 15, v0'); a('v_lshrrev_b32 v21, 4, v0')
    a('v_lshrrev_b32 v22, 5, v0'); a('v_lshlrev_b32 v22, 10, v22'); a('v_lshl_add_u32 v22, v20, 4, v22')
    a('v_and_b32 v23, 1, v21'); a('v_lshl_add_u32 v22, v23, 3, v22')
    a(f's_andn2_b32 s{sT+8}, s{sJ}, 1')
    S(sT + 8, [(sT + 8, 8192), (sNT, 2048), (sTB, 256)], W0); a(f'v_add_u32 v22, s{sT+8}, v22')
    for th in range(2):
        for h in range(2): a.lg(f'ds_read_b64 v[{64+4*th+2*h}:{65+4*th+2*h}], v22 offset:{4096*th + 512*h}', 'pr')
    a('v_lshlrev_b32 v23, 7, v20'); a('v_lshl_add_u32 v23, v21, 4, v23')
    S(sT + 8, [(sTB, 2048), (sNT, 64)]); a(f'v_add_u32 v23, s{sT+8}, v23')
    for th in range(2): a.lg(f'ds_read_b128 {vr(72 + 4*th, 4)}, v23 offset:{S0 + S_XT + 4096*th}', 'pr')
    a('v_bfe_u32 v24, v0, 2, 2'); a('v_lshl_add_u32 v24, v21, 3, v24'); a('v_lshlrev_b32 v24, 7, v24')
    a('v_and_b32 v16, 3, v0'); a('v_lshl_add_u32 v24, v16, 3, v24')
    S(sT + 8, [(sNT, 4096), (sTB, 32)]); a(f'v_add_u32 v24, s{sT+8}, v24')
    a('v_lshlrev_b32 v16, 4, v20'); a('v_lshl_add_u32 v16, v21, 10, v16')
    S(sT + 8, [(sNT, 4096), (sTB, 256)], X0); a(f'v_add_u32 v16, s{sT+8}, v16')
    a('v_lshlrev_b32 v17, 10, v20'); a('v_lshl_add_u32 v17, v21, 4, v17')
    S(sO, [(sC, 65536), (sTB, 16384), (sJ, 128), (sNT, 64)])
    srd(SOUT, 0, 2097152)
    flag(sFO, 512, 'h2b', False, (0xffff, f'buffer_load_dword v26, v27, {WS}, s{sH2+1} offen sc1'))
    a('s_setprio 0')
    st.put('B', 'h2_flag')
    spoll(1024, 'CS')
    a('v_lshrrev_b32 v18, 3, v0'); a(f'v_mul_u32_u24 v18, {SRS - 128}, v18'); a(f'v_add_u32 v18, v18, v{vL16}')
    S(sT + 3, [(sJ, 64*SRS), (sC, 128), (sW, 16*SRS)], WS_ST)
    a(f's_lshl_b32 s{sT+8}, s{sW}, 11'); a(f's_add_u32 m0, s{sT+8}, {S0 + S_KF}')
    spin('CS', 1)
    st.put('B', 's_seen')
    a.vm(f'buffer_load_dwordx4 v18, {WS}, s{sT+3} offen sc1 lds', 'sd')
    a('s_addk_i32 m0, 1024'); a(f's_add_u32 s{sT+3}, s{sT+3}, {8*SRS}')
    a.vm(f'buffer_load_dwordx4 v18, {WS}, s{sT+3} offen sc1 lds', 'sd')
    unpack(X1R, 64, 8); unpack(XR, 72, 8)
    a.vm0(); bbar()
    for th in range(2):
        for p in range(2): a.lg(f'ds_read_b64_tr_b16 v[{80+4*th+2*p}:{81+4*th+2*p}], v24 offset:{S0 + S_KF + 512*p + 64*th}')
    a.lg0()
    unpack(SR_, 80, 8)
    a(f's_mov_b32 s{sK+6}, {hx(-LOG2E)}'); a(f's_mov_b32 s{sK+7}, {hx(-LOG2E)}')
    st.put('B', 'prep')
    a(f's_setprio {cfg.oprio}')
    for th in range(2):
        spin('D4a' if th == 0 else 'D4b', 4)
        for w2 in range(4):
            for h in range(2): a.lg(f'ds_read_b128 {vr(Z + 8*w2 + 4*h, 4)}, v16 offset:{8192*th + 16384*w2 + 512*h}', ('z', w2))
        z = X1R + 8 * th
        pk = th == 1
        for w2 in range(4):
            a.wlg(('z', w2)); padd(z, z, Z + 8*w2, 8, pk)
        t = Z
        if pk:
            for i in range(0, 8, 2): a(f'v_pk_mul_f32 v[{t+i}:{t+i+1}], v[{z+i}:{z+i+1}], s[{sK+6}:{sK+7}]')
            for i in range(8): a(f'v_exp_f32 v{t+i}, v{t+i}')
            for i in range(0, 8, 2): a(f'v_pk_add_f32 v[{t+i}:{t+i+1}], v[{t+i}:{t+i+1}], 1.0 op_sel_hi:[1,0]')
            for i in range(0, 8, 2): a(f'v_pk_mul_f32 v[{z+i}:{z+i+1}], v[{z+i}:{z+i+1}], v[{SR_+8*th+i}:{SR_+8*th+i+1}]')
            for i in range(8): a(f'v_rcp_f32 v{t+i}, v{t+i}')
            for i in range(0, 8, 2): a(f'v_pk_fma_f32 v[{z+i}:{z+i+1}], v[{z+i}:{z+i+1}], v[{t+i}:{t+i+1}], v[{XR+8*th+i}:{XR+8*th+i+1}]')
        else:
            for i in range(8): a(f'v_mul_f32 v{t+i}, s{sK+6}, v{z+i}')
            for i in range(8): a(f'v_exp_f32 v{t+i}, v{t+i}')
            for i in range(8): a(f'v_add_f32 v{t+i}, 1.0, v{t+i}')
            for i in range(8): a(f'v_mul_f32 v{z+i}, v{z+i}, v{SR_+8*th+i}')
            for i in range(8): a(f'v_rcp_f32 v{t+i}, v{t+i}')
            for i in range(8): a(f'v_fma_f32 v{z+i}, v{z+i}, v{t+i}, v{XR+8*th+i}')
        for i in range(4): a(f'v_cvt_pk_bf16_f32 v{88+4*th+i}, v{z+2*i}, v{z+2*i+1}')
        if th == 1: a(f's_add_u32 s{sO}, s{sO}, 0x8000')
        a.vm(f'buffer_store_dwordx4 {vr(88 + 4*th, 4)}, v17, s[{SOUT}:{SOUT+3}], s{sO} offen {cfg.out_fl}')
        st.put('B', f'out{th}')
    LE2 = a.label('EP')
    a(f's_add_u32 s{sT}, s2, s{sW}'); a(f's_cmp_lg_u32 s{sT}, 0'); a(f's_cbranch_scc1 {LE2}')
    a('s_mov_b64 exec, 1'); a(f'v_mov_b32 v{vT}, s{sEP}')
    a(f'buffer_store_dword v{vT}, off, {WS}, 0 sc1')
    a('s_mov_b64 exec, -1')
    a(f'{LE2}:')
    st.flush('B')
    a('s_endpgm')
    a('L_conv:')
    a.reset()
    a('s_waitcnt lgkmcnt(12)')
    for i in range(7, 3, -1):
        for jq in range(0, 8 - i): M16(CACC + 4*(i + jq), TR(i), UF + 4*jq, CACC + 4*(i + jq))
        ldT(i, True)
    a(f's_waitcnt lgkmcnt({len(a.lgq)})')
    for jq in range(8):
        for i in range(3, -1, -1):
            if i + jq <= 7: M16(CACC + 4*(i + jq), TR(i), UF + 4*jq, CACC + 4*(i + jq))
        ldU(jq)
        if jq >= 4: ldT(7 - jq, True)
    a(f'v_subrev_u32 v{vCU}, 64, v{vCU}')
    for m in range(4): a(f'v_subrev_u32 v{vCT+m}, 64, v{vCT+m}')
    a(f's_setpc_b64 s[{sRET}:{sRET+1}]')
    a('L_codeend:')

def build(path):
    prologue(); role_A(); role_B()
    body, npad = a.finalize()
    K = NAME + '_kernel'
    hdr = open('cdna_kernels/' + NAME + '.s.ref').read().split('; Override launch geometry')[0]
    o = hdr + '; @launch grid=(256,1,1) block=(512,1,1) lds=163840\n'
    o += f'.amdgcn_target "amdgcn-amd-amdhsa--gfx950"\n.text\n.globl {K}\n.p2align 8\n.type {K},@function\n{K}:\n'
    o += '\n'.join(('' if l.endswith(':') else '  ') + l for l in body) + '\n'
    o += f""".section .rodata,"a"
.p2align 6
.amdhsa_kernel {K}
  .amdhsa_next_free_vgpr 256
  .amdhsa_next_free_sgpr 102
  .amdhsa_accum_offset 256
  .amdhsa_group_segment_fixed_size 0
  .amdhsa_kernarg_size 136
  .amdhsa_user_sgpr_count 2
  .amdhsa_user_sgpr_kernarg_segment_ptr 1
  .amdhsa_system_sgpr_workgroup_id_x 1
.end_amdhsa_kernel
"""
    open(path, 'w').write(o)
    json.dump(st.names, open(path + '.stamps.json', 'w'))
    print('instrs', len(body), 'pads', npad)

if __name__ == '__main__':
    out = sys.argv[1]
    for kv in sys.argv[2:]:
        k, v = kv.split('=', 1); setattr(cfg, k, eval(v))
    build(out)
```

```python
import sys, math, struct, json
from asmlib import *
NAME = 'recurrent_scan__ssm_conv_s4__mixer_s_mlp__prompt'
def f2u(x): return struct.unpack('<I', struct.pack('<f', x))[0]
def hx(x): return hex(f2u(x))

class Cfg:
    stamps = False
    xev = 30
    laa = 8
    pumps = 2
    pumpb = 12
    la1 = 8
    la2 = 6
    dper = 2
    w4b = 2
    fsearly = True
    w4stop = 1000
    oprio = 0
    g1sync = (1, 3)
    g2sync = (0, 1, 3)
    w2pre = 24
    la3 = 8
    w3a = 12
    w3b = 8
    w3d = 4
    w3f = 6
    la4 = 5
    s_ks = 16
    psleep = 0
    csleep = 2
    touch_nt = 'nt'
    touch = False
    out_fl = ''
    uprio = 3
    bprio = 3
    force_slow = False
    f1span = 24
    lag = 6
    w3e = 4
    w4a = 3
    w4ev = 12
    tailpk = True
    hx = 'sc1'
    ptouch = 'f'
    h2p = False
    aprio = 1
    g4prio = 1
    pbf = 5
    cfpos = 1
    w2n = 8
    cprio = 0
    rt = False
    probe = ''
    ssleep = 0
    w1l2 = False
    w4first = False
    w4s = False
    f4fl = 'nt'
    fpos = 16
    w2first = True
    now3 = False
    now4 = False
    noconv = False
    w2l2 = False
    aflag = 0.5
    gbound = 200000
    lbound = 1000000
cfg = Cfg()

S0, W0, X0 = 0, 32768, 98304
S_KF, S_XT, S_STP, S_CS1, S_ST, S_ST3, S_CS3, S_CNT = 0, 16640, 24832, 26880, 27904, 28480, 28992, 30016
CN = {n: S_CNT + 4 * i for i, n in enumerate(
    ['S', 'SA', 'XA0', 'XA1', 'KW', 'KR', 'WC0', 'WC1', 'WC2', 'WC3', 'G1', 'W2I', 'W2L', 'W', 'HC0', 'HC1', 'HC2', 'HC3', 'X0', 'XA',
     'B', 'STAT', 'FF', 'FU', 'F4', 'FS', 'D4a', 'D4b', 'MODE', 'CS4', 'W3I', 'E3', 'KY', 'CF', 'CU', 'CS', 'ST', 'KQ', 'KE'])}
U0, USZ, KCOPY = X0 + 49152, 4608, 4160
CX0 = X0
E30 = X0 + 32768
KROW, KSZ = 528, 16896
KB0 = W0 + 65536 - 2 * KSZ
FSCR = S0 + 30720
WS_FLAG = 0x10000
WS_CFLAG = 0x8000
WS_XS = 0x40000
WS_H, WS_X1, WS_H2, WS_UT, WS_ST, WS_W3, WS_W4, WS_STAMP = 0x100000, 0x300000, 0x500000, 0xA80000, 0xCC0000, 0xF00000, 0x1080000, 0x1400000
UPS, SRS = 8320, 4224
H2C, FMT = 2 * 88 * 1024, 196608
sW, sJ, sC, sIDX, sDEL = 3, 4, 5, 6, 7
SX, SW1, SW2, SW3, SWS, SOUT = 8, 12, 16, 20, 28, 32
sMODE, sFL, sCFO, sCPB = 24, 25, 26, 27
sEP = 68
sT = 70
sK = 80
sRET, sWSP, sTAB, sST = 88, 90, 92, 94
EPS = 1e-5
LOG2E = math.log2(math.e)
GA = 2 * math.sqrt(2 / math.pi) * LOG2E
GB = GA * 0.044715
ALPHA = GB ** (1 / 3)
GK = GA / ALPHA
WS = f's[{SWS}:{SWS+3}]'

a = Asm()
vL, vS, vOne, vT = 0, 1, 2, 3

class Stamps:
    def __init__(self): self.names = {'A': [], 'B': []}
    def put(self, role, name):
        if cfg.probe == name: a('s_memrealtime s[94:95]'); self.prole = role
        if not cfg.stamps: return
        i = len(self.names[role]); self.names[role].append(name)
        if i > 0: a(f'v_writelane_b32 v{vOne}, s{sST + 2*((i-1) & 1)}, {i + 1}')
        r = sST + 2 * (i & 1)
        a(f's_mem{"real" if cfg.rt else ""}time s[{r}:{r+1}]')
    def flush(self, role):
        if cfg.probe and getattr(self, 'prole', None) == role:
            a('s_waitcnt lgkmcnt(0)')
            a('s_sub_u32 s94, s94, s100'); a('s_mul_i32 s94, s94, 4'); a('s_add_u32 s94, s94, 2500')
            a('L_diag:')
            a('s_memrealtime s[8:9]'); a('s_waitcnt lgkmcnt(0)')
            a('s_sub_u32 s8, s8, s100'); a('s_cmp_lt_u32 s8, s94'); a('s_cbranch_scc1 L_diag')
            self.prole = None
        if not cfg.stamps: return
        a('s_memrealtime s[8:9]'); a('s_memtime s[10:11]')
        a('s_waitcnt lgkmcnt(0)')
        a(f'v_writelane_b32 v{vOne}, s8, 62'); a(f'v_writelane_b32 v{vOne}, s10, 61')
        i = len(self.names[role])
        a(f'v_writelane_b32 v{vOne}, s{sST + 2*((i-1) & 1)}, {i + 1}')
        a(f'v_writelane_b32 v{vOne}, s98, 1')
        a(f'v_writelane_b32 v{vOne}, s100, 63')
        a('v_lshlrev_b32 v5, 2, v0')
        a(f's_lshl_b32 s{sT}, s2, 11'); a(f's_lshl_b32 s{sT+1}, s{sW}, 8'); a(f's_add_u32 s{sT}, s{sT}, s{sT+1}')
        a(f's_add_u32 s{sT}, s{sT}, {WS_STAMP + (1024 if role == "B" else 0)}')
        a(f'buffer_store_dword v{vOne}, v5, {WS}, s{sT} offen sc1')
st = Stamps()

def S(dst, terms, const=0):
    first = True
    for r, m in terms:
        t = dst if first else sT + 9
        if m == 1: src = f's{r}'
        else:
            if m & (m - 1) == 0: a(f's_lshl_b32 s{t}, s{r}, {m.bit_length()-1}')
            else: a(f's_mul_i32 s{t}, s{r}, {m}')
            src = f's{t}'
        if first:
            if m == 1:
                if const: a(f's_add_u32 s{dst}, {src}, {const & 0xffffffff}'); const = 0
                elif r != dst: a(f's_mov_b32 s{dst}, {src}')
            first = False
        else: a(f's_add_u32 s{dst}, s{dst}, {src}')
    if const: a(f's_add_u32 s{dst}, s{dst}, {const & 0xffffffff}')

def srd(d, b, n):
    a(f's_mov_b32 s{d}, s{b}'); a(f's_mov_b32 s{d+1}, s{b+1}'); a(f's_mov_b32 s{d+2}, {n}'); a(f's_mov_b32 s{d+3}, 0x20000')

def signal(cn):
    a('s_mov_b64 exec, 1'); a.lg(f'ds_add_u32 v{vS}, v{vOne} offset:{CN[cn]}'); a('s_mov_b64 exec, -1')

def spin(cn, target, sleep=0, base=None):
    L = a.label('SP'); E = a.label('SPE')
    a(f's_mov_b32 s{sT+9}, {cfg.lbound}')
    a(f'{L}:')
    a(f'ds_read_b32 v{vT}, v{vS if base is None else base} offset:{CN[cn]}')
    a('s_waitcnt lgkmcnt(0)')
    a(f'v_readfirstlane_b32 s{sT+8}, v{vT}')
    a(f's_cmp_ge_u32 s{sT+8}, {target}')
    a(f's_cbranch_scc1 {E}')
    if sleep or cfg.ssleep: a(f's_sleep {max(sleep, cfg.ssleep)}')
    a(f's_sub_u32 s{sT+9}, s{sT+9}, 1')
    a(f's_cbranch_scc0 {L}')
    a(f'{E}:')
    a.lgq = []

def chk_issue(cn, v):
    a.lg(f'ds_read_b32 v{v}, v{vS} offset:{CN[cn]}', ('chk', cn))
def chk_wait(cn, v, target):
    LOK = a.label('OK')
    a.wlg(('chk', cn))
    a(f'v_readfirstlane_b32 s{sT+8}, v{v}'); a(f's_cmp_ge_u32 s{sT+8}, {target}'); a(f's_cbranch_scc1 {LOK}')
    saved = list(a.lgq)
    spin(cn, target)
    a.lgq = saved
    a(f'{LOK}:')

def publish_col(cn, off, tag=None, last=3):
    E = a.label('PB')
    if tag is None: a.vm0()
    else: a.wvm(tag)
    a('s_mov_b64 exec, 1')
    a(f'ds_add_rtn_u32 v{vT}, v{vS}, v{vOne} offset:{CN[cn]}')
    a.lg0()
    a(f'v_readfirstlane_b32 s{sT+8}, v{vT}')
    a(f's_cmp_eq_u32 s{sT+8}, {last}')
    a(f's_cbranch_scc0 {E}')
    a(f'v_mov_b32 v{vT}, s{sEP}')
    a(f'buffer_store_dword v{vT}, off, {WS}, s{sCFO} offset:{off} sc1')
    a(f'{E}:')
    a('s_mov_b64 exec, -1')

def flag(sown, off, tag, release, touch=None):
    LS, LE = a.label('FS'), a.label('FE')
    a.wvm(tag)
    a(f'v_mov_b32 v{vT}, s{sEP}')
    a('s_mov_b64 exec, 1')
    a(f's_cmp_lg_u32 s{sMODE}, 1'); a(f's_cbranch_scc1 {LS}')
    a(f'buffer_store_dword v{vT}, off, {WS}, s{sown} offset:{off}')
    a(f's_branch {LE}')
    a(f'{LS}:')
    if release: a('buffer_wbl2 sc1'); a('s_waitcnt vmcnt(0)')
    a(f'buffer_store_dword v{vT}, off, {WS}, s{sown} offset:{off} sc1')
    a(f'{LE}:')
    a.vmq.append('flag')
    if touch and cfg.touch:
        mask, ins = touch
        a(f's_mov_b32 exec_lo, {mask if isinstance(mask, str) else hex(mask)}')
        a.vm(ins, 'touch')
    a('s_mov_b64 exec, -1')

def pollc(sbase, off, nl, vl4, v, sleep=None):
    L = a.label('PL'); E = a.label('PLE'); LF = a.label('PLF')
    sleep = cfg.psleep if sleep is None else sleep
    a(f's_mov_b32 s{sT+9}, {cfg.gbound}')
    a(f's_mov_b64 exec, {hex((1 << nl) - 1)}') if nl < 32 else a('s_mov_b32 exec_hi, 0')
    a(f'{L}:')
    a(f'buffer_load_dword v{v}, v{vl4}, {WS}, s{sbase} offen offset:{off} sc1')
    a('s_waitcnt vmcnt(0)')
    a(f'v_cmp_ne_u32 vcc, s{sEP}, v{v}')
    a(f's_cbranch_vccz {E}')
    if sleep: a(f's_sleep {sleep}')
    a(f's_sub_u32 s{sT+9}, s{sT+9}, 1')
    a(f's_cbranch_scc0 {L}')
    a(f'{E}:')
    a('s_mov_b64 exec, -1')
    a(f's_cmp_eq_u32 s{sMODE}, 1'); a(f's_cbranch_scc1 {LF}')
    a('buffer_inv sc1'); a('s_waitcnt vmcnt(0)')
    a(f'{LF}:')
    a.vmq = []

def cp_issue(off, v, va, tag):
    a('s_mov_b32 exec_hi, 0'); a.vm(f'buffer_load_dword v{v}, v{va}, {WS}, s{sCPB} offen offset:{off} sc1', tag); a('s_mov_b32 exec_hi, -1')
def cp_check(off, v, va, tag):
    L = a.label('CP'); E = a.label('CPE')
    a.wvm(tag)
    a(f's_mov_b32 s{sT+9}, {cfg.gbound}')
    a('s_mov_b32 exec_hi, 0')
    a(f'{L}:')
    a(f'v_cmp_ne_u32 vcc, s{sEP}, v{v}')
    a(f's_cbranch_vccz {E}')
    a(f's_sleep {cfg.csleep}')
    a(f'buffer_load_dword v{v}, v{va}, {WS}, s{sCPB} offen offset:{off} sc1')
    a('s_waitcnt vmcnt(0)')
    a(f's_sub_u32 s{sT+9}, s{sT+9}, 1')
    a(f's_cbranch_scc0 {L}')
    a(f'{E}:')
    a('s_mov_b32 exec_hi, -1')

ZONE = [8, 16, 52, 60]
def spoll(off, cn, wave=0, ZONE=ZONE):
    L = a.label('SC'); E = a.label('SCE'); X = a.label('SCX')
    a(f's_cmp_lg_u32 s{sW}, {wave}'); a(f's_cbranch_scc1 {X}')
    a(f's_add_u32 s92, s{sWSP}, s{sCPB}'); a(f's_addc_u32 s93, s{sWSP+1}, 0')
    a(f's_mov_b32 s{sT+9}, {cfg.gbound}')
    a(f'{L}:')
    for k in range(4): a(f's_load_dwordx8 s[{ZONE[k]}:{ZONE[k]+7}], s[92:93], {off + 128*k} glc')
    a('s_waitcnt lgkmcnt(0)')
    prs = [z + 2*i for z in ZONE for i in range(4)]
    for p in prs: a(f's_xor_b64 s[{p}:{p+1}], s[{p}:{p+1}], s[{sEP}:{sEP+1}]')
    for p in prs[1:]: a(f's_or_b64 s[8:9], s[8:9], s[{p}:{p+1}]')
    a(f's_cbranch_scc0 {E}')
    a(f's_sleep {cfg.csleep}')
    a(f's_sub_u32 s{sT+9}, s{sT+9}, 1')
    a(f's_cbranch_scc0 {L}')
    a(f'{E}:')
    n = len(a.lgq); signal(cn); del a.lgq[n:]
    a(f'{X}:')

def gelu_ops(p, t, dst, pk):
    o = []
    if pk:
        o.append(f'v_pk_fma_f32 v[{t}:{t+1}], v[{p}:{p+1}], v[{p}:{p+1}], s[{sK}:{sK+1}]')
        o.append(f'v_pk_mul_f32 v[{t}:{t+1}], v[{t}:{t+1}], v[{p}:{p+1}]')
    else:
        for i in range(2): o.append(f'v_fma_f32 v{t+i}, -v{p+i}, v{p+i}, -s{sK}')
        for i in range(2): o.append(f'v_mul_f32 v{t+i}, v{t+i}, v{p+i}')
    for i in range(2): o.append(f'v_exp_f32 v{t+i}, {"-" if pk else ""}v{t+i}')
    if pk: o.append(f'v_pk_fma_f32 v[{t}:{t+1}], v[{t}:{t+1}], s[{sK+2}:{sK+3}], s[{sK+2}:{sK+3}]')
    else:
        for i in range(2): o.append(f'v_fma_f32 v{t+i}, v{t+i}, s{sK+2}, s{sK+2}')
    for i in range(2): o.append(f'v_rcp_f32 v{t+i}, v{t+i}')
    if pk: o.append(f'v_pk_mul_f32 v[{t}:{t+1}], v[{t}:{t+1}], v[{p}:{p+1}]')
    else:
        for i in range(2): o.append(f'v_mul_f32 v{t+i}, v{t+i}, v{p+i}')
    o.append(f'v_cvt_pk_bf16_f32 v{dst}, v{t}, v{t+1}')
    return o

def interleave(lists):
    out = []; n = max(len(l) for l in lists)
    for i in range(n):
        for l in lists:
            if i < len(l): out.append(l[i])
    return out

def padd(d, x, y, n, pk=True):
    if pk:
        for i in range(0, n, 2): a(f'v_pk_add_f32 v[{d+i}:{d+i+1}], v[{x+i}:{x+i+1}], v[{y+i}:{y+i+1}]')
    else:
        for i in range(n): a(f'v_add_f32 v{d+i}, v{x+i}, v{y+i}')

def unpack(dst, src, n):
    for d in range(n):
        a(f'v_lshlrev_b32 v{dst+2*d}, 16, v{src+d}'); a(f'v_and_b32 v{dst+2*d+1}, 0xffff0000, v{src+d}')

def finstat(m):
    a(f'v_mul_f32 v{m}, {hx(1/512)}, v{m}'); a(f'v_mul_f32 v{m+1}, {hx(1/512)}, v{m+1}')
    a(f'v_fma_f32 v{m+1}, -v{m}, v{m}, v{m+1}'); a(f'v_max_f32 v{m+1}, 0, v{m+1}'); a(f'v_add_f32 v{m+1}, {hx(EPS)}, v{m+1}')
    a(f'v_rsq_f32 v{m+1}, v{m+1}')

def M32(d, x, y, c): a(f'v_mfma_f32_32x32x16_bf16 {vr(d, 16)}, {vr(x, 4)}, {vr(y, 4)}, {"0" if c is None else vr(c, 16)}')
def M16(d, x, y, c): a(f'v_mfma_f32_16x16x32_bf16 {vr(d, 4)}, {vr(x, 4)}, {vr(y, 4)}, {"0" if c is None else vr(c, 4)}')


class Lane:
    def __init__(self, tmp): self.tmp = tmp; self.cache = {}
    def field(self, off, wd):
        if (off, wd) == (0, 6): return 0
        if (off, wd) not in self.cache:
            r = self.tmp + len(self.cache); self.cache[(off, wd)] = r
            if off == 0: a(f'v_and_b32 v{r}, {(1 << wd) - 1}, v0')
            elif off + wd == 6: a(f'v_lshrrev_b32 v{r}, {off}, v0')
            else: a(f'v_bfe_u32 v{r}, v0, {off}, {wd}')
        return self.cache[(off, wd)]
    def __call__(self, dst, terms, base=None):
        cur = base
        if isinstance(cur, int) and not (0 <= cur <= 64): late = cur; cur = None
        else: late = None
        terms = sorted(terms, key=lambda t: (t[2] & (t[2] - 1)) == 0)
        for off, wd, m in terms:
            f = self.field(off, wd)
            if m & (m - 1) == 0:
                sh = m.bit_length() - 1
                if cur is None: a(f'v_lshlrev_b32 v{dst}, {sh}, v{f}')
                else: a(f'v_lshl_add_u32 v{dst}, v{f}, {sh}, {cur}')
            else:
                assert cur != f'v{dst}'
                a(f'v_mul_u32_u24 v{dst}, {m}, v{f}')
                if cur is not None: a(f'v_add_u32 v{dst}, {cur}, v{dst}')
            cur = f'v{dst}'
        if late is not None: a(f'v_add_u32 v{dst}, {late}, v{dst}')

def gelu16(A_, CSV, GT, MS, stores, zero=None, pk=False):
    o = []
    for hf in range(2):
        for pr in range(2):
            chains = []
            for kk in range(2):
                p = A_ + 8*hf + 4*pr + 2*kk; c = CSV + 8*hf + 4*pr + 2*kk
                if pk:
                    chn = [f'v_pk_fma_f32 v[{p}:{p+1}], v[{c}:{c+1}], v[{MS}:{MS+1}], v[{p}:{p+1}] op_sel_hi:[1,0,1] neg_lo:[0,1,0] neg_hi:[0,1,0]',
                           f'v_pk_mul_f32 v[{p}:{p+1}], v[{MS}:{MS+1}], v[{p}:{p+1}] op_sel:[1,0] op_sel_hi:[1,1]']
                else:
                    chn = [f'v_fma_f32 v{p+i}, -v{c+i}, v{MS}, v{p+i}' for i in range(2)] + [f'v_mul_f32 v{p+i}, v{p+i}, v{MS+1}' for i in range(2)]
                chn += gelu_ops(p, GT + 2*kk, A_ + 8*hf + 2*pr + kk, pk)
                chains.append(chn)
            o += interleave(chains)
        if zero is not None and hf == 0: o += [f'v_and_b32 v{A_+i}, s{zero}, v{A_+i}' for i in range(4)]
        so_, off, tag = stores[hf]
        o.append(('vm', f'buffer_store_dwordx4 {vr(A_ + 8*hf, 4)}, v4, {WS}, s{so_} offen offset:{off} sc1', tag))
    return o

def consts():
    a(f's_mov_b32 s{sK}, {hx(GK)}'); a(f's_mov_b32 s{sK+1}, {hx(GK)}')
    a(f's_mov_b32 s{sK+2}, {hx(ALPHA)}'); a(f's_mov_b32 s{sK+3}, {hx(ALPHA)}')
    a(f's_mov_b32 s{sK+4}, 0x3f803f80')
    S(sFL, [(sC, 1024)], WS_FLAG)
    S(sCPB, [(sJ, 2048)], WS_CFLAG)

SWP = {}
def swp(y, ys):
    SWP[y] = ys
    return [f'v_mov_b32 v{ys}, v{y+1}', f'v_mov_b32 v{ys+1}, v{y}']
def cmul(d, x, y):
    ys = SWP[y]
    return [f'v_pk_mul_f32 v[{d}:{d+1}], v[{x}:{x+1}], v[{y}:{y+1}] op_sel_hi:[0,1]',
            f'v_pk_fma_f32 v[{d}:{d+1}], v[{x}:{x+1}], v[{ys}:{ys+1}], v[{d}:{d+1}] op_sel:[1,0,0] neg_lo:[0,1,0]']

def kpre(P, nmul, E, tmp):
    a('s_waitcnt lgkmcnt(0)')
    a(f's_bitcmp1_b32 s{sW}, 1'); a(f's_cselect_b32 s{sT}, 0, 16')
    a(f's_lshl_b32 s66, s66, s{sT}'); a('s_and_b32 s66, s66, 0xffff0000'); a(f's_lshl_b32 s67, s67, s{sT}'); a('s_and_b32 s67, s67, 0xffff0000')
    a(f'v_mov_b32 v{P+6}, {hx(LOG2E)}'); a(f'v_mul_f32 v{P+6}, s66, v{P+6}'); a(f'v_exp_f32 v{P+6}, v{P+6}')
    for i in range(6 if nmul == 4 else 2): a(f'v_lshlrev_b32 v{P+i}, 16, v{P+i}')
    a(f'v_cvt_pk_bf16_f32 v{P+6}, v{P+6}, v{P+6}'); a(f'v_and_b32 v{P+6}, 0xffff0000, v{P+6}')
    for i in range(nmul): a(f'v_mul_f32 v{P+i}, v{P+6}, v{P+i}')
    chains = []
    for n, (l, r) in enumerate(E.items()):
        t = tmp + 2 * n
        chains.append([f'v_mul_f32 v{t}, {hx(l*LOG2E)}, v{P}', f'v_mul_f32 v{t+1}, {hx(l/(2*math.pi))}, v{P+1}', f'v_exp_f32 v{t}, v{t}', f'v_fract_f32 v{t+1}, v{t+1}',
                       f'v_cos_f32 v{r}, v{t+1}', f'v_sin_f32 v{r+1}, v{t+1}', f'v_mul_f32 v{r}, v{r}, v{t}', f'v_mul_f32 v{r+1}, v{r+1}, v{t}'])
    for x in interleave(chains): a(x)

vL16 = 4
sD = sT + 4
def prologue():
    if cfg.stamps or cfg.probe:
        a('s_memtime s[98:99]'); a('s_memrealtime s[100:101]')
    a('s_load_dwordx16 s[36:51], s[0:1], 0')
    a('s_load_dwordx8 s[56:63], s[0:1], 80')
    a(f's_load_dwordx2 s[{sWSP}:{sWSP+1}], s[0:1], 128')
    a('s_load_dwordx2 s[52:53], s[0:1], 64')
    a('s_load_dwordx2 s[64:65], s[0:1], 112')
    a('s_cmp_ge_u32 s2, 256'); a('s_cbranch_scc1 L_exit')
    a('v_lshrrev_b32 v3, 6, v0')
    a('v_and_b32 v0, 63, v0')
    a(f'v_readfirstlane_b32 s{sW}, v3')
    a(f's_getpc_b64 s[{sT+2}:{sT+3}]')
    a('L_pc:')
    a(f's_lshr_b32 s{sJ}, s2, 3'); a(f's_and_b32 s{sJ}, s{sJ}, 7')
    a('v_lshlrev_b32 v5, 7, v0'); a(f'v_lshlrev_b32 v{vL16}, 4, v0')
    a(f's_cmp_lg_u32 s{sW}, 7'); a('s_cbranch_scc1 L_nocode')
    a(f's_and_b32 s{sT}, s{sJ}, 3'); a(f's_lshl_b32 s{sT}, s{sT}, 13'); a(f'v_add_u32 v6, s{sT}, v5')
    a(f'v_min_u32 v6, L_codeend-L_pc-4, v6')
    a(f'global_load_dword v127, v6, s[{sT+2}:{sT+3}]')
    a('L_nocode:')
    a(f's_and_b32 s{sC}, s2, 7'); a(f's_lshl_b32 s{sC}, s{sC}, 2'); a(f's_lshr_b32 s{sT}, s2, 6'); a(f's_add_u32 s{sC}, s{sC}, s{sT}')
    a(f's_lshl_b32 s{sIDX}, s{sC}, 3')
    a(f's_lshr_b32 s{sT}, s{sJ}, 2'); a(f's_add_u32 s{sDEL}, s{sT}, 1')
    a(f's_sub_u32 s{sT}, 0, s{sDEL}')
    a(f's_bitcmp1_b32 s{sJ}, 1'); a(f's_cselect_b32 s{sDEL}, s{sDEL}, s{sT}')
    a(f'v_mov_b32 v{vS}, {S0}'); a(f'v_mov_b32 v{vOne}, 1')
    a(f's_cmp_lt_u32 s{sW}, 4'); a('s_cbranch_scc1 L_A')
    a('s_setprio 3')
    a(f's_sub_u32 s{sW}, s{sW}, 4')
    a(f's_bfe_u32 s{sT}, s{sW}, 0x10001'); S(sD, [(sJ, 64), (sC, 2), (sT, 1)])
    a(f's_and_b32 s{sT+1}, s{sW}, 1'); S(sT, [(sD, 256), (sT + 1, 128)])
    a(f'v_lshl_add_u32 v8, v0, 1, s{sT}')
    a(f's_lshl_b32 s{sT+6}, s{sD}, 1'); a(f's_andn2_b32 s{sT+6}, s{sT+6}, 3')
    a(f's_add_u32 s{sT}, s{sIDX}, s{sJ}')
    a(f's_lshl_b32 s{sT+1}, s{sT}, 13'); a(f'v_add_u32 v6, s{sT+1}, v5')
    a(f's_lshl_b32 s{sT+1}, s{sT}, 11'); a(f'v_add_u32 v7, s{sT+1}, v5')
    a(f'v_lshlrev_b32 v10, 2, v0'); a('v_mov_b32 v11, 0')
    a(f'ds_write_b32 v10, v11 offset:{S_CNT}')
    S(sT, [(sC, 1024)], WS_FLAG); a(f'v_add_u32 v10, s{sT}, v5')
    a('v_lshrrev_b32 v12, 2, v0'); a('v_mul_u32_u24 v12, 2688, v12'); a(f'v_add_u32 v12, v12, v{vL16}')
    S(73, [(sC, 16*2752), (sJ, 352), (sW, 192)])
    a(f's_cmp_ge_u32 s{sJ}, 6'); a(f's_cselect_b32 s{sT}, 32, 0'); a(f's_sub_u32 s73, s73, s{sT}')
    a('v_lshrrev_b32 v60, 3, v0'); a(f'v_mul_u32_u24 v60, 896, v60'); a(f'v_add_u32 v60, v60, v{vL16}')
    a(f's_cmp_lt_i32 s{sDEL}, 0'); a(f's_cselect_b32 s75, 64, -2'); a(f's_add_u32 s75, s75, s{sDEL}')
    S(sT, [(sC, 65536), (75, 1024)]); a(f'v_lshl_add_u32 v61, v0, 5, s{sT}')
    S(77, [(sC, 65536), (sJ, 128), (sW, 16384)])
    a(f's_lshl_b32 s{sT+1}, s{sW}, 11'); a(f's_add_u32 m0, s{sT+1}, {S0 + S_XT}')
    a('s_waitcnt lgkmcnt(0)')
    nt = cfg.touch_nt
    for i in range(6): a(f'global_load_ushort v{48+i}, v8, s[{38+2*i}:{39+2*i}] {nt}')
    a(f's_load_dword s66, s[50:51], s{sT+6}'); a(f's_load_dword s67, s[52:53], s{sT+6}')
    a(f's_load_dword s{sEP}, s[{sWSP}:{sWSP+1}], 0')
    srd(SX, 36, 2097152)
    a(f's_cmp_eq_u32 s{sW}, 2'); a('s_cbranch_scc1 L_f2b')
    a(f's_cmp_eq_u32 s{sW}, 3'); a('s_cbranch_scc1 L_f2c')
    srd(SW3, 60, 1409024)
    for m in range(3): a(f'buffer_load_dwordx4 {vr(240 + 4*m, 4)}, v12, s[{SW3}:{SW3+3}], s73 offen offset:{64*m} {nt}')
    a('s_branch L_f2d')
    a('L_f2b:')
    a(f'global_load_dword v56, v6, s[36:37] {nt}')
    a('s_mov_b64 exec, 0xffff')
    a('global_load_dword v57, v7, s[56:57]')
    a('global_load_dword v58, v7, s[58:59]')
    a('s_branch L_f2d')
    a('L_f2c:')
    for k in range(2): a(f'buffer_load_dwordx4 {vr(232 + 4*k, 4)}, v61, s[{SX}:{SX+3}], 0 offen offset:{16*k}')
    a('s_mov_b64 exec, 0x1f')
    a(f'global_load_dword v56, v10, s[{sWSP}:{sWSP+1}] sc1')
    a('L_f2d:')
    a('s_mov_b64 exec, -1')
    a(f'buffer_load_dwordx4 v60, s[{SX}:{SX+3}], s77 offen lds')
    a('s_addk_i32 m0, 1024'); a('s_addk_i32 s77, 8192')
    a(f'buffer_load_dwordx4 v60, s[{SX}:{SX+3}], s77 offen lds')
    a('s_barrier')
    a('s_setprio 1')
    a('s_branch L_B')
    a('L_exit:')
    a('s_endpgm')
    a('L_A:')

his = list(range(9)) + [256, 258, 260, 262, 264, 512, 516, 520, 768, 772, 776, 1024, 1032, 1280, 1288, 1536, 1544, 1792, 1800]
h0 = list(range(9)) + [512, 516, 520, 1024, 1032, 1536, 1544]
h1 = [256, 256, 258, 260, 260, 260, 262, 264, 264, 768, 772, 776, 1280, 1288, 1792, 1800]
rowof = lambda v, half: (v & 3) + 8 * (v >> 2) + 4 * half
xrows = {h: [rowof(v, 0) for v, x in enumerate(h0) if x == h] + [rowof(v, 1) for v, x in enumerate(h1) if x == h] for h in his}

def role_A():
    vXF = list(range(16, 24)); vW1 = list(range(24, 28))
    vW, vL4, vXA, vSW, vSR, vCR, vW2, vW2b, vXT, vST, vHF, vXS, vS3 = range(28, 41)
    vCP, vSD, vDW, vL4b = 12, 13, 14, 15
    vCK = 7
    XF, RG, ACC, CSA = 128, 64, 96, 112
    s16W, sOWN, sPB, sJP, sFO, sFP = sT + 5, 40, 41, 42, 43, 44
    sOA, sOB, sH, sX1, sXS, sXSL, sW4, sHL, sX1L, sSD, sH2, sXC = sT + 6, 46, 47, 48, 49, 50, 51, 52, 53, 54, 55, 38
    a('v_lshrrev_b32 v10, 4, v0'); a('v_and_b32 v11, 15, v0')
    a('v_xor_b32 v11, v11, v10'); a('v_lshlrev_b32 v11, 4, v11')
    S(sT, [(sC, 65536), (sDEL, 1024), (sW, 256)])
    a(f'v_lshl_add_u32 v12, v10, 10, s{sT}')
    for m in range(4):
        if m == 0: a('v_add_u32 v56, v12, v11')
        else:
            a(f'v_xor_b32 v13, {64*m}, v11'); a(f'v_add_u32 v13, {4096*m}, v13'); a(f'v_add_u32 v{56+m}, v12, v13')
    a('v_add_u32 v60, 0x4000, v56')
    a(f's_mov_b32 s{sT+2}, 0x4000'); a(f's_mov_b32 s{sT+3}, 0x8000'); a(f's_mov_b32 s{sT+4}, 0xc000')
    a(f's_lshl_b32 s{s16W}, s{sW}, 14')
    a('s_setprio 2')
    a(f's_mov_b32 s{sK+4}, 0x3f803f80')
    S(sOA, [(sW, 131072), (sJ, 128)])
    sTH, sNH, sSS, sHS, sZ, sTM = 66, 67, 39, 58, 60, 61
    a(f's_lshr_b32 s{sTH}, s{sW}, 1'); a(f's_and_b32 s{sNH}, s{sW}, 1')
    L = Lane(100)
    hf_, l15 = L.field(5, 1), L.field(0, 4)
    a(f'v_xor_b32 v8, v{l15}, v{hf_}')
    S(sT, [(sTH, 8192), (sW, 16384)]); L(9, [(0, 5, 256)], f's{sT}'); a('v_lshl_add_u32 v8, v8, 4, v9')
    a(f's_mov_b32 s{sT}, {X0}')
    for c_ in range(4):
        a(f'v_xor_b32 v9, {c_ << 14}, v8'); a(f'v_add_u32 v{XF + 32*c_}, s{sT}, v9')
        for ks in range(1, 8): a(f'v_xor_b32 v{XF + 32*c_ + 4*ks}, {ks << 5}, v{XF + 32*c_}')
    for ks in range(8): a(f'v_xor_b32 v{RG + 4*ks}, 0x2000, v{XF + 4*ks}')
    L(9, [(2, 2, 128), (4, 1, 32), (0, 2, 8), (3, 1, 64)]); a(f's_lshl_b32 s{sT}, s{sNH}, 6'); a(f'v_xor_b32 v9, s{sT}, v9')
    L(8, [(5, 1, 1024)], 'v9'); a(f'v_add_u32 v8, s{s16W}, v8')
    for q in range(4): a(f'v_xor_b32 v{vW1[q]}, {q << 14}, v8')
    L(vW, [(3, 3, 1024), (0, 3, 16)]); L(8, [(4, 1, 64)]); a(f'v_xor_b32 v{vW}, v{vW}, v8')
    L(vL4, [(0, 6, 4)])
    a(f's_lshl_b32 s{sT}, s{sW}, 8'); a(f'v_add_u32 v{vSW}, s{sT}, v{vL4}')
    S(sT, [(sT, 1), (sTH, 1024)]); a(f'v_add_u32 v{vXA}, s{sT}, v{vL4}'); a(f'v_xor_b32 v16, 0x400, v{vXA}')
    a('v_mov_b32 v17, v9')
    a('s_waitcnt lgkmcnt(0)')
    srd(SX, 36, 2097152)
    a('s_barrier')
    a(f's_load_dword s{sEP}, s[{sWSP}:{sWSP+1}], 0')
    srd(SW1, 56, 524288); srd(SWS, sWSP, 268435456); srd(SW2, 58, 524288)
    srd(SW3, 62, 1409024)
    sF4 = 36
    S(sF4, [(sC, 48*1024), (sJ, 128)])
    a('v_lshrrev_b32 v47, 2, v0'); a('v_mul_u32_u24 v47, 960, v47'); a(f'v_add_u32 v47, v47, v{vL16}')
    a(f's_lshr_b32 s{sOB}, s2, 3'); S(sOB, [(sOB, 16384), (sW, 4096)])
    def dmaX(i, first=False):
        m, blk = i & 3, i >> 2
        v = 60 if (m == 0 and blk > 0) else 56 + m
        b = blk - 1 if (m == 0 and blk > 0) else blk
        so = '0' if b == 0 else f's{sT+1+b}'
        if first: a(f's_add_u32 m0, s{s16W}, {X0 + 1024*i}')
        else: a('s_addk_i32 m0, 1024')
        a.vm(f'buffer_load_dwordx4 v{v}, s[{SX}:{SX+3}], {so} offen lds', ('x', i))
    st.put('A', 'setup')
    consts()
    a(f's_and_b32 s{sJP}, s{sJ}, 1')
    S(sOWN, [(sIDX, 8192), (sJ, 8192)]); S(sPB, [(sW, 16384), (sIDX, 8192), (sJP, 8192)])
    S(sFO, [(sJ, 16), (sW, 4), (sFL, 1)]); S(sFP, [(sW, 32), (sFL, 1)])
    S(sH, [(sW, 2048), (sOWN, 1)], WS_H); a(f's_add_u32 s{sX1}, s{sH}, {WS_X1 - WS_H}')
    a(f's_lshr_b32 s{sXS}, s{sOWN}, 3'); S(sXS, [(sXS, 1), (sW, 256)], WS_XS); S(sXSL, [(sIDX, 1024)], WS_XS)
    S(sW4, [(sW, 22*2048), (sJ, FMT)], WS_W4)
    a(f's_cmp_eq_u32 s{sW}, 3'); a(f's_cselect_b32 s{sT}, 2048, 0'); a(f's_sub_u32 s{sW4}, s{sW4}, s{sT}')
    a(f's_add_u32 s{sHL}, s{sPB}, {WS_H}'); a(f's_add_u32 s{sX1L}, s{sPB}, {WS_X1}')
    S(sH2, [(sC, H2C), (sW, 22*1024)], WS_H2)
    S(sSS, [(sJ, 64*SRS), (sC, 2*SRS), (sTH, SRS), (sNH, 2048)], WS_ST)
    S(sHS, [(sC, H2C), (sJ, 11*1024), (sTH, 2048), (sNH, 88*1024)], WS_H2 + 8192)
    a(f's_cmp_ge_u32 s{sW}, 2'); a(f's_cselect_b32 s{sHS+1}, 0x80000000, s{sHS}'); a(f's_cselect_b32 s{sTM}, 0xff, -1'); a(f's_and_b32 s{sTM}, s{sTM}, 0xffff')
    a(f's_or_b32 s{sT}, s{sJ}, 2'); S(sT, [(sT, 2), (sTH, 1)]); a(f's_cmp_eq_u32 s{sT}, 15'); a(f's_cselect_b32 s{sZ}, 0, -1')
    a(f's_lshr_b32 s{sT}, s{sC}, 3'); a(f's_and_b32 s{sT+1}, s{sC}, 7'); S(sCFO, [(sT, 128), (sT + 1, 4), (sCPB, 1)])
    S(sT, [(sJP, 8192), (sW, 16384)]); L(vW2, [(5, 1, 512)], 'v17'); a(f'v_add_u32 v{vW2}, s{sT}, v{vW2}')
    S(sT, [(sTH, 1024)], S0 + S_STP); L(vSR, [(0, 5, 4)], f's{sT}')
    a(f'v_add_u32 v20, {S0 + S_CS1}, v{vSW}')
    a(f's_lshl_b32 s{sT}, s{sNH}, 8'); L(vCR, [(5, 1, 16)], f's{sT}')
    S(sT, [(sTH, 4096), (sNH, 64)]); L(vXT, [(0, 5, 128), (5, 1, 8)], f's{sT}')
    a(f's_lshl_b32 s{sT}, s{sTH}, 8'); L(vST, [(0, 5, 8)], f's{sT}')
    S(sT, [(sTH, 4096), (sW, 16384)]); a(f'v_add_u32 v{vHF}, s{sT}, v{vL16}')
    for q in range(1, 4): a(f'v_xor_b32 v{20+q}, {q << 14}, v{vHF}')
    S(sT, [(sTH, 512), (sNH, 64)]); L(vXS, [(4, 1, 256), (5, 1, 128), (0, 4, 4)], f's{sT}')
    a(f's_lshl_b32 s{sT}, s{sW}, 7'); L(vS3, [(0, 4, 8)], f's{sT}')
    S(sT, [(sW, 8192), (sNH, 4096)], CX0); L(43, [(1, 4, 16), (0, 1, 512), (5, 1, 1024)], f's{sT}')
    S(sT, [(sTH, 512)], S0 + S_CS3); L(44, [(5, 1, 16)], f's{sT}')
    a(f's_lshl_b32 s{sT}, s{sNH}, 8'); L(45, [(0, 5, 8)], f's{sT}')
    L(41, [(3, 3, 128), (0, 3, 4)])
    a(f'v_add_u32 v46, s{sH}, v5'); a('s_mov_b32 exec_lo, 0xffff0000'); a(f'v_add_u32 v46, {WS_X1 - WS_H - 2048}, v46')
    a('s_mov_b32 exec_lo, 0'); a(f's_sub_u32 s{sT}, s{sXS}, 4096'); a(f'v_add_u32 v46, s{sT}, v5'); a('s_mov_b32 exec_lo, -1')
    def ptouch():
        a('s_mov_b32 exec_hi, 3'); a.vm(f'buffer_load_dword v46, v46, {WS}, 0 offen sc1', 'pt'); a('s_mov_b32 exec_hi, -1')
    st.put('A', 'setup2')
    if cfg.hx == '' and cfg.ptouch == '0': ptouch()
    def fdma():
        for k in range(2):
            a(f's_add_u32 s{sT}, s{sW}, {4*k}'); a(f's_cmp_ge_u32 s{sT}, 3'); a(f's_cselect_b32 s{sT+1}, 1, 0')
            a(f's_lshl_b32 s{sT+8}, s{sT+1}, 10'); a(f's_lshl_b32 s{sT+9}, s{sT}, 10'); a(f's_add_u32 s{sT+8}, s{sT+8}, s{sT+9}')
            a(f's_min_u32 s{sT+8}, s{sT+8}, 7168'); a(f's_add_u32 m0, s{sT+8}, {S0 + S_KF + 8192}')
            a(f's_mul_i32 s{sT+1}, s{sT+1}, {(64 - 3*16384) & 0xffffffff}'); a(f's_lshl_b32 s{sT+9}, s{sT}, 14'); a(f's_add_u32 s{sT+1}, s{sT+1}, s{sT+9}')
            a(f's_add_u32 s{sT+1}, s{sT+1}, s{sF4}'); a(f's_cmp_ge_u32 s{sT}, 6'); a(f's_cselect_b32 s{sT+1}, 0x80000000, s{sT+1}')
            a.vm(f'buffer_load_dwordx4 v47, s[{SW3}:{SW3+3}], s{sT+1} offen {cfg.f4fl} lds', 'f')
    for i in range(16):
        if i == cfg.fpos: fdma()
        dmaX(i, i in (0, cfg.fpos))
    if cfg.fpos == 16: fdma()
    if cfg.hx == '' and cfg.ptouch == 'f': ptouch()
    nq = [0]
    def pump(n=1):
        for _ in range(n):
            i = nq[0]
            if i >= 16: return
            nq[0] += 1
            if i == 0: a(f's_add_u32 m0, s{s16W}, {W0}')
            else: a('s_addk_i32 m0, 1024'); a(f's_addk_i32 s{sOA}, 8192')
            a.vm(f'buffer_load_dwordx4 v{vW}, s[{SW1}:{SW1+3}], s{sOA} offen lds', ('w1', i >> 3))
    for i in range(48, 52): a(f'v_mov_b32 v{i}, 0')
    a('s_mov_b32 vcc_lo, 0xaaaa5555'); a('s_mov_b32 vcc_hi, vcc_lo'); a(f'v_mov_b32 v60, s{sK+4}')
    for i in range(63, 59, -1): a(f'v_cndmask_b32 v{i}, 0, v60, vcc')
    a('s_setprio 2')
    LT1, LTE = a.label('TH'), a.label('TH')
    a(f's_cmp_eq_u32 s{sTH}, 1'); a(f's_cbranch_scc1 {LT1}')
    saved = (list(a.vmq), list(a.lgq))
    for var in range(2):
        if var:
            a(f'{LT1}:'); a.vmq, a.lgq = list(saved[0]), list(saved[1]); nq[0] = 0
        for ph in range(2):
            own = (ph == var); B_ = XF if own else RG; acc_ = 48 if own else 50
            a.wvm(('x', 8*ph + 7))
            if ph: signal('XA1')
            for ks in range(8): a.lg(f'ds_read_b128 {vr(B_ + 4*ks, 4)}, v{B_ + 4*ks}', ('xs', ph, ks))
            for ks in range(8):
                pump()
                a.wlg(('xs', ph, ks))
                for d in range(4):
                    r = B_ + 4*ks + d
                    a(f'v_dot2c_f32_bf16 v{acc_}, s{sK+4}, v{r}'); a(f'v_dot2c_f32_bf16 v{acc_+1}, v{r}, v{r}')
                if ph and ks == 4: chk_issue('XA1', vCK)
        if var == 0: a(f's_branch {LTE}')
    a(f'{LTE}:')
    a('s_nop 2')
    chk_wait('XA1', vCK, 4)
    rest = [n for n in range(8, 32) if (n & 7) < 4] + [n for n in range(8, 32) if (n & 7) >= 4]
    for n in rest[:8]: a.lg(f'ds_read_b128 {vr(XF + 4*n, 4)}, v{XF + 4*n}')
    a('v_permlane32_swap_b32 v48, v49'); a('v_permlane32_swap_b32 v50, v51'); a('v_add_f32 v48, v48, v49'); a('v_add_f32 v50, v50, v51')
    a.lg(f'ds_write_b32 v{vXA}, v48 offset:{S0 + S_STP}'); a.lg(f'ds_write_b32 v16, v50 offset:{S0 + S_STP}')
    a.wvm('f')
    signal('S')
    st.put('A', 'S')
    if cfg.hx == '' and cfg.ptouch == 's': ptouch()
    if cfg.w4s:
        a('s_mov_b64 exec, 0x7ff'); a.vm(f'buffer_load_dword v47, v5, s[{SW3}:{SW3+3}], s45 offen', 'tw4'); a('s_mov_b64 exec, -1')
    if cfg.w2l2:
        a('s_mov_b32 exec_hi, 0'); a.vm(f'buffer_load_dword v55, v5, s[{SW2}:{SW2+3}], s{sOB} offen', 'tw2'); a('s_mov_b32 exec_hi, -1')
    for n in rest[8:]: a.lg(f'ds_read_b128 {vr(XF + 4*n, 4)}, v{XF + 4*n}')
    a.wvm(('w1', 0)); signal('WC0')
    st.put('A', 'g1_go')
    seq = [8*c_ + ks for c_ in range(4) for ks in range(4)] + [8*c_ + ks for c_ in range(4) for ks in range(4, 8)]
    RS = [RG + 4*i for i in range(8)] + [116, 120, 124]
    nrd = [0]
    def rdw(upto):
        while nrd[0] < min(upto, 32):
            pos = nrd[0]; n = seq[pos]; nrd[0] += 1
            for p in range(2):
                a.lg(f'ds_read_b64_tr_b16 {vr(RS[pos % 11] + 2*p, 2)}, v{vW1[n >> 3]} offset:{W0 + 2048*(n & 7) + 512*p}', ('wf', pos))
    LA = cfg.la1
    rdw(4)
    chk_issue('WC0', vCK)
    mark = len(a.L)
    padd(8, 8, 12, 4, False); padd(52, 8, 10, 2, False)
    finstat(52)
    a('v_mul_f32 v8, v53, v53'); a(f'v_mov_b32 v9, {hx(1 + EPS)}'); a(f'v_fmac_f32 v9, {hx(-EPS)}, v8')
    a('v_rsq_f32 v9, v9')
    a(f'v_mul_f32 v53, s{sK+2}, v53'); a('v_mul_f32 v53, v53, v9')
    a(f's_add_u32 s{sEP}, s{sEP}, 1'); a(f's_mov_b32 s{sEP+1}, s{sEP}')
    a(f's_getreg_b32 s{sXC}, hwreg(HW_REG_XCC_ID, 0, 4)')
    if cfg.force_slow: a(f's_mov_b32 s{sXC}, s{sJ}')
    a(f's_lshl_b32 s{sXC}, s{sXC}, 28'); a(f's_add_u32 s{sXC}, s{sXC}, s{sEP}')
    side = a.L[mark:]; del a.L[mark:]
    for pos in range(32):
        n = seq[pos]
        if pos == 2:
            chk_wait('WC0', vCK, 4)
        if pos == 5:
            for w2 in range(4): a.lg(f'ds_read2_b32 v[{8+2*w2}:{9+2*w2}], v{vSR} offset0:{64*w2} offset1:{64*w2+32}', 'sp')
        if pos == 16 - LA: a.wvm(('w1', 1)); signal('WC1')
        if pos == 18 - LA: chk_issue('WC1', vCK)
        if pos == 20 - LA: chk_wait('WC1', vCK, 4)
        if pos == 20:
            a('s_mov_b64 exec, 0xff'); a.vm(f'buffer_load_dword v54, v{vL4}, {WS}, s{sFL} offen offset:768 sc1', 'md'); a('s_mov_b64 exec, -1')
        if pos >= 2: rdw(min(pos + LA + 1, nrd[0] + 3))
        a.wlg(('wf', pos))
        M32(ACC, RS[pos % 11], XF + 4*n, None if pos == 0 else ACC)
        if n < 16: M16(CSA, 60, RS[pos % 11], None if pos == 0 else CSA)
        if pos == 14: a.wlg('sp')
        if pos >= 14:
            for _ in range(2):
                if side: a(side.pop(0))
        if pos == 25:
            assert nrd[0] == 32
            a('s_mov_b64 exec, 0xffff'); a.lg(f'ds_write2_b32 v20, v{CSA}, v{CSA+1} offset0:0 offset1:16'); a('s_mov_b64 exec, -1')
            signal('G1')
        if pos == 29: chk_issue('G1', vCK)
    assert not side
    st.put('A', 'g1_mfma')
    chk_wait('G1', vCK, 4)
    CSR = XF
    for q in range(4):
        for s_ in range(2): a.lg(f'ds_read_b128 {vr(CSR + 16*s_ + 4*q, 4)}, v{vCR} offset:{S0 + S_CS1 + 512*s_ + 32*q}', ('cs', q >> 1))
    for hf in range(2):
        a.wlg(('cs', hf))
        padd(CSR + 8*hf, CSR + 8*hf, CSR + 16 + 8*hf, 8)
        chains = []
        for i in range(0, 8, 2):
            o = ACC + 8*hf + i; c = CSR + 8*hf + i
            ch = [f'v_pk_fma_f32 v[{o}:{o+1}], v[{c}:{c+1}], v[52:53], v[{o}:{o+1}] op_sel_hi:[1,0,1] neg_lo:[0,1,0] neg_hi:[0,1,0]',
                  f'v_pk_mul_f32 v[{o}:{o+1}], v[52:53], v[{o}:{o+1}] op_sel:[1,0] op_sel_hi:[1,1]']
            ch += gelu_ops(o, RG + i, 56 + 4*hf + i // 2, True)
            chains.append(ch)
        for x in interleave(chains): a(x)
        a.vm(f'buffer_store_dwordx4 {vr(56 + 4*hf, 4)}, v{vL16}, {WS}, s{sH} offen offset:{1024*hf} {cfg.hx}', 'hst')
    st.put('A', 'h_stored')
    LMP, LME = a.label('MD'), a.label('MD')
    a.wvm('md')
    a(f's_mov_b32 s{sT+9}, {cfg.gbound}')
    a('s_mov_b64 exec, 0xff')
    a(f'{LMP}:')
    a(f'v_subrev_u32 v8, s{sEP}, v54'); a('v_and_b32 v8, 0x0fffffff, v8')
    a('v_cmp_ne_u32 vcc, 0, v8')
    a(f's_cbranch_vccz {LME}')
    a(f's_sleep {cfg.csleep}')
    a(f'buffer_load_dword v54, v{vL4}, {WS}, s{sFL} offen offset:768 sc1')
    a('s_waitcnt vmcnt(0)')
    a(f's_sub_u32 s{sT+9}, s{sT+9}, 1'); a(f's_cbranch_scc0 {LMP}')
    a(f'{LME}:')
    a(f'v_cmp_ne_u32 vcc, s{sXC}, v54')
    a('s_cmp_eq_u64 vcc, 0'); a(f's_cselect_b32 s{sMODE}, 1, 2')
    a(f'v_mov_b32 v8, s{sMODE}')
    a('s_mov_b64 exec, 1'); a.lg(f'ds_write_b32 v{vS}, v8 offset:{CN["MODE"]}'); a('s_mov_b64 exec, -1')
    a(f's_mov_b32 s{sT}, {X0}')
    for g in range(8): a(f'v_xor_b32 v{RG + g}, {8192*g}, v{vW2}'); a(f'v_add_u32 v{RG + g}, s{sT}, v{RG + g}')
    spin('W2L', 4)
    def rdw2(n):
        for p in range(2):
            a.lg(f'ds_read_b64_tr_b16 {vr(XF + 4*n + 2*p, 2)}, v{RG + (n >> 2)} offset:{2048*(n & 3) + 1024*p}', 'w2f')
    for q in range(4): a.lg(f'ds_read_b64 v[{8+2*q}:{9+2*q}], v{vXT} offset:{S0 + S_XT + 16*q}', 'xt')
    a.lg(f'ds_read_b64 v[50:51], v{vST} offset:{S0 + S_ST + 16}', 'xt')
    for n in range(cfg.w2pre): rdw2(n)
    flag(sFO, 0, 'hst', cfg.hx == '')
    st.put('A', 'h_flag')
    for n in range(cfg.w2pre, 32): rdw2(n)
    signal('W')
    a.wlg('xt')
    unpack(ACC, 8, 8)
    for i in range(16): a(f'v_sub_f32 v{ACC+i}, v{ACC+i}, v50')
    for i in range(16): a(f'v_mul_f32 v{ACC+i}, v{ACC+i}, v51')
    st.put('A', 'rdy')
    def image(sbase, tag, c):
        pp, rh = c >> 1, c & 1
        if c == 2: a(f's_xor_b32 s{sbase}, s{sbase}, 8192')
        if rh == 0: a(f's_add_u32 s{sOB}, s{sbase}, 4096')
        for th in range(2):
            a(f's_add_u32 m0, s{s16W}, {W0 + 8192*pp + 4096*th}')
            for r in range(2*rh, 2*rh + 2):
                a.vm(f'buffer_load_dwordx4 v{vL16}, {WS}, s{sOB if th else sbase} offen offset:{1024*r} sc1 lds', (tag, c))
    pollc(sFP, 0, 8, vL4, 48)
    st.put('A', 'h_seen')
    for c in range(3): image(sHL, 'h', c)
    vH4 = [vHF, 21, 22, 23]
    seq2 = [8*w2 + 4*pp + r for pp in range(2) for w2 in range(4) for r in range(4)]
    RS2 = [RG + 4*i for i in range(8)] + [112, 116, 120, 124]
    nr2 = [0]
    def rdh(upto):
        while nr2[0] < min(upto, 32):
            pos = nr2[0]; n = seq2[pos]; nr2[0] += 1
            a.lg(f'ds_read_b128 {vr(RS2[pos % 12], 4)}, v{vH4[n >> 3]} offset:{W0 + 8192*((n >> 2) & 1) + 1024*(n & 3)}', ('hf', pos))
    a.lg0()
    a.wvm(('h', 0)); rdh(2); image(sHL, 'h', 3)
    a.wvm(('h', 1)); signal('HC0'); rdh(4); chk_issue('HC0', vCK)
    st.put('A', 'g2_go')
    LA2 = cfg.la2
    for pos in range(32):
        if pos == 3: chk_wait('HC0', vCK, 4)
        if pos == 16 - LA2: a.wvm(('h', 3)); signal('HC1')
        if pos == 18 - LA2: chk_issue('HC1', vCK)
        if pos == 20 - LA2: chk_wait('HC1', vCK, 4)
        if pos >= 3: rdh(pos + LA2 + 1)
        a.wlg(('hf', pos))
        M32(ACC, XF + 4*seq2[pos], RS2[pos % 12], ACC)
    st.put('A', 'g2_mfma')
    for hf in range(2):
        for i in range(4): a(f'v_cvt_pk_bf16_f32 v{56+4*hf+i}, v{ACC+8*hf+2*i}, v{ACC+8*hf+2*i+1}')
        a.vm(f'buffer_store_dwordx4 {vr(56 + 4*hf, 4)}, v{vL16}, {WS}, s{sX1} offen offset:{1024*hf} {cfg.hx}', 'x1st')
    for k in range(2):
        a(f'v_add_f32 v{8+2*k}, v{ACC+8*k}, v{ACC+8*k+1}'); a(f'v_mul_f32 v{9+2*k}, v{ACC+8*k}, v{ACC+8*k}')
    for i in range(1, 8):
        for k in range(2):
            if i > 1: a(f'v_add_f32 v{8+2*k}, v{8+2*k}, v{ACC+8*k+i}')
            a(f'v_fmac_f32 v{9+2*k}, v{ACC+8*k+i}, v{ACC+8*k+i}')
    a('v_add_f32 v8, v8, v10'); a('v_add_f32 v9, v9, v11')
    a('v_permlane32_swap_b32 v8, v9'); a('v_add_f32 v8, v8, v9')
    for q in range(1, 4): a(f'v_mov_b32_dpp v{8+q}, v8 quad_perm:[{q},{q},{q},{q}] row_mask:0xf bank_mask:0xf')
    a('s_mov_b32 exec_lo, 0x11111111'); a('s_mov_b32 exec_hi, 0x11111111')
    a.vm(f'buffer_store_dwordx4 v[8:11], v{vL4}, {WS}, s{sXS} offen {cfg.hx}', 'x1st')
    a('s_mov_b64 exec, -1')
    st.put('A', 'x1_stored')
    a(f'v_mov_b32 v{vCP}, v41')
    a(f's_add_u32 s{sT}, s{s16W}, {X0}'); a(f'v_add_u32 v{vDW}, s{sT}, v{vL16}')
    W4F, ACC4, RING = 80, 48, 16
    flag(sFO, 128, 'x1st', cfg.hx == '')
    st.put('A', 'x1_flag')
    pollc(sFL, 128, 32, vL4, 48)
    st.put('A', 'x1_seen')
    for c in range(3): image(sX1L, 'x1', c)
    chk_issue('W3I', vCK)
    a.wvm(('x1', 0)); signal('X0')
    image(sX1L, 'x1', 3)
    a.wvm(('x1', 1)); signal('XA0')
    for q in range(8):
        if q == 4: a(f's_addk_i32 s{sXSL}, 4096')
        a.vm(f'buffer_load_dword v{48+q}, v{vXS}, {WS}, s{sXSL} offen offset:{1024*(q & 3)} sc1', 'xs')
    chk_wait('W3I', vCK, 4)
    a.wvm(('x1', 3)); signal('XA')
    st.put('A', 'x1_in')
    def w4issue(ks):
        for nt_ in range(2):
            a.vm(f'buffer_load_dwordx4 {vr(W4F + 8*ks + 4*nt_, 4)}, v{vL16}, {WS}, s{sW4} offen offset:{2048*(ks & 1) + 1024*nt_} sc1', ('w4', ks))
        if ks & 1: a(f's_addk_i32 s{sW4}, 4096')
    if cfg.now4: a(f's_mov_b32 s{sW4}, 0x80000000')
    nw = [0]
    def w4more(n=1):
        for _ in range(n):
            ks = nw[0]
            if ks >= 22: return
            nw[0] += 1
            if ks >= cfg.la4: a.wvm(('w4', ks - cfg.la4))
            w4issue(ks)
    w4more(cfg.la4)
    a(f's_setprio {cfg.aprio}')
    a.wvm('xs')
    padd(48, 48, 52, 4, False); padd(48, 48, 50, 2, False)
    a('v_add_f32 v48, v48, v49')
    a('v_mov_b32 v49, v48')
    a('v_permlane16_swap_b32 v48, v49'); a('v_add_f32 v48, v48, v49')
    a('v_mov_b32 v49, v48')
    a('v_permlane32_swap_b32 v48, v49')
    finstat(48)
    a(f'v_mul_f32 v49, s{sK+2}, v49')
    a.lg(f'ds_write_b64 v{vS3}, v[48:49] offset:{S0 + S_ST3}')
    signal('ST')
    a('v_xor_b32 v8, 0x2000, v43')
    for pr in range(2):
        for h in range(2):
            a.lg(f'ds_read_b128 {vr(48 + 8*pr + 4*h, 4)}, v43 offset:{2048*pr + 256*h}', ('c', pr))
            a.lg(f'ds_read_b128 {vr(64 + 8*pr + 4*h, 4)}, v8 offset:{2048*pr + 256*h}', ('c', pr))
    for pr in range(2):
        a.wlg(('c', pr))
        padd(48 + 8*pr, 48 + 8*pr, 64 + 8*pr, 8, False)
        for d in range(4): a(f'v_cvt_pk_bf16_f32 v{64+8*pr+d}, v{48+8*pr+2*d}, v{48+8*pr+2*d+1}')
        a.vm(f'buffer_store_dwordx4 {vr(64 + 8*pr, 4)}, v{vL16}, {WS}, s{sSS} offen offset:{1024*pr} sc1', 'sst')
    EA, EB, EC, ED = 48, 64, 16, 32
    a('v_mov_b32 v9, v44'); a('v_mov_b32 v10, v45')
    S(sT, [(sW, 8192)], E30); a(f'v_add_u32 v8, s{sT}, v{vL16}'); a('v_xor_b32 v11, 0x3000, v8')
    for q in range(4):
        a.lg(f'ds_read_b128 {vr(EC + 4*q, 4)}, v9 offset:{32*q}', 'e0'); a.lg(f'ds_read_b128 {vr(ED + 4*q, 4)}, v9 offset:{256 + 32*q}', 'e0')
    w4more(cfg.w4a)
    spin('ST', 4)
    padd(EC, EC, ED, 16, False)
    a.lg(f'ds_read_b64 v[38:39], v10 offset:{S0 + S_ST3}', 'e2')
    w4more(cfg.w4b)
    if cfg.fsearly: publish_col('FS', 1024, 'sst')
    spin('E3', 4)
    st.put('A', 'e3')
    EA, EB = 48, 240
    for q in range(4):
        a.lg(f'ds_read_b128 {vr(EA + 4*q, 4)}, v8 offset:{1024*q}', ('e1', q)); a.lg(f'ds_read_b128 {vr(EB + 4*q, 4)}, v11 offset:{1024*q}', ('e1', q))
    signal('E3')
    for q in range(4):
        a.wlg(('e1', q)); padd(EA + 4*q, EA + 4*q, EB + 4*q, 4, False)
    for k, x in enumerate(gelu16(EA, EC, 32, 38, [(sHS, 0, 'h2s'), (sHS + 1, 1024, 'h2s')], zero=sZ)):
        if isinstance(x, tuple): a.vm(x[1], x[2])
        else: a(x)
        if k % cfg.w4ev == cfg.w4ev - 1 and k < cfg.w4stop: w4more()
    st.put('A', 'gs')
    a('s_setprio 0')
    if not cfg.fsearly: publish_col('FS', 1024, 'sst')
    w4more(cfg.la4)
    a('v_lshlrev_b32 v9, 7, v0')
    flag(sFO, 256, 'h2s', False, (f's{sTM}', f'buffer_load_dword v9, v9, {WS}, s{sHS} offen sc1'))
    st.put('A', 'hs_flag')
    w4more(22)
    st.put('A', 'w4_issued')
    spin('E3', 8)
    pollc(sFP, 256, 16, vCP, 6)
    st.put('A', 'h2a_seen')
    a(f's_setprio {cfg.g4prio}')
    def h2issue(f):
        th, ks = divmod(f, 22)
        if ks % 4 == 0: a(f's_add_u32 s{sT+1}, s{sH2}, {88*1024*th + 1024*ks}')
        a.vm(f'buffer_load_dwordx4 {vr(RING + 4*(f % 8), 4)}, v{vL16}, {WS}, s{sT+1} offen offset:{1024*(ks % 4)} sc1', ('h2', f))
    for f in range(8): h2issue(f)
    for f in range(44):
        th, ks = divmod(f, 22)
        if f == 14:
            LOK = a.label('HB')
            a.wvm('pb')
            a('s_mov_b64 exec, 0xff'); a(f'v_cmp_ne_u32 vcc, s{sEP}, v6'); a('s_mov_b64 exec, -1')
            a(f's_cmp_eq_u32 s{sMODE}, 1'); a('s_cselect_b64 vcc, vcc, -1')
            a(f's_cbranch_vccz {LOK}')
            saved = list(a.vmq)
            pollc(sFP, 512, 8, vCP, 6)
            a.vmq = saved
            a(f'{LOK}:')
            st.put('A', 'h2b_seen')
        a.wvm(('h2', f))
        if f == 22: a.wlg(('d', 0))
        M32(ACC4, W4F + 8*ks, RING + 4*(f % 8), None if ks == 0 else ACC4)
        if f == 22: a.wlg(('d', 1))
        M32(ACC4 + 16, W4F + 8*ks + 4, RING + 4*(f % 8), None if ks == 0 else ACC4 + 16)
        if f + 8 < 44: h2issue(f + 8)
        if f == cfg.pbf:
            a('s_mov_b64 exec, 0xff'); a.vm(f'buffer_load_dword v6, v{vCP}, {WS}, s{sFP} offen offset:512 sc1', 'pb'); a('s_mov_b64 exec, -1')
        if ks == 21:
            for q in range(8): a.lg(f'ds_write_b128 v{vDW}, {vr(ACC4 + 4*q, 4)} offset:{8192*th + 1024*q}', ('d', q >> 2))
            signal('D4a' if th == 0 else 'D4b')
            st.put('A', f'g4_{th}')
    st.flush('A')
    a('s_endpgm')

class BBar:
    n = 0
def bbar(sleep=0):
    BBar.n += 1
    signal('B'); spin('B', 4 * BBar.n, sleep=sleep)

def role_B():
    vKE, vKT, vFW, vFT, vXV, vF4, vPA, vXT, vMS, vUS, tZP, vKX, vKY = range(28, 41)
    a('L_B:')
    a.reset()
    vLs, vCU, vCT, CACC, UF, W3F = 5, 6, 8, 28, 224, 64
    TR = lambda i: 12 + 4*i if i < 4 else 192 + 4*i
    vCP, vUD, vCW, vCR = 60, 62, 63, 7
    sXC, sFD, sXR, sW3, sUS, sUL, sF4, sSS, sFO, sZ, sH2, sM0U, sJP = 36, 37, 40, 41, 42, 43, 44, 45, 46, 47, 48, 72, 73
    sCH, sPT, sKF = 75, 76, 60
    a(f's_lshr_b32 s{sCH}, s{sW}, 1'); a(f's_and_b32 s{sPT}, s{sW}, 1')
    L = Lane(12)
    SL = 224
    a('v_and_b32 v8, 1, v0'); a('v_lshlrev_b32 v8, 4, v8'); a('v_mov_b32 v9, 0x3f80'); a('v_lshlrev_b32 v8, v8, v9')
    for jh in range(2):
        for d in range(4):
            lo = (3 << (2*d)) << (16*jh)
            a(f's_mov_b32 vcc_lo, {hex(lo)}'); a(f's_mov_b32 vcc_hi, {hex(lo << 8)}')
            a(f'v_cndmask_b32 v{SL + 4*jh + d}, 0, v8, vcc')
    YV = 64
    srd(SWS, sWSP, 268435456); srd(SOUT, 58, 524288); a('s_mov_b64 s[0:1], s[64:65]')
    consts()
    a(f's_lshr_b32 s{sT}, s{sC}, 3'); a(f's_and_b32 s{sT+1}, s{sC}, 7'); S(sCFO, [(sT, 128), (sT + 1, 4), (sCPB, 1)])
    a(f's_and_b32 s{sJP}, s{sJ}, 1')
    a(f's_cmp_lt_i32 s{sDEL}, 0'); a(f's_cselect_b32 s{sXR}, 64, -2'); a(f's_add_u32 s{sXR}, s{sXR}, s{sDEL}')
    S(sW3, [(sJ, FMT), (sW, 49152)], WS_W3)
    S(sFD, [(sJ, FMT), (sC, 1024), (sW, 3*49152)], WS_W3 + 16384)
    a(f's_lshr_b32 s{sT}, s{sC}, 4'); a(f's_and_b32 s{sT+1}, s{sC}, 15'); S(sT, [(sT, 49152), (sT + 1, 1024), (sJ, FMT)], WS_W3)
    a(f's_add_u32 s{sFD+1}, s{sFD}, 49152'); a(f's_add_u32 s{sFD+2}, s{sFD}, {2*49152}'); a(f's_add_u32 s{sT+1}, s{sT}, {2*49152}')
    a(f's_cmp_eq_u32 s{sW}, 1'); a(f's_cselect_b32 s{sFD+1}, s{sT}, s{sFD+1}'); a(f's_cselect_b32 s{sFD+2}, s{sT+1}, s{sFD+2}')
    S(sT, [(sW, 1024), (sJ, FMT), (sC, 6144)], WS_W4 - 2048)
    a(f's_cmp_ge_u32 s{sW}, 2'); a(f's_cselect_b32 s{sFD}, s{sT}, s{sFD}')
    a(f's_add_u32 s{sT}, s{sT}, 2048'); a(f's_add_u32 s{sT+1}, s{sT}, 2048')
    a(f's_cmp_ge_u32 s{sW}, 2'); a(f's_cselect_b32 s{sFD+1}, s{sT}, s{sFD+1}'); a(f's_cselect_b32 s{sFD+2}, s{sT+1}, s{sFD+2}')
    S(sUS, [(sJ, 32*UPS), (sC, UPS)], WS_UT)
    a(f's_lshr_b32 s{sT}, s{sC}, 3'); a(f's_and_b32 s{sT+1}, s{sC}, 7'); S(sUL, [(sT, 2048), (sT + 1, 128), (sJ, 32*UPS)], WS_UT)
    a(f's_and_b32 s{sT+1}, s{sW}, 1'); a(f's_lshr_b32 s{sT}, s{sW}, 1')
    S(sM0U, [(sT, USZ), (sT + 1, 2048)], U0 + 512)
    S(sFO, [(sJ, 16), (sW, 4), (sFL, 1)])
    S(sH2 + 4, [(sC, H2C), (sJ, 11*1024)], WS_H2)
    S(sH2, [(sW, 2048), (sH2 + 4, 1)]); a(f's_add_u32 s{sH2+1}, s{sH2}, {88*1024}')
    a('s_waitcnt vmcnt(5)')
    st.put('B', 'par')
    kpre(48, 4, {8: YV + 2, 1: 44, 256: 46}, 192)
    XV = 128
    xi = {h: XV + 2 * i for i, h in enumerate(his)}
    a(f'v_mov_b32 v{YV}, 1.0'); a(f'v_mov_b32 v{YV+1}, 0')
    for x in swp(YV+2, 16) + swp(44, 18) + swp(46, 20) + swp(50, 22): a(x)
    ych = cmul(YV+4, YV+2, YV+2) + cmul(YV+6, YV+4, YV+2) + cmul(YV+8, YV+6, YV+2) + swp(YV+8, 24)
    for g in range(5, 32, 4):
        blk = []
        for j in range(g, min(g + 4, 32)): blk += cmul(YV + 2*j, YV + 2*(j-4), YV + 8)
        ych += blk[0::2] + blk[1::2]
    xch = cmul(xi[0], 52, 50)
    for h in range(1, 9): xch += cmul(xi[h], xi[h-1], 44)
    for lvl in ([256, 258, 260, 262, 264], [512, 516, 520], [768, 772, 776], [1024, 1032], [1280, 1288], [1536, 1544], [1792, 1800]):
        blk = []
        for h in lvl: blk += cmul(xi[h], xi[h-256], 46)
        xch += blk[0::2] + blk[1::2]
    for x in interleave([ych, xch]): a(x)
    st.put('B', 'k1')
    src = {'Y': [YV + 2*j for j in range(32)], 'X': [None] * 32}
    for h in his:
        for row in xrows[h]: src['X'][row] = xi[h]
    PB = [192, 208]
    TL = [12, 28]
    groups = [('Y', 0), ('Y', 1), ('X', 0), ('X', 1)]
    FRK = {'Y': 64, 'X': 128}
    def pack(gi):
        op, part = groups[gi]; P = PB[gi & 1]; ng = '-' if (op == 'X' and part) else ''
        o = [f'v_cvt_pk_bf16_f32 v{P+i}, {ng}v{src[op][2*i]+part}, {ng}v{src[op][2*i+1]+part}' for i in range(16)]
        o += [f'v_permlane32_swap_b32 v{P+8*jh+d}, v{P+8*jh+4+d}' for jh in range(2) for d in range(4)]
        return o
    def tr(gi, T):
        P = PB[gi & 1]
        return [(T + 16*nh, P + 8*jh + 4*nh, SL + 4*jh, jh) for nh in range(2) for jh in range(2)]
    def repack(gi, T):
        op, part = groups[gi]
        return [f'v_cvt_pk_bf16_f32 v{FRK[op] + 16*part + i}, v{T+2*i}, v{T+2*i+1}' for i in range(16)]
    for x in pack(0) + pack(1): a(x)
    TA, TB = 96, 16
    def mm(lst, fill):
        per = -(-len(fill) // 4) if fill else 0
        for (d, x, y, jh) in lst:
            M32(d, x, y, d if jh else None)
            for _ in range(per):
                if fill: a(fill.pop(0))
    mm(tr(0, TA), [])
    mm(tr(1, TB), pack(2))
    f = repack(0, TA)
    for x in f: a(x)
    mm(tr(2, TA), pack(3) + repack(1, TB))
    mm(tr(3, TB), [])
    for x in repack(2, TA) + repack(3, TB): a(x)
    FY, FX, KD, KP, ET = 64, 128, 192, 96, 208
    st.put('B', 'k2')
    mark = len(a.L)
    vEX = vKX
    S(sT, [(sW, 4096)], S0 + S_KF); a(f'v_add_u32 v{vEX}, s{sT}, v{vL16}'); a(f'v_xor_b32 v{vEX+1}, 0x1000, v{vEX}')
    S(sT, [(sDEL, 8)], S0 + S_ST + 16); a(f'v_lshl_add_u32 v43, v0, 3, s{sT}')
    S(sKF, [(sCH, 2*KCOPY)], S0 + S_KF)
    a(f's_add_u32 s{sT}, s{sKF}, {4080 - 3072}'); a(f'v_sub_u32 v{vKE}, s{sT}, v{vL16}')
    a(f's_add_u32 s{sT}, s{sKF}, {KCOPY}'); L(vKT, [(3, 1, KCOPY)]); a(f'v_sub_u32 v{vKT}, s{sT}, v{vKT}'); L(vKT, [(0, 3, 4)], f'v{vKT}')
    S(sT, [(sW, 4096)], S0 + S_KF); L(vFT, [(5, 1, 256), (2, 2, 64), (4, 1, 32), (0, 2, 8)], f's{sT}')
    L(vPA, [(5, 1, 1024), (0, 5, 4)], S0 + S_STP)
    L(46, [(4, 1, 64)]); a('v_xor_b32 v41, v60, v46')
    a(f's_lshl_b32 s{sT}, s{sW}, 5'); L(vXT, [(4, 2, 1024), (2, 2, 128), (0, 2, 8)], f's{sT}')
    L(vMS, [(4, 2, 64)])
    a(f's_lshl_b32 s{sT}, s{sW}, 11'); L(vUS, [(0, 4, 64), (4, 2, 16)], f's{sT}')
    side = a.L[mark:]; del a.L[mark:]
    per = -(-len(side) // 8)
    for ks in range(8):
        M32(KD, FX + 4*ks, FY + 4*ks, None if ks == 0 else KD)
        for _ in range(per):
            if side: a(side.pop(0))
    a(f's_add_u32 s{sEP}, s{sEP}, 1'); a(f's_mov_b32 s{sEP+1}, s{sEP}')
    a(f's_getreg_b32 s{sXC}, hwreg(HW_REG_XCC_ID, 0, 4)')
    if cfg.force_slow: a(f's_mov_b32 s{sXC}, s{sJ}')
    a(f's_lshl_b32 s{sXC}, s{sXC}, 28'); a(f's_add_u32 s{sXC}, s{sXC}, s{sEP}')
    st.put('B', 'kmfma')
    a.vm0()
    LG, LGE = a.label('FM'), a.label('FM')
    a(f's_cmp_ge_u32 s{sW}, 2'); a(f's_cbranch_scc1 {LG}')
    for m in range(3): a(f'ds_write_b128 v{vEX}, {vr(240 + 4*m, 4)} offset:{1024*m}')
    for m in range(3):
        for p in range(2): a(f'ds_read_b64_tr_b16 v[{112+4*m+2*p}:{113+4*m+2*p}], v{vFT} offset:{1024*m + 512*p}')
    a('s_waitcnt lgkmcnt(0)')
    for m in range(3): a(f'buffer_store_dwordx4 {vr(112 + 4*m, 4)}, v{vL16}, {WS}, s{sFD+m} offen sc1')
    for m in range(3): a(f's_mov_b32 s{sFD+m}, 0x80000000')
    a(f's_branch {LGE}')
    a(f'{LG}:')
    a(f's_cmp_lg_u32 s{sW}, 3'); a(f's_cbranch_scc1 {LGE}')
    S(sT, [(sJ, 4), (sFL, 1)])
    a(f'v_mov_b32 v{vT}, s{sXC}')
    a('s_mov_b64 exec, 1'); a(f'buffer_store_dword v{vT}, off, {WS}, s{sT} offset:768 sc1'); a('s_mov_b64 exec, -1')
    for k in range(4): a(f'v_mov_b32 v{12+k}, 0')
    for d in range(8):
        a(f'v_lshlrev_b32 v16, 16, v{232+d}'); a(f'v_and_b32 v17, 0xffff0000, v{232+d}')
        a('v_add_f32 v12, v12, v16'); a('v_fmac_f32 v13, v16, v16'); a('v_add_f32 v14, v14, v17'); a('v_fmac_f32 v15, v17, v17')
    a('v_add_f32 v12, v12, v14'); a('v_add_f32 v13, v13, v15')
    a('v_permlane16_swap_b32 v12, v13'); a('v_add_f32 v12, v12, v13')
    for sh in (8, 4, 2, 1): a(f'v_add_f32_dpp v12, v12, v12 row_ror:{sh} row_mask:0xf bank_mask:0xf')
    a('v_mov_b32 v13, v12'); a('v_permlane16_swap_b32 v12, v13')
    finstat(12)
    S(sT, [(sXR, 8)], S0 + S_ST + 16); a('v_lshrrev_b32 v14, 5, v0'); a(f'v_lshl_add_u32 v14, v14, 3, s{sT}')
    a('s_mov_b32 exec_lo, 1'); a('s_mov_b32 exec_hi, 1'); a('ds_write_b64 v14, v[12:13]'); a('s_mov_b64 exec, -1')
    a(f'{LGE}:')
    st.put('B', 'fmt_st')
    a(f's_setprio {cfg.uprio}')
    a.vmq = []
    signal('S')
    LFF = a.label('FF')
    a(f's_cmp_ge_u32 s{sW}, 2'); a(f's_cbranch_scc1 {LFF}')
    publish_col('FF', 0, None, 1)
    a(f'{LFF}:')
    spin('S', 8)
    st.put('B', 'S_seen')
    sW2 = 77
    spin('WC0', 4)
    S(sW2, [(sW, 131072), (sJ, 128)]); S(sT + 1, [(sW, 16384)], X0); a(f's_mov_b32 m0, s{sT+1}')
    def w2i(lo, hi):
        for i in range(lo, hi):
            if i: a('s_addk_i32 m0, 1024'); a(f's_addk_i32 s{sW2}, 8192')
            a.vm(f'buffer_load_dwordx4 v41, s[{SOUT}:{SOUT+3}], s{sW2} offen lds', 'w2')
    w2i(0, cfg.w2n)
    XT, MSR, UT, UP = 128, 136, 168, 176
    for w2 in range(4): a.lg(f'ds_read2_b32 v[{12+2*w2}:{13+2*w2}], v{vPA} offset0:{64*w2} offset1:{64*w2 + 32}', 'sp')
    for o in range(2):
        for p in range(2): a.lg(f'ds_read_b64_tr_b16 v[{XT+4*o+2*p}:{XT+1+4*o+2*p}], v{vXT} offset:{S0 + S_XT + 4096*o + 512*p}', 'xr')
    for m in range(3):
        for p in range(2): a.lg(f'ds_read_b64_tr_b16 v[{112+4*m+2*p}:{113+4*m+2*p}], v{vFT} offset:{1024*m + 512*p}', 'xr')
    a.wlg('sp')
    padd(12, 12, 16, 4, False); padd(12, 12, 14, 2, False)
    finstat(12)
    a.lg('ds_write_b64 v43, v[12:13]')
    for o in range(2):
        for k in range(4): a.lg(f'ds_read_b128 {vr(MSR + 16*o + 4*k, 4)}, v{vMS} offset:{S0 + S_ST + 16 + 256*o + 16*k}', ('ms', o))
    a.wlg('xr')
    for o in range(2):
        unpack(UT, XT + 4*o, 4)
        a.wlg(('ms', o))
        for i in range(8): a(f'v_sub_f32 v{UT+i}, v{UT+i}, v{MSR+16*o+2*i}')
        for i in range(8): a(f'v_mul_f32 v{UT+i}, v{UT+i}, v{MSR+1+16*o+2*i}')
        for d in range(4): a(f'v_cvt_pk_bf16_f32 v{UP+4*o+d}, v{UT+2*d}, v{UT+1+2*d}')
        a.vm(f'buffer_store_dwordx4 {vr(UP + 4*o, 4)}, v{vUS}, {WS}, s{sUS} offen offset:{1024*o} sc1', 'ust')
    a(f's_setprio {cfg.bprio}')
    st.put('B', 'u_stored')
    LE1, LE2_ = a.label('EX'), a.label('EX')
    a(f's_bitcmp1_b32 s{sW}, 0'); a(f's_cbranch_scc1 {LE1}')
    a(f'ds_write_b128 v{vEX}, {vr(KD + 12, 4)}')
    a(f's_branch {LE2_}')
    a(f'{LE1}:')
    for q in range(3): a(f'ds_write_b128 v{vEX}, {vr(KD + 4*q, 4)} offset:{1024*q}')
    a(f'{LE2_}:')
    signal('KY')
    w2i(cfg.w2n, 16)
    chk_issue('KY', vT)
    L = Lane(12)
    S(sT, [(sPT, 16*UPS), (sCH, 64)]); L(vUD, [(3, 3, UPS), (2, 1, 1024), (0, 2, 16)], f's{sT}')
    S(sT, [(sCH, USZ)], U0); L(tZP, [(0, 5, 16)], f's{sT}')
    a(f's_lshl_b32 s{sT+1}, s{sPT}, 8'); a(f's_sub_u32 s{sT}, s{sT}, s{sT+1}'); a(f's_add_u32 s{sT}, s{sT}, 480'); L(vCU, [(0, 4, 32), (4, 2, 16)], f's{sT}')
    L(vCT, [(0, 1, KCOPY + 4), (1, 3, 4)]); a(f's_sub_u32 s{sT}, s{sKF}, s{sT+1}'); a(f's_add_u32 s{sT}, s{sT}, {4064 - 512 - 64 + KCOPY}')
    a(f'v_sub_u32 v{vCT}, s{sT}, v{vCT}'); L(vCT, [(4, 2, 16)], f'v{vCT}')
    for m in range(1, 4): a(f'v_subrev_u32 v{vCT+m}, {1024*m}, v{vCT}')
    a(f's_lshl_b32 s{sT}, s{sCH}, 4'); a(f'v_and_b32 v{vLs}, s{sT}, v0'); a(f'v_lshl_add_u32 v{vLs}, v{vLs}, 27, v{vL16}')
    S(sT, [(sW, 8192)], CX0); a(f'v_add_u32 v{vCW}, s{sT}, v{vL16}')
    chk_wait('KY', vT, 4)
    for q in range(3): a.lg(f'ds_read_b128 {vr(KP + 4*q, 4)}, v{vEX+1} offset:{1024*q}')
    signal('KQ')
    publish_col('FU', 512, 'ust')
    st.put('B', 'u_flag')
    if cfg.cfpos == 0: spoll(0, 'CF', 3)
    a.wvm('w2'); signal('W2L')
    st.put('B', 'w2l')
    for m in range(3): a.vm(f'buffer_store_dwordx4 {vr(112 + 4*m, 4)}, v{vL16}, {WS}, s{sFD+m} offen sc1', 'f4st')
    if cfg.cfpos == 1: spoll(0, 'CF', 3)
    spin('KQ', 4)
    def expand(sp, vals, tmp):
        for i in range(4): a(f'v_cvt_pk_bf16_f32 v{tmp+i}, v{vals[7-2*i]}, v{vals[6-2*i]}')
        for i in range(4): a(f'v_cvt_pk_bf16_f32 v{tmp+4+i}, v{vals[8-2*i]}, v{vals[7-2*i]}')
        a(f'ds_write_b128 v{vKE}, {vr(tmp, 4)} offset:{1024*(3-sp)}')
        a(f'ds_write_b128 v{vKE}, {vr(tmp+4, 4)} offset:{1024*(3-sp) + KCOPY}')
    LX1, LXE = a.label('EX'), a.label('EX')
    a(f's_bitcmp1_b32 s{sW}, 0'); a(f's_cbranch_scc1 {LX1}')
    a('v_mov_b32 v12, 0')
    padd(KD, KD, KP, 12, False)
    a('s_mov_b64 exec, 1'); a(f'v_add_f32 v{KD}, s67, v{KD}'); a(f'v_cvt_pk_bf16_f32 v12, v{KD}, v12')
    a('s_mov_b64 exec, 0xffff'); a(f'ds_write_b32 v{vKT}, v12 offset:4096'); a('s_mov_b64 exec, -1')
    expand(0, [KD + i for i in range(9)], ET)
    expand(1, [KD + 9 + k for k in (0, 0, 0, 1, 1, 1, 2, 2, 2)], ET + 8)
    a(f's_branch {LXE}')
    a(f'{LX1}:')
    a('s_mov_b32 vcc_lo, 0xaaaaaaaa'); a('s_mov_b32 vcc_hi, vcc_lo')
    padd(KD + 12, KD + 12, KP, 4, False)
    for s_ in range(2):
        lo, hi = KD + 12 + 2*s_, KD + 13 + 2*s_
        a(f'v_cndmask_b32 v12, v{lo}, v{hi}, vcc')
        expand(2 + s_, [lo, lo, lo, lo, 12, hi, hi, hi, hi], ET + 8*s_)
    a(f'{LXE}:')
    st.put('B', 'kexp')
    def ldT(i, nxt):
        t = TR(i); o = (128 if i % 2 == 0 else 0) + (0 if nxt else 16)
        a.lg(f'ds_read2_b32 v[{t}:{t+1}], v{vCT + i//2} offset0:{o} offset1:{o+1}', ('T', i))
        a.lg(f'ds_read2_b32 v[{t+2}:{t+3}], v{vCT + i//2} offset0:{o+2} offset1:{o+3}', ('T', i))
    def ldU(jq): a.lg(f'ds_read_b128 {vr(UF + 4*jq, 4)}, v{vCU} offset:{512*jq}', ('U', jq))
    a(f's_lshl_b32 s{sT}, s{sJP}, 12'); a(f's_add_u32 s{sW3}, s{sW3}, s{sT}')
    if cfg.now3: a(f's_mov_b32 s{sW3}, 0x80000000')
    iss = [0]
    NFR = 36
    G, SEL, CSS, CSF = 8, 12, 16, 20
    def mksel():
        a('s_mov_b32 vcc_lo, 0xaaaa5555'); a('s_mov_b32 vcc_hi, vcc_lo'); a(f'v_mov_b32 v{SEL}, s{sK+4}')
        for i in range(3, -1, -1): a(f'v_cndmask_b32 v{SEL+i}, 0, v{SEL}, vcc')
    def csm(f): M16(CSS if f < 16 else CSF, SEL, W3F + 4*f, None if f in (0, 16) else (CSS if f < 16 else CSF))
    csd = [0]
    def csupto(n):
        while csd[0] < n:
            a.wvm(('w3', csd[0])); csm(csd[0]); csd[0] += 1
    def w3more(n=1, thr=False):
        for _ in range(n):
            f = iss[0]; iss[0] += 1
            if thr and f >= cfg.la3: csupto(f - cfg.la3 + 1)
            if f and f % 4 == 0:
                a(f's_xor_b32 s{sW3}, s{sW3}, 4096')
                if f % 8 == 0: a(f's_addk_i32 s{sW3}, 8192')
            a.vm(f'buffer_load_dwordx4 {vr(W3F + 4*f, 4)}, v{vLs if f < 16 else vL16}, {WS}, s{sW3} offen offset:{1024*(f % 4)} sc1', ('w3', f))
    signal('KE')
    a(f'v_mov_b32 v24, v{tZP}')
    S(sT, [(sW, 256)], S0 + S_CS3); a(f'v_lshl_add_u32 v7, v0, 2, s{sT}')
    for i in range(32): a(f'v_mov_b32 v{CACC+i}, 0')
    a(f's_mov_b32 m0, s{sM0U}')
    mksel()
    spin('CF', 1)
    st.put('B', 'fmt_seen')
    w3more(cfg.la3)
    publish_col('F4', 1536, 'f4st')
    w3more(cfg.w3a - cfg.la3, True)
    spoll(512, 'CU', 1)
    w3more(cfg.w3b, True)
    spin('W', 4)
    a.lg(f'ds_write_b128 v24, {vr(CACC, 4)}')
    st.put('B', 'u_poll')
    spin('CU', 1)
    st.put('B', 'u_seen')
    a.vm(f'buffer_load_dwordx4 v{vUD}, {WS}, s{sUL} offen sc1 lds', 'u')
    a('s_addk_i32 m0, 1024'); a(f's_add_u32 s{sUL}, s{sUL}, {8*UPS}')
    a.vm(f'buffer_load_dwordx4 v{vUD}, {WS}, s{sUL} offen sc1 lds', 'u')
    assert iss[0] >= 17
    spin('KE', 4)
    for q in range(4): ldT(7 - q, False)
    csupto(iss[0])
    a('s_mov_b64 exec, 0xffff'); a.lg(f'ds_write2_b32 v7, v{CSS}, v{CSS+1} offset0:0 offset1:16'); a('s_mov_b64 exec, -1')
    a(f'v_mov_b32 v60, v{CSF}'); a(f'v_mov_b32 v61, v{CSF+1}')
    for q in range(4, 8): ldT(7 - q, False)
    a.wvm('u'); bbar()
    st.put('B', 'conv_go')
    a(f's_setprio {cfg.cprio}')
    for q in range(8): ldU(q)
    a(f'v_subrev_u32 v{vCU}, 64, v{vCU}')
    a('s_waitcnt lgkmcnt(4)')
    for it in range(4):
        w3more(min(cfg.w3d, NFR - iss[0]))
        if it == 2:
            a('v_lshrrev_b32 v62, 3, v0'); a('v_mul_u32_u24 v62, 96, v62'); a('v_lshl_add_u32 v62, v0, 2, v62')
            cp_issue(1536, 5, 62, 'c4')
        if not cfg.noconv or it == 0: a(f's_call_b64 s[{sRET}:{sRET+1}], L_conv')
    st.put('B', 'conv_done')
    nconv = iss[0]
    a('s_nop 1')
    for q in range(8): a.lg(f'ds_write_b128 v{vCW}, {vr(CACC + 4*q, 4)} offset:{1024*q}')
    cp_check(1536, 5, 62, 'c4')
    signal('W3I')
    a.lg(f'ds_read_b32 v5, v{vS} offset:{CN["MODE"]}')
    vGK, vGO, vGE, vGS, vGF, vGC = 8, 9, 10, 11, 6, 7
    S(sT, [(sPT, 32768 + 4096)], W0); a(f'v_add_u32 v{vGK}, s{sT}, v{vL16}'); a(f'v_xor_b32 v{vGO}, 0x1000, v{vGK}')
    S(sT, [(sW, 8192)], E30); a(f'v_add_u32 v{vGE}, s{sT}, v{vL16}')
    a(f'v_and_b32 v{vGS}, 31, v0'); a(f'v_lshlrev_b32 v{vGS}, 3, v{vGS}')
    a(f'v_add_u32 v{vGF}, {W0}, v{vL16}')
    a.lg0()
    w3more(cfg.w3e)
    a(f'v_readfirstlane_b32 s{sMODE}, v5')
    mksel()
    a(f'v_lshrrev_b32 v5, 5, v0'); S(sT, [(sW, 256)], S0 + S_CS3 + 128); a(f'v_lshl_add_u32 v5, v5, 4, s{sT}')
    a(f'v_mov_b32 v{CSF}, v60'); a(f'v_mov_b32 v{CSF+1}, v61')
    csupto(nconv)
    st.put('B', 'b_rdy')
    AK, AO, FR = 28, 44, [16, 24, 60]
    spin('X0', 4)
    a('s_setprio 2')
    st.put('B', 'g3_start')
    so = [8*a_ + 4*(c >> 1) + 2*(c & 1) + r for c in range(4) for a_ in range(2) for r in range(2)]
    AF, CSV, GT, MS = 64, 80, 96, 102
    items = [('S', f, o) for f in so for o in range(2)] + [('F', n, th) for th in range(2) for n in range(32)]
    pool = list(FR); slot = {}; nr = [0]
    def rd(cur):
        while pool and nr[0] < 96 and nr[0] <= cur + cfg.lag:
            n = nr[0]
            if n == 8: chk_wait('XA0', vT, 4); chk_issue('XA', vT)
            if n == 16: chk_wait('XA', vT, 4)
            k_, f, o = items[n]; slot[n] = pool.pop(0); nr[0] += 1
            if k_ == 'S': a.lg(f'ds_read_b128 {vr(slot[n], 4)}, v{vGO if o else vGK} offset:{8192*(f >> 2) + 1024*(f & 3)}', ('s', n))
            else: a.lg(f'ds_read_b128 {vr(slot[n], 4)}, v{vGF} offset:{8192*(f >> 2) + 4096*o + 1024*(f & 3)}', ('s', n))
    def emit(x):
        if isinstance(x, tuple):
            if x[0] == 'vm': a.vm(x[1], x[2])
            elif x[0] == 'lg': a.lg(x[1], x[2])
            elif x[0] == 'wlg': a.wlg(x[1])
            else: x[1]()
        else: a(x)
    cost = lambda x: 1 if isinstance(x, tuple) or x.startswith('s_') else (2 if x.startswith(TRANS) else 1)
    dump = [f'ds_write_b128 v{vGE}, {vr(AK + 4*q, 4)} offset:{1024*q}' for q in range(8)]
    pend = gelu16(AF, CSV, GT, MS, [(sH2, 0, 'h2a'), (sH2, 1024, 'h2a')]); per = sum(cost(x) for x in pend) / cfg.f1span; credit = 0
    rd(0)
    for n in range(96):
        k_, f, o = items[n]
        if n == 1: chk_issue('XA0', vT)
        if n == 56: chk_issue('ST', vT)
        if n == 62: chk_wait('ST', vT, 4)
        if k_ == 'F' and o == 0: a.wvm(('w3', 16 + f))
        a.wlg(('s', min(n + 1, nr[0] - 1) if (n >= 8 and n % 2 == 0) else n))
        if k_ == 'S':
            acc_ = AO if o else AK
            M32(acc_, W3F + 4*f, slot[n], None if n < 2 else acc_)
            if slot[n] < 64 or slot[n] >= 104 or n < 22: pool.append(slot[n])
            if o and (f >= 10 or n < 12): pool.append(W3F + 4*f)
            if n == 22: pool[:] = [p_ for p_ in pool if p_ < 64 or p_ >= 104]
            if n % 3 == 2 and iss[0] < 48: w3more()
        else:
            acc_ = AO if o else AF
            M32(acc_, W3F + 64 + 4*f, slot[n], None if f == 0 else acc_)
            pool.append(slot[n])
            if o == 0 and 16 + f >= nconv: csm(16 + f)
            if o == 0 and f >= 1 and dump:
                for _ in range(cfg.dper): a.lg(dump.pop(0))
                if not dump: signal('E3')
            if o == 1 and f == 1:
                a('s_mov_b64 exec, 0xffff'); a.lg(f'ds_write2_b32 v{vGC}, v{CSF}, v{CSF+1} offset0:32 offset1:48'); a('s_mov_b64 exec, -1')
                for q in range(4): a.lg(f'ds_read_b128 {vr(CSV + 4*q, 4)}, v5 offset:{32*q}', 'ex3')
                a.lg(f'ds_read_b64 v[{MS}:{MS+1}], v{vGS} offset:{S0 + S_ST3}', 'ex3')
            if o == 1 and f == 4: a.wlg('ex3')
            if o == 1 and f >= 4:
                credit += per
                while pend and credit >= cost(pend[0]) - 0.5:
                    credit -= cost(pend[0]); emit(pend.pop(0))
        rd(n + 1)
        if n % 32 == 31:
            if n == 95:
                while pend: emit(pend.pop(0))
            st.put('B', f'p{n // 32}')
    assert iss[0] == 48
    for n in range(31, 96): assert slot[n] < 64 or slot[n] >= 104, (n, slot[n])
    a.lg(f'ds_read_b64 v[{MS}:{MS+1}], v{vGS} offset:{S0 + S_ST3 + 256}'); a.lg0()
    a('v_lshlrev_b32 v27, 7, v0')
    tail = gelu16(AO, CSV, GT, MS, [(sH2 + 1, 0, 'h2b'), (sH2 + 1, 1024, 'h2b')], pk=cfg.tailpk)
    k = int(len(tail) * cfg.aflag)
    for x in tail[:k]: emit(x)
    flag(sFO, 384, 'h2a', False, (0xffff, f'buffer_load_dword v25, v27, {WS}, s{sH2} offen sc1'))
    st.put('B', 'h2a_flag')
    for x in tail[k:]: emit(x)
    st.put('B', 'h2_stored')
    X1R, XR, SR_, Z = 128, 144, 160, 176
    sTB, sNT, sO = sT, sT + 1, sT + 2
    a(f's_and_b32 s{sTB}, s{sW}, 1'); a(f's_lshr_b32 s{sNT}, s{sW}, 1')
    a('v_and_b32 v20, 15, v0'); a('v_lshrrev_b32 v21, 4, v0')
    a('v_lshrrev_b32 v22, 5, v0'); a('v_lshlrev_b32 v22, 10, v22'); a('v_lshl_add_u32 v22, v20, 4, v22')
    a('v_and_b32 v23, 1, v21'); a('v_lshl_add_u32 v22, v23, 3, v22')
    a(f's_andn2_b32 s{sT+8}, s{sJ}, 1')
    S(sT + 8, [(sT + 8, 8192), (sNT, 2048), (sTB, 256)], W0); a(f'v_add_u32 v22, s{sT+8}, v22')
    for th in range(2):
        for h in range(2): a.lg(f'ds_read_b64 v[{64+4*th+2*h}:{65+4*th+2*h}], v22 offset:{4096*th + 512*h}', 'pr')
    a('v_lshlrev_b32 v23, 7, v20'); a('v_lshl_add_u32 v23, v21, 4, v23')
    S(sT + 8, [(sTB, 2048), (sNT, 64)]); a(f'v_add_u32 v23, s{sT+8}, v23')
    for th in range(2): a.lg(f'ds_read_b128 {vr(72 + 4*th, 4)}, v23 offset:{S0 + S_XT + 4096*th}', 'pr')
    a('v_bfe_u32 v24, v0, 2, 2'); a('v_lshl_add_u32 v24, v21, 3, v24'); a('v_lshlrev_b32 v24, 7, v24')
    a('v_and_b32 v16, 3, v0'); a('v_lshl_add_u32 v24, v16, 3, v24')
    S(sT + 8, [(sNT, 4096), (sTB, 32)]); a(f'v_add_u32 v24, s{sT+8}, v24')
    a('v_lshlrev_b32 v16, 4, v20'); a('v_lshl_add_u32 v16, v21, 10, v16')
    S(sT + 8, [(sNT, 4096), (sTB, 256)], X0); a(f'v_add_u32 v16, s{sT+8}, v16')
    a('v_lshlrev_b32 v17, 10, v20'); a('v_lshl_add_u32 v17, v21, 4, v17')
    S(sO, [(sC, 65536), (sTB, 16384), (sJ, 128), (sNT, 64)])
    srd(SOUT, 0, 2097152)
    flag(sFO, 512, 'h2b', False, (0xffff, f'buffer_load_dword v26, v27, {WS}, s{sH2+1} offen sc1'))
    a('s_setprio 0')
    st.put('B', 'h2_flag')
    spoll(1024, 'CS')
    a('v_lshrrev_b32 v18, 3, v0'); a(f'v_mul_u32_u24 v18, {SRS - 128}, v18'); a(f'v_add_u32 v18, v18, v{vL16}')
    S(sT + 3, [(sJ, 64*SRS), (sC, 128), (sW, 16*SRS)], WS_ST)
    a(f's_lshl_b32 s{sT+8}, s{sW}, 11'); a(f's_add_u32 m0, s{sT+8}, {S0 + S_KF}')
    spin('CS', 1)
    st.put('B', 's_seen')
    a.vm(f'buffer_load_dwordx4 v18, {WS}, s{sT+3} offen sc1 lds', 'sd')
    a('s_addk_i32 m0, 1024'); a(f's_add_u32 s{sT+3}, s{sT+3}, {8*SRS}')
    a.vm(f'buffer_load_dwordx4 v18, {WS}, s{sT+3} offen sc1 lds', 'sd')
    unpack(X1R, 64, 8); unpack(XR, 72, 8)
    a.vm0(); bbar()
    for th in range(2):
        for p in range(2): a.lg(f'ds_read_b64_tr_b16 v[{80+4*th+2*p}:{81+4*th+2*p}], v24 offset:{S0 + S_KF + 512*p + 64*th}')
    a.lg0()
    unpack(SR_, 80, 8)
    a(f's_mov_b32 s{sK+6}, {hx(-LOG2E)}'); a(f's_mov_b32 s{sK+7}, {hx(-LOG2E)}')
    st.put('B', 'prep')
    a(f's_setprio {cfg.oprio}')
    for th in range(2):
        spin('D4a' if th == 0 else 'D4b', 4)
        for w2 in range(4):
            for h in range(2): a.lg(f'ds_read_b128 {vr(Z + 8*w2 + 4*h, 4)}, v16 offset:{8192*th + 16384*w2 + 512*h}', ('z', w2))
        z = X1R + 8 * th
        pk = th == 1
        for w2 in range(4):
            a.wlg(('z', w2)); padd(z, z, Z + 8*w2, 8, pk)
        t = Z
        if pk:
            for i in range(0, 8, 2): a(f'v_pk_mul_f32 v[{t+i}:{t+i+1}], v[{z+i}:{z+i+1}], s[{sK+6}:{sK+7}]')
            for i in range(8): a(f'v_exp_f32 v{t+i}, v{t+i}')
            for i in range(0, 8, 2): a(f'v_pk_add_f32 v[{t+i}:{t+i+1}], v[{t+i}:{t+i+1}], 1.0 op_sel_hi:[1,0]')
            for i in range(0, 8, 2): a(f'v_pk_mul_f32 v[{z+i}:{z+i+1}], v[{z+i}:{z+i+1}], v[{SR_+8*th+i}:{SR_+8*th+i+1}]')
            for i in range(8): a(f'v_rcp_f32 v{t+i}, v{t+i}')
            for i in range(0, 8, 2): a(f'v_pk_fma_f32 v[{z+i}:{z+i+1}], v[{z+i}:{z+i+1}], v[{t+i}:{t+i+1}], v[{XR+8*th+i}:{XR+8*th+i+1}]')
        else:
            for i in range(8): a(f'v_mul_f32 v{t+i}, s{sK+6}, v{z+i}')
            for i in range(8): a(f'v_exp_f32 v{t+i}, v{t+i}')
            for i in range(8): a(f'v_add_f32 v{t+i}, 1.0, v{t+i}')
            for i in range(8): a(f'v_mul_f32 v{z+i}, v{z+i}, v{SR_+8*th+i}')
            for i in range(8): a(f'v_rcp_f32 v{t+i}, v{t+i}')
            for i in range(8): a(f'v_fma_f32 v{z+i}, v{z+i}, v{t+i}, v{XR+8*th+i}')
        for i in range(4): a(f'v_cvt_pk_bf16_f32 v{88+4*th+i}, v{z+2*i}, v{z+2*i+1}')
        if th == 1: a(f's_add_u32 s{sO}, s{sO}, 0x8000')
        a.vm(f'buffer_store_dwordx4 {vr(88 + 4*th, 4)}, v17, s[{SOUT}:{SOUT+3}], s{sO} offen {cfg.out_fl}')
        st.put('B', f'out{th}')
    LE2 = a.label('EP')
    a(f's_add_u32 s{sT}, s2, s{sW}'); a(f's_cmp_lg_u32 s{sT}, 0'); a(f's_cbranch_scc1 {LE2}')
    a('s_mov_b64 exec, 1'); a(f'v_mov_b32 v{vT}, s{sEP}')
    a(f'buffer_store_dword v{vT}, off, {WS}, 0 sc1')
    a('s_mov_b64 exec, -1')
    a(f'{LE2}:')
    st.flush('B')
    a('s_endpgm')
    a('L_conv:')
    a.reset()
    a('s_waitcnt lgkmcnt(12)')
    for i in range(7, 3, -1):
        for jq in range(0, 8 - i): M16(CACC + 4*(i + jq), TR(i), UF + 4*jq, CACC + 4*(i + jq))
        ldT(i, True)
    a(f's_waitcnt lgkmcnt({len(a.lgq)})')
    for jq in range(8):
        for i in range(3, -1, -1):
            if i + jq <= 7: M16(CACC + 4*(i + jq), TR(i), UF + 4*jq, CACC + 4*(i + jq))
        ldU(jq)
        if jq >= 4: ldT(7 - jq, True)
    a(f'v_subrev_u32 v{vCU}, 64, v{vCU}')
    for m in range(4): a(f'v_subrev_u32 v{vCT+m}, 64, v{vCT+m}')
    a(f's_setpc_b64 s[{sRET}:{sRET+1}]')
    a('L_codeend:')

def build(path):
    prologue(); role_A(); role_B()
    body, npad = a.finalize()
    K = NAME + '_kernel'
    hdr = open('cdna_kernels/' + NAME + '.s.ref').read().split('; Override launch geometry')[0]
    o = hdr + '; @launch grid=(256,1,1) block=(512,1,1) lds=163840\n'
    o += f'.amdgcn_target "amdgcn-amd-amdhsa--gfx950"\n.text\n.globl {K}\n.p2align 8\n.type {K},@function\n{K}:\n'
    o += '\n'.join(('' if l.endswith(':') else '  ') + l for l in body) + '\n'
    o += f""".section .rodata,"a"
.p2align 6
.amdhsa_kernel {K}
  .amdhsa_next_free_vgpr 256
  .amdhsa_next_free_sgpr 102
  .amdhsa_accum_offset 256
  .amdhsa_group_segment_fixed_size 0
  .amdhsa_kernarg_size 136
  .amdhsa_user_sgpr_count 2
  .amdhsa_user_sgpr_kernarg_segment_ptr 1
  .amdhsa_system_sgpr_workgroup_id_x 1
.end_amdhsa_kernel
"""
    open(path, 'w').write(o)
    json.dump(st.names, open(path + '.stamps.json', 'w'))
    print('instrs', len(body), 'pads', npad)

if __name__ == '__main__':
    out = sys.argv[1]
    for kv in sys.argv[2:]:
        k, v = kv.split('=', 1); setattr(cfg, k, eval(v))
    build(out)
```

```python
import sys, math, struct, json
from asmlib import *
NAME = 'recurrent_scan__ssm_conv_s4__mixer_s_mlp__prompt'
def f2u(x): return struct.unpack('<I', struct.pack('<f', x))[0]
def hx(x): return hex(f2u(x))

class Cfg:
    stamps = False
    xev = 30
    laa = 8
    pumps = 2
    pumpb = 12
    la1 = 8
    la2 = 6
    dper = 2
    w4b = 2
    fsearly = True
    w4stop = 1000
    oprio = 0
    g1sync = (1, 3)
    g2sync = (0, 1, 3)
    w2pre = 0
    la3 = 8
    w3a = 12
    w3b = 8
    w3d = 4
    w3f = 6
    la4 = 5
    s_ks = 16
    psleep = 0
    csleep = 2
    touch_nt = 'nt'
    touch = False
    out_fl = ''
    uprio = 3
    bprio = 3
    force_slow = False
    f1span = 24
    lag = 6
    w3e = 4
    w4a = 3
    w4ev = 12
    tailpk = True
    hx = 'sc1'
    ptouch = 'f'
    h2p = False
    aprio = 1
    g4prio = 1
    pbf = 5
    cfpos = 0
    w2pos = 8
    f4early = True
    cprio = 0
    rt = False
    ssleep = 0
    w1l2 = False
    w4first = False
    w4s = False
    f4fl = 'nt'
    fpos = 16
    w2first = True
    now3 = False
    now4 = False
    noconv = False
    w2l2 = True
    aflag = 0.5
    gbound = 200000
    lbound = 1000000
cfg = Cfg()

S0, W0, X0 = 0, 32768, 98304
S_KF, S_XT, S_STP, S_CS1, S_ST, S_ST3, S_CS3, S_CNT = 0, 16640, 24832, 26880, 27904, 28480, 28992, 30016
CN = {n: S_CNT + 4 * i for i, n in enumerate(
    ['S', 'SA', 'XA0', 'XA1', 'KW', 'KR', 'WC0', 'WC1', 'WC2', 'WC3', 'G1', 'W2I', 'W2L', 'W', 'HC0', 'HC1', 'HC2', 'HC3', 'X0', 'XA',
     'B', 'STAT', 'FF', 'FU', 'F4', 'FS', 'D4a', 'D4b', 'MODE', 'CS4', 'W3I', 'E3', 'KY', 'CF', 'CU', 'CS', 'ST', 'KQ', 'KE'])}
U0, USZ, KCOPY = X0 + 49152, 4608, 4160
CX0 = X0
E30 = X0 + 32768
KROW, KSZ = 528, 16896
KB0 = W0 + 65536 - 2 * KSZ
FSCR = S0 + 30720
WS_FLAG = 0x10000
WS_CFLAG = 0x8000
WS_XS = 0x40000
WS_H, WS_X1, WS_H2, WS_UT, WS_ST, WS_W3, WS_W4, WS_STAMP = 0x100000, 0x300000, 0x500000, 0xA80000, 0xCC0000, 0xF00000, 0x1080000, 0x1400000
UPS, SRS = 8320, 4224
H2C, FMT = 2 * 88 * 1024, 196608
sW, sJ, sC, sIDX, sDEL = 3, 4, 5, 6, 7
SX, SW1, SW2, SW3, SWS, SOUT = 8, 12, 16, 20, 28, 32
sMODE, sFL, sCFO, sCPB = 24, 25, 26, 27
sEP = 68
sT = 70
sK = 80
sRET, sWSP, sTAB, sST = 88, 90, 92, 94
EPS = 1e-5
LOG2E = math.log2(math.e)
GA = 2 * math.sqrt(2 / math.pi) * LOG2E
GB = GA * 0.044715
ALPHA = GB ** (1 / 3)
GK = GA / ALPHA
WS = f's[{SWS}:{SWS+3}]'

a = Asm()
vL, vS, vOne, vT = 0, 1, 2, 3

class Stamps:
    def __init__(self): self.names = {'A': [], 'B': []}
    def put(self, role, name):
        if not cfg.stamps: return
        i = len(self.names[role]); self.names[role].append(name)
        if i > 0: a(f'v_writelane_b32 v{vOne}, s{sST + 2*((i-1) & 1)}, {i + 1}')
        r = sST + 2 * (i & 1)
        a(f's_mem{"real" if cfg.rt else ""}time s[{r}:{r+1}]')
    def flush(self, role):
        if not cfg.stamps: return
        a('s_memrealtime s[8:9]'); a('s_memtime s[10:11]')
        a('s_waitcnt lgkmcnt(0)')
        a(f'v_writelane_b32 v{vOne}, s8, 62'); a(f'v_writelane_b32 v{vOne}, s10, 61')
        i = len(self.names[role])
        a(f'v_writelane_b32 v{vOne}, s{sST + 2*((i-1) & 1)}, {i + 1}')
        a(f'v_writelane_b32 v{vOne}, s98, 1')
        a(f'v_writelane_b32 v{vOne}, s100, 63')
        a('v_lshlrev_b32 v5, 2, v0')
        a(f's_lshl_b32 s{sT}, s2, 11'); a(f's_lshl_b32 s{sT+1}, s{sW}, 8'); a(f's_add_u32 s{sT}, s{sT}, s{sT+1}')
        a(f's_add_u32 s{sT}, s{sT}, {WS_STAMP + (1024 if role == "B" else 0)}')
        a(f'buffer_store_dword v{vOne}, v5, {WS}, s{sT} offen sc1')
st = Stamps()

def S(dst, terms, const=0):
    first = True
    for r, m in terms:
        t = dst if first else sT + 9
        if m == 1: src = f's{r}'
        else:
            if m & (m - 1) == 0: a(f's_lshl_b32 s{t}, s{r}, {m.bit_length()-1}')
            else: a(f's_mul_i32 s{t}, s{r}, {m}')
            src = f's{t}'
        if first:
            if m == 1:
                if const: a(f's_add_u32 s{dst}, {src}, {const & 0xffffffff}'); const = 0
                elif r != dst: a(f's_mov_b32 s{dst}, {src}')
            first = False
        else: a(f's_add_u32 s{dst}, s{dst}, {src}')
    if const: a(f's_add_u32 s{dst}, s{dst}, {const & 0xffffffff}')

def srd(d, b, n):
    a(f's_mov_b32 s{d}, s{b}'); a(f's_mov_b32 s{d+1}, s{b+1}'); a(f's_mov_b32 s{d+2}, {n}'); a(f's_mov_b32 s{d+3}, 0x20000')

def signal(cn):
    a('s_mov_b64 exec, 1'); a.lg(f'ds_add_u32 v{vS}, v{vOne} offset:{CN[cn]}'); a('s_mov_b64 exec, -1')

def spin(cn, target, sleep=0, base=None):
    L = a.label('SP'); E = a.label('SPE')
    a(f's_mov_b32 s{sT+9}, {cfg.lbound}')
    a(f'{L}:')
    a(f'ds_read_b32 v{vT}, v{vS if base is None else base} offset:{CN[cn]}')
    a('s_waitcnt lgkmcnt(0)')
    a(f'v_readfirstlane_b32 s{sT+8}, v{vT}')
    a(f's_cmp_ge_u32 s{sT+8}, {target}')
    a(f's_cbranch_scc1 {E}')
    if sleep or cfg.ssleep: a(f's_sleep {max(sleep, cfg.ssleep)}')
    a(f's_sub_u32 s{sT+9}, s{sT+9}, 1')
    a(f's_cbranch_scc0 {L}')
    a(f'{E}:')
    a.lgq = []

def chk_issue(cn, v):
    a.lg(f'ds_read_b32 v{v}, v{vS} offset:{CN[cn]}', ('chk', cn))
def chk_wait(cn, v, target):
    LOK = a.label('OK')
    a.wlg(('chk', cn))
    a(f'v_readfirstlane_b32 s{sT+8}, v{v}'); a(f's_cmp_ge_u32 s{sT+8}, {target}'); a(f's_cbranch_scc1 {LOK}')
    saved = list(a.lgq)
    spin(cn, target)
    a.lgq = saved
    a(f'{LOK}:')

def publish_col(cn, off, tag=None, last=3):
    E = a.label('PB')
    if tag is None: a.vm0()
    else: a.wvm(tag)
    a('s_mov_b64 exec, 1')
    a(f'ds_add_rtn_u32 v{vT}, v{vS}, v{vOne} offset:{CN[cn]}')
    a.lg0()
    a(f'v_readfirstlane_b32 s{sT+8}, v{vT}')
    a(f's_cmp_eq_u32 s{sT+8}, {last}')
    a(f's_cbranch_scc0 {E}')
    a(f'v_mov_b32 v{vT}, s{sEP}')
    a(f'buffer_store_dword v{vT}, off, {WS}, s{sCFO} offset:{off} sc1')
    a(f'{E}:')
    a('s_mov_b64 exec, -1')

def flag(sown, off, tag, release, touch=None):
    LS, LE = a.label('FS'), a.label('FE')
    a.wvm(tag)
    a(f'v_mov_b32 v{vT}, s{sEP}')
    a('s_mov_b64 exec, 1')
    a(f's_cmp_lg_u32 s{sMODE}, 1'); a(f's_cbranch_scc1 {LS}')
    a(f'buffer_store_dword v{vT}, off, {WS}, s{sown} offset:{off}')
    a(f's_branch {LE}')
    a(f'{LS}:')
    if release: a('buffer_wbl2 sc1'); a('s_waitcnt vmcnt(0)')
    a(f'buffer_store_dword v{vT}, off, {WS}, s{sown} offset:{off} sc1')
    a(f'{LE}:')
    a.vmq.append('flag')
    if touch and cfg.touch:
        mask, ins = touch
        a(f's_mov_b32 exec_lo, {mask if isinstance(mask, str) else hex(mask)}')
        a.vm(ins, 'touch')
    a('s_mov_b64 exec, -1')

def pollc(sbase, off, nl, vl4, v, sleep=None):
    L = a.label('PL'); E = a.label('PLE'); LF = a.label('PLF')
    sleep = cfg.psleep if sleep is None else sleep
    a(f's_mov_b32 s{sT+9}, {cfg.gbound}')
    a(f's_mov_b64 exec, {hex((1 << nl) - 1)}') if nl < 32 else a('s_mov_b32 exec_hi, 0')
    a(f'{L}:')
    a(f'buffer_load_dword v{v}, v{vl4}, {WS}, s{sbase} offen offset:{off} sc1')
    a('s_waitcnt vmcnt(0)')
    a(f'v_cmp_ne_u32 vcc, s{sEP}, v{v}')
    a(f's_cbranch_vccz {E}')
    if sleep: a(f's_sleep {sleep}')
    a(f's_sub_u32 s{sT+9}, s{sT+9}, 1')
    a(f's_cbranch_scc0 {L}')
    a(f'{E}:')
    a('s_mov_b64 exec, -1')
    a(f's_cmp_eq_u32 s{sMODE}, 1'); a(f's_cbranch_scc1 {LF}')
    a('buffer_inv sc1'); a('s_waitcnt vmcnt(0)')
    a(f'{LF}:')
    a.vmq = []

def cp_issue(off, v, va, tag):
    a('s_mov_b32 exec_hi, 0'); a.vm(f'buffer_load_dword v{v}, v{va}, {WS}, s{sCPB} offen offset:{off} sc1', tag); a('s_mov_b32 exec_hi, -1')
def cp_check(off, v, va, tag):
    L = a.label('CP'); E = a.label('CPE')
    a.wvm(tag)
    a(f's_mov_b32 s{sT+9}, {cfg.gbound}')
    a('s_mov_b32 exec_hi, 0')
    a(f'{L}:')
    a(f'v_cmp_ne_u32 vcc, s{sEP}, v{v}')
    a(f's_cbranch_vccz {E}')
    a(f's_sleep {cfg.csleep}')
    a(f'buffer_load_dword v{v}, v{va}, {WS}, s{sCPB} offen offset:{off} sc1')
    a('s_waitcnt vmcnt(0)')
    a(f's_sub_u32 s{sT+9}, s{sT+9}, 1')
    a(f's_cbranch_scc0 {L}')
    a(f'{E}:')
    a('s_mov_b32 exec_hi, -1')

ZONE = [8, 16, 52, 60]
def spoll(off, cn, wave=0, ZONE=ZONE):
    L = a.label('SC'); E = a.label('SCE'); X = a.label('SCX')
    a(f's_cmp_lg_u32 s{sW}, {wave}'); a(f's_cbranch_scc1 {X}')
    a(f's_add_u32 s92, s{sWSP}, s{sCPB}'); a(f's_addc_u32 s93, s{sWSP+1}, 0')
    a(f's_mov_b32 s{sT+9}, {cfg.gbound}')
    a(f'{L}:')
    for k in range(4): a(f's_load_dwordx8 s[{ZONE[k]}:{ZONE[k]+7}], s[92:93], {off + 128*k} glc')
    a('s_waitcnt lgkmcnt(0)')
    prs = [z + 2*i for z in ZONE for i in range(4)]
    for p in prs: a(f's_xor_b64 s[{p}:{p+1}], s[{p}:{p+1}], s[{sEP}:{sEP+1}]')
    for p in prs[1:]: a(f's_or_b64 s[8:9], s[8:9], s[{p}:{p+1}]')
    a(f's_cbranch_scc0 {E}')
    a(f's_sleep {cfg.csleep}')
    a(f's_sub_u32 s{sT+9}, s{sT+9}, 1')
    a(f's_cbranch_scc0 {L}')
    a(f'{E}:')
    n = len(a.lgq); signal(cn); del a.lgq[n:]
    a(f'{X}:')

def gelu_ops(p, t, dst, pk):
    o = []
    if pk:
        o.append(f'v_pk_fma_f32 v[{t}:{t+1}], v[{p}:{p+1}], v[{p}:{p+1}], s[{sK}:{sK+1}]')
        o.append(f'v_pk_mul_f32 v[{t}:{t+1}], v[{t}:{t+1}], v[{p}:{p+1}]')
    else:
        for i in range(2): o.append(f'v_fma_f32 v{t+i}, -v{p+i}, v{p+i}, -s{sK}')
        for i in range(2): o.append(f'v_mul_f32 v{t+i}, v{t+i}, v{p+i}')
    for i in range(2): o.append(f'v_exp_f32 v{t+i}, {"-" if pk else ""}v{t+i}')
    if pk: o.append(f'v_pk_fma_f32 v[{t}:{t+1}], v[{t}:{t+1}], s[{sK+2}:{sK+3}], s[{sK+2}:{sK+3}]')
    else:
        for i in range(2): o.append(f'v_fma_f32 v{t+i}, v{t+i}, s{sK+2}, s{sK+2}')
    for i in range(2): o.append(f'v_rcp_f32 v{t+i}, v{t+i}')
    if pk: o.append(f'v_pk_mul_f32 v[{t}:{t+1}], v[{t}:{t+1}], v[{p}:{p+1}]')
    else:
        for i in range(2): o.append(f'v_mul_f32 v{t+i}, v{t+i}, v{p+i}')
    o.append(f'v_cvt_pk_bf16_f32 v{dst}, v{t}, v{t+1}')
    return o

def interleave(lists):
    out = []; n = max(len(l) for l in lists)
    for i in range(n):
        for l in lists:
            if i < len(l): out.append(l[i])
    return out

def padd(d, x, y, n, pk=True):
    if pk:
        for i in range(0, n, 2): a(f'v_pk_add_f32 v[{d+i}:{d+i+1}], v[{x+i}:{x+i+1}], v[{y+i}:{y+i+1}]')
    else:
        for i in range(n): a(f'v_add_f32 v{d+i}, v{x+i}, v{y+i}')

def unpack(dst, src, n):
    for d in range(n):
        a(f'v_lshlrev_b32 v{dst+2*d}, 16, v{src+d}'); a(f'v_and_b32 v{dst+2*d+1}, 0xffff0000, v{src+d}')

def finstat(m):
    a(f'v_mul_f32 v{m}, {hx(1/512)}, v{m}'); a(f'v_mul_f32 v{m+1}, {hx(1/512)}, v{m+1}')
    a(f'v_fma_f32 v{m+1}, -v{m}, v{m}, v{m+1}'); a(f'v_max_f32 v{m+1}, 0, v{m+1}'); a(f'v_add_f32 v{m+1}, {hx(EPS)}, v{m+1}')
    a(f'v_rsq_f32 v{m+1}, v{m+1}')

def M32(d, x, y, c): a(f'v_mfma_f32_32x32x16_bf16 {vr(d, 16)}, {vr(x, 4)}, {vr(y, 4)}, {"0" if c is None else vr(c, 16)}')
def M16(d, x, y, c): a(f'v_mfma_f32_16x16x32_bf16 {vr(d, 4)}, {vr(x, 4)}, {vr(y, 4)}, {"0" if c is None else vr(c, 4)}')


class Lane:
    def __init__(self, tmp): self.tmp = tmp; self.cache = {}
    def field(self, off, wd):
        if (off, wd) == (0, 6): return 0
        if (off, wd) not in self.cache:
            r = self.tmp + len(self.cache); self.cache[(off, wd)] = r
            if off == 0: a(f'v_and_b32 v{r}, {(1 << wd) - 1}, v0')
            elif off + wd == 6: a(f'v_lshrrev_b32 v{r}, {off}, v0')
            else: a(f'v_bfe_u32 v{r}, v0, {off}, {wd}')
        return self.cache[(off, wd)]
    def __call__(self, dst, terms, base=None):
        cur = base
        if isinstance(cur, int) and not (0 <= cur <= 64): late = cur; cur = None
        else: late = None
        terms = sorted(terms, key=lambda t: (t[2] & (t[2] - 1)) == 0)
        for off, wd, m in terms:
            f = self.field(off, wd)
            if m & (m - 1) == 0:
                sh = m.bit_length() - 1
                if cur is None: a(f'v_lshlrev_b32 v{dst}, {sh}, v{f}')
                else: a(f'v_lshl_add_u32 v{dst}, v{f}, {sh}, {cur}')
            else:
                assert cur != f'v{dst}'
                a(f'v_mul_u32_u24 v{dst}, {m}, v{f}')
                if cur is not None: a(f'v_add_u32 v{dst}, {cur}, v{dst}')
            cur = f'v{dst}'
        if late is not None: a(f'v_add_u32 v{dst}, {late}, v{dst}')

def gelu16(A_, CSV, GT, MS, stores, zero=None, pk=False):
    o = []
    for hf in range(2):
        for pr in range(2):
            chains = []
            for kk in range(2):
                p = A_ + 8*hf + 4*pr + 2*kk; c = CSV + 8*hf + 4*pr + 2*kk
                if pk:
                    chn = [f'v_pk_fma_f32 v[{p}:{p+1}], v[{c}:{c+1}], v[{MS}:{MS+1}], v[{p}:{p+1}] op_sel_hi:[1,0,1] neg_lo:[0,1,0] neg_hi:[0,1,0]',
                           f'v_pk_mul_f32 v[{p}:{p+1}], v[{MS}:{MS+1}], v[{p}:{p+1}] op_sel:[1,0] op_sel_hi:[1,1]']
                else:
                    chn = [f'v_fma_f32 v{p+i}, -v{c+i}, v{MS}, v{p+i}' for i in range(2)] + [f'v_mul_f32 v{p+i}, v{p+i}, v{MS+1}' for i in range(2)]
                chn += gelu_ops(p, GT + 2*kk, A_ + 8*hf + 2*pr + kk, pk)
                chains.append(chn)
            o += interleave(chains)
        if zero is not None and hf == 0: o += [f'v_and_b32 v{A_+i}, s{zero}, v{A_+i}' for i in range(4)]
        so_, off, tag = stores[hf]
        o.append(('vm', f'buffer_store_dwordx4 {vr(A_ + 8*hf, 4)}, v4, {WS}, s{so_} offen offset:{off} sc1', tag))
    return o

def consts():
    a(f's_mov_b32 s{sK}, {hx(GK)}'); a(f's_mov_b32 s{sK+1}, {hx(GK)}')
    a(f's_mov_b32 s{sK+2}, {hx(ALPHA)}'); a(f's_mov_b32 s{sK+3}, {hx(ALPHA)}')
    a(f's_mov_b32 s{sK+4}, 0x3f803f80')
    S(sFL, [(sC, 1024)], WS_FLAG)
    S(sCPB, [(sJ, 2048)], WS_CFLAG)

SWP = {}
def swp(y, ys):
    SWP[y] = ys
    return [f'v_mov_b32 v{ys}, v{y+1}', f'v_mov_b32 v{ys+1}, v{y}']
def cmul(d, x, y):
    ys = SWP[y]
    return [f'v_pk_mul_f32 v[{d}:{d+1}], v[{x}:{x+1}], v[{y}:{y+1}] op_sel_hi:[0,1]',
            f'v_pk_fma_f32 v[{d}:{d+1}], v[{x}:{x+1}], v[{ys}:{ys+1}], v[{d}:{d+1}] op_sel:[1,0,0] neg_lo:[0,1,0]']

def kpre(P, nmul, E, tmp):
    a('s_waitcnt lgkmcnt(0)')
    a(f's_bitcmp1_b32 s{sW}, 1'); a(f's_cselect_b32 s{sT}, 0, 16')
    a(f's_lshl_b32 s66, s66, s{sT}'); a('s_and_b32 s66, s66, 0xffff0000'); a(f's_lshl_b32 s67, s67, s{sT}'); a('s_and_b32 s67, s67, 0xffff0000')
    a(f'v_mov_b32 v{P+6}, {hx(LOG2E)}'); a(f'v_mul_f32 v{P+6}, s66, v{P+6}'); a(f'v_exp_f32 v{P+6}, v{P+6}')
    for i in range(6 if nmul == 4 else 2): a(f'v_lshlrev_b32 v{P+i}, 16, v{P+i}')
    a(f'v_cvt_pk_bf16_f32 v{P+6}, v{P+6}, v{P+6}'); a(f'v_and_b32 v{P+6}, 0xffff0000, v{P+6}')
    for i in range(nmul): a(f'v_mul_f32 v{P+i}, v{P+6}, v{P+i}')
    chains = []
    for n, (l, r) in enumerate(E.items()):
        t = tmp + 2 * n
        chains.append([f'v_mul_f32 v{t}, {hx(l*LOG2E)}, v{P}', f'v_mul_f32 v{t+1}, {hx(l/(2*math.pi))}, v{P+1}', f'v_exp_f32 v{t}, v{t}', f'v_fract_f32 v{t+1}, v{t+1}',
                       f'v_cos_f32 v{r}, v{t+1}', f'v_sin_f32 v{r+1}, v{t+1}', f'v_mul_f32 v{r}, v{r}, v{t}', f'v_mul_f32 v{r+1}, v{r+1}, v{t}'])
    for x in interleave(chains): a(x)

vL16 = 4
sD = sT + 4
def prologue():
    if cfg.stamps:
        a('s_memtime s[98:99]'); a('s_memrealtime s[100:101]')
    a('s_load_dwordx16 s[36:51], s[0:1], 0')
    a('s_load_dwordx8 s[56:63], s[0:1], 80')
    a(f's_load_dwordx2 s[{sWSP}:{sWSP+1}], s[0:1], 128')
    a('s_load_dwordx2 s[52:53], s[0:1], 64')
    a('s_load_dwordx2 s[64:65], s[0:1], 112')
    a('s_cmp_ge_u32 s2, 256'); a('s_cbranch_scc1 L_exit')
    a('v_lshrrev_b32 v3, 6, v0')
    a('v_and_b32 v0, 63, v0')
    a(f'v_readfirstlane_b32 s{sW}, v3')
    a(f's_getpc_b64 s[{sT+2}:{sT+3}]')
    a('L_pc:')
    a(f's_lshr_b32 s{sJ}, s2, 3'); a(f's_and_b32 s{sJ}, s{sJ}, 7')
    a('v_lshlrev_b32 v5, 7, v0'); a(f'v_lshlrev_b32 v{vL16}, 4, v0')
    a(f's_cmp_lg_u32 s{sW}, 7'); a('s_cbranch_scc1 L_nocode')
    a(f's_and_b32 s{sT}, s{sJ}, 3'); a(f's_lshl_b32 s{sT}, s{sT}, 13'); a(f'v_add_u32 v6, s{sT}, v5')
    a(f'v_min_u32 v6, L_codeend-L_pc-4, v6')
    a(f'global_load_dword v127, v6, s[{sT+2}:{sT+3}]')
    a('L_nocode:')
    a(f's_and_b32 s{sC}, s2, 7'); a(f's_lshl_b32 s{sC}, s{sC}, 2'); a(f's_lshr_b32 s{sT}, s2, 6'); a(f's_add_u32 s{sC}, s{sC}, s{sT}')
    a(f's_lshl_b32 s{sIDX}, s{sC}, 3')
    a(f's_lshr_b32 s{sT}, s{sJ}, 2'); a(f's_add_u32 s{sDEL}, s{sT}, 1')
    a(f's_sub_u32 s{sT}, 0, s{sDEL}')
    a(f's_bitcmp1_b32 s{sJ}, 1'); a(f's_cselect_b32 s{sDEL}, s{sDEL}, s{sT}')
    a(f'v_mov_b32 v{vS}, {S0}'); a(f'v_mov_b32 v{vOne}, 1')
    a(f's_cmp_lt_u32 s{sW}, 4'); a('s_cbranch_scc1 L_A')
    a('s_setprio 3')
    a(f's_sub_u32 s{sW}, s{sW}, 4')
    a(f's_bfe_u32 s{sT}, s{sW}, 0x10001'); S(sD, [(sJ, 64), (sC, 2), (sT, 1)])
    a(f's_and_b32 s{sT+1}, s{sW}, 1'); S(sT, [(sD, 256), (sT + 1, 128)])
    a(f'v_lshl_add_u32 v8, v0, 1, s{sT}')
    a(f's_lshl_b32 s{sT+6}, s{sD}, 1'); a(f's_andn2_b32 s{sT+6}, s{sT+6}, 3')
    a(f's_add_u32 s{sT}, s{sIDX}, s{sJ}')
    a(f's_lshl_b32 s{sT+1}, s{sT}, 13'); a(f'v_add_u32 v6, s{sT+1}, v5')
    a(f's_lshl_b32 s{sT+1}, s{sT}, 11'); a(f'v_add_u32 v7, s{sT+1}, v5')
    a(f'v_lshlrev_b32 v10, 2, v0'); a('v_mov_b32 v11, 0')
    a(f'ds_write_b32 v10, v11 offset:{S_CNT}')
    S(sT, [(sC, 1024)], WS_FLAG); a(f'v_add_u32 v10, s{sT}, v5')
    a('v_lshrrev_b32 v12, 2, v0'); a('v_mul_u32_u24 v12, 2688, v12'); a(f'v_add_u32 v12, v12, v{vL16}')
    S(73, [(sC, 16*2752), (sJ, 352), (sW, 192)])
    a(f's_cmp_ge_u32 s{sJ}, 6'); a(f's_cselect_b32 s{sT}, 32, 0'); a(f's_sub_u32 s73, s73, s{sT}')
    a('v_lshrrev_b32 v60, 3, v0'); a(f'v_mul_u32_u24 v60, 896, v60'); a(f'v_add_u32 v60, v60, v{vL16}')
    a(f's_cmp_lt_i32 s{sDEL}, 0'); a(f's_cselect_b32 s75, 64, -2'); a(f's_add_u32 s75, s75, s{sDEL}')
    S(sT, [(sC, 65536), (75, 1024)]); a(f'v_lshl_add_u32 v61, v0, 5, s{sT}')
    S(77, [(sC, 65536), (sJ, 128), (sW, 16384)])
    a(f's_lshl_b32 s{sT+1}, s{sW}, 11'); a(f's_add_u32 m0, s{sT+1}, {S0 + S_XT}')
    a('s_waitcnt lgkmcnt(0)')
    nt = cfg.touch_nt
    for i in range(6): a(f'global_load_ushort v{48+i}, v8, s[{38+2*i}:{39+2*i}] {nt}')
    a(f's_load_dword s66, s[50:51], s{sT+6}'); a(f's_load_dword s67, s[52:53], s{sT+6}')
    a(f's_load_dword s{sEP}, s[{sWSP}:{sWSP+1}], 0')
    srd(SX, 36, 2097152)
    a(f's_cmp_eq_u32 s{sW}, 2'); a('s_cbranch_scc1 L_f2b')
    a(f's_cmp_eq_u32 s{sW}, 3'); a('s_cbranch_scc1 L_f2c')
    srd(SW3, 60, 1409024)
    for m in range(3): a(f'buffer_load_dwordx4 {vr(240 + 4*m, 4)}, v12, s[{SW3}:{SW3+3}], s73 offen offset:{64*m} {nt}')
    a('s_branch L_f2d')
    a('L_f2b:')
    a(f'global_load_dword v56, v6, s[36:37] {nt}')
    a('s_mov_b64 exec, 0xffff')
    a('global_load_dword v57, v7, s[56:57]')
    a('global_load_dword v58, v7, s[58:59]')
    a('s_branch L_f2d')
    a('L_f2c:')
    for k in range(2): a(f'buffer_load_dwordx4 {vr(232 + 4*k, 4)}, v61, s[{SX}:{SX+3}], 0 offen offset:{16*k}')
    a('s_mov_b64 exec, 0x1f')
    a(f'global_load_dword v56, v10, s[{sWSP}:{sWSP+1}] sc1')
    a('L_f2d:')
    a('s_mov_b64 exec, -1')
    a(f'buffer_load_dwordx4 v60, s[{SX}:{SX+3}], s77 offen lds')
    a('s_addk_i32 m0, 1024'); a('s_addk_i32 s77, 8192')
    a(f'buffer_load_dwordx4 v60, s[{SX}:{SX+3}], s77 offen lds')
    a('s_barrier')
    a('s_setprio 1')
    a('s_branch L_B')
    a('L_exit:')
    a('s_endpgm')
    a('L_A:')

his = list(range(9)) + [256, 258, 260, 262, 264, 512, 516, 520, 768, 772, 776, 1024, 1032, 1280, 1288, 1536, 1544, 1792, 1800]
h0 = list(range(9)) + [512, 516, 520, 1024, 1032, 1536, 1544]
h1 = [256, 256, 258, 260, 260, 260, 262, 264, 264, 768, 772, 776, 1280, 1288, 1792, 1800]
rowof = lambda v, half: (v & 3) + 8 * (v >> 2) + 4 * half
xrows = {h: [rowof(v, 0) for v, x in enumerate(h0) if x == h] + [rowof(v, 1) for v, x in enumerate(h1) if x == h] for h in his}

def role_A():
    vXF = list(range(16, 24)); vW1 = list(range(24, 28))
    vW, vL4, vXA, vSW, vSR, vCR, vW2, vW2b, vXT, vST, vHF, vXS, vS3 = range(28, 41)
    vCP, vSD, vDW, vL4b = 12, 13, 14, 15
    vCK = 7
    XF, RG, ACC, CSA = 128, 64, 96, 112
    s16W, sOWN, sPB, sJP, sFO, sFP = sT + 5, 40, 41, 42, 43, 44
    sOA, sOB, sH, sX1, sXS, sXSL, sW4, sHL, sX1L, sSD, sH2, sXC = sT + 6, 46, 47, 48, 49, 50, 51, 52, 53, 54, 55, 38
    a('v_lshrrev_b32 v10, 4, v0'); a('v_and_b32 v11, 15, v0')
    a('v_xor_b32 v11, v11, v10'); a('v_lshlrev_b32 v11, 4, v11')
    S(sT, [(sC, 65536), (sDEL, 1024), (sW, 256)])
    a(f'v_lshl_add_u32 v12, v10, 10, s{sT}')
    for m in range(4):
        if m == 0: a('v_add_u32 v56, v12, v11')
        else:
            a(f'v_xor_b32 v13, {64*m}, v11'); a(f'v_add_u32 v13, {4096*m}, v13'); a(f'v_add_u32 v{56+m}, v12, v13')
    a('v_add_u32 v60, 0x4000, v56')
    a(f's_mov_b32 s{sT+2}, 0x4000'); a(f's_mov_b32 s{sT+3}, 0x8000'); a(f's_mov_b32 s{sT+4}, 0xc000')
    a(f's_lshl_b32 s{s16W}, s{sW}, 14')
    a('s_setprio 2')
    a(f's_mov_b32 s{sK+4}, 0x3f803f80')
    S(sOA, [(sW, 131072), (sJ, 128)])
    sTH, sNH, sSS, sHS, sZ, sTM = 66, 67, 39, 58, 60, 61
    a(f's_lshr_b32 s{sTH}, s{sW}, 1'); a(f's_and_b32 s{sNH}, s{sW}, 1')
    L = Lane(100)
    hf_, l15 = L.field(5, 1), L.field(0, 4)
    a(f'v_xor_b32 v8, v{l15}, v{hf_}')
    S(sT, [(sTH, 8192), (sW, 16384)]); L(9, [(0, 5, 256)], f's{sT}'); a('v_lshl_add_u32 v8, v8, 4, v9')
    a(f's_mov_b32 s{sT}, {X0}')
    for c_ in range(4):
        a(f'v_xor_b32 v9, {c_ << 14}, v8'); a(f'v_add_u32 v{XF + 32*c_}, s{sT}, v9')
        for ks in range(1, 8): a(f'v_xor_b32 v{XF + 32*c_ + 4*ks}, {ks << 5}, v{XF + 32*c_}')
    for ks in range(8): a(f'v_xor_b32 v{RG + 4*ks}, 0x2000, v{XF + 4*ks}')
    L(9, [(2, 2, 128), (4, 1, 32), (0, 2, 8), (3, 1, 64)]); a(f's_lshl_b32 s{sT}, s{sNH}, 6'); a(f'v_xor_b32 v9, s{sT}, v9')
    L(8, [(5, 1, 1024)], 'v9'); a(f'v_add_u32 v8, s{s16W}, v8')
    for q in range(4): a(f'v_xor_b32 v{vW1[q]}, {q << 14}, v8')
    L(vW, [(3, 3, 1024), (0, 3, 16)]); L(8, [(4, 1, 64)]); a(f'v_xor_b32 v{vW}, v{vW}, v8')
    L(vL4, [(0, 6, 4)])
    a(f's_lshl_b32 s{sT}, s{sW}, 8'); a(f'v_add_u32 v{vSW}, s{sT}, v{vL4}')
    S(sT, [(sT, 1), (sTH, 1024)]); a(f'v_add_u32 v{vXA}, s{sT}, v{vL4}'); a(f'v_xor_b32 v16, 0x400, v{vXA}')
    a('v_mov_b32 v17, v9')
    a('s_waitcnt lgkmcnt(0)')
    srd(SX, 36, 2097152)
    a('s_barrier')
    a(f's_load_dword s{sEP}, s[{sWSP}:{sWSP+1}], 0')
    srd(SW1, 56, 524288); srd(SWS, sWSP, 268435456); srd(SW2, 58, 524288)
    a(f's_lshr_b32 s{sOB}, s2, 3'); S(sOB, [(sOB, 16384), (sW, 4096)])
    def dmaX(i, first=False):
        m, blk = i & 3, i >> 2
        v = 60 if (m == 0 and blk > 0) else 56 + m
        b = blk - 1 if (m == 0 and blk > 0) else blk
        so = '0' if b == 0 else f's{sT+1+b}'
        if first: a(f's_add_u32 m0, s{s16W}, {X0 + 1024*i}')
        else: a('s_addk_i32 m0, 1024')
        a.vm(f'buffer_load_dwordx4 v{v}, s[{SX}:{SX+3}], {so} offen lds', ('x', i))
    st.put('A', 'setup')
    consts()
    a(f's_and_b32 s{sJP}, s{sJ}, 1')
    S(sOWN, [(sIDX, 8192), (sJ, 8192)]); S(sPB, [(sW, 16384), (sIDX, 8192), (sJP, 8192)])
    S(sFO, [(sJ, 16), (sW, 4), (sFL, 1)]); S(sFP, [(sW, 32), (sFL, 1)])
    S(sH, [(sW, 2048), (sOWN, 1)], WS_H); a(f's_add_u32 s{sX1}, s{sH}, {WS_X1 - WS_H}')
    a(f's_lshr_b32 s{sXS}, s{sOWN}, 3'); S(sXS, [(sXS, 1), (sW, 256)], WS_XS); S(sXSL, [(sIDX, 1024)], WS_XS)
    S(sW4, [(sW, 22*2048), (sJ, FMT)], WS_W4)
    a(f's_cmp_eq_u32 s{sW}, 3'); a(f's_cselect_b32 s{sT}, 2048, 0'); a(f's_sub_u32 s{sW4}, s{sW4}, s{sT}')
    a(f's_add_u32 s{sHL}, s{sPB}, {WS_H}'); a(f's_add_u32 s{sX1L}, s{sPB}, {WS_X1}')
    S(sH2, [(sC, H2C), (sW, 22*1024)], WS_H2)
    S(sSS, [(sJ, 64*SRS), (sC, 2*SRS), (sTH, SRS), (sNH, 2048)], WS_ST)
    S(sHS, [(sC, H2C), (sJ, 11*1024), (sTH, 2048), (sNH, 88*1024)], WS_H2 + 8192)
    a(f's_cmp_ge_u32 s{sW}, 2'); a(f's_cselect_b32 s{sHS+1}, 0x80000000, s{sHS}'); a(f's_cselect_b32 s{sTM}, 0xff, -1'); a(f's_and_b32 s{sTM}, s{sTM}, 0xffff')
    a(f's_or_b32 s{sT}, s{sJ}, 2'); S(sT, [(sT, 2), (sTH, 1)]); a(f's_cmp_eq_u32 s{sT}, 15'); a(f's_cselect_b32 s{sZ}, 0, -1')
    a(f's_lshr_b32 s{sT}, s{sC}, 3'); a(f's_and_b32 s{sT+1}, s{sC}, 7'); S(sCFO, [(sT, 128), (sT + 1, 4), (sCPB, 1)])
    S(sT, [(sJP, 8192), (sW, 16384)]); L(vW2, [(5, 1, 512)], 'v17'); a(f'v_add_u32 v{vW2}, s{sT}, v{vW2}')
    S(sT, [(sTH, 1024)], S0 + S_STP); L(vSR, [(0, 5, 4)], f's{sT}')
    a(f'v_add_u32 v20, {S0 + S_CS1}, v{vSW}')
    a(f's_lshl_b32 s{sT}, s{sNH}, 8'); L(vCR, [(5, 1, 16)], f's{sT}')
    S(sT, [(sTH, 4096), (sNH, 64)]); L(vXT, [(0, 5, 128), (5, 1, 8)], f's{sT}')
    a(f's_lshl_b32 s{sT}, s{sTH}, 8'); L(vST, [(0, 5, 8)], f's{sT}')
    S(sT, [(sTH, 4096), (sW, 16384)]); a(f'v_add_u32 v{vHF}, s{sT}, v{vL16}')
    for q in range(1, 4): a(f'v_xor_b32 v{20+q}, {q << 14}, v{vHF}')
    S(sT, [(sTH, 512), (sNH, 64)]); L(vXS, [(4, 1, 256), (5, 1, 128), (0, 4, 4)], f's{sT}')
    a(f's_lshl_b32 s{sT}, s{sW}, 7'); L(vS3, [(0, 4, 8)], f's{sT}')
    S(sT, [(sW, 8192), (sNH, 4096)], CX0); L(43, [(1, 4, 16), (0, 1, 512), (5, 1, 1024)], f's{sT}')
    S(sT, [(sTH, 512)], S0 + S_CS3); L(44, [(5, 1, 16)], f's{sT}')
    a(f's_lshl_b32 s{sT}, s{sNH}, 8'); L(45, [(0, 5, 8)], f's{sT}')
    L(41, [(3, 3, 128), (0, 3, 4)])
    a(f'v_add_u32 v46, s{sH}, v5'); a('s_mov_b32 exec_lo, 0xffff0000'); a(f'v_add_u32 v46, {WS_X1 - WS_H - 2048}, v46')
    a('s_mov_b32 exec_lo, 0'); a(f's_sub_u32 s{sT}, s{sXS}, 4096'); a(f'v_add_u32 v46, s{sT}, v5'); a('s_mov_b32 exec_lo, -1')
    def ptouch():
        a('s_mov_b32 exec_hi, 3'); a.vm(f'buffer_load_dword v46, v46, {WS}, 0 offen sc1', 'pt'); a('s_mov_b32 exec_hi, -1')
    st.put('A', 'setup2')
    if cfg.hx == '' and cfg.ptouch == '0': ptouch()
    for i in range(16):
        if i == cfg.fpos: fdma()
        dmaX(i, i in (0, cfg.fpos))
    if cfg.hx == '' and cfg.ptouch == 'f': ptouch()
    nq = [0]
    def pump(n=1):
        for _ in range(n):
            i = nq[0]
            if i >= 16: return
            nq[0] += 1
            if i == 0: a(f's_add_u32 m0, s{s16W}, {W0}')
            else: a('s_addk_i32 m0, 1024'); a(f's_addk_i32 s{sOA}, 8192')
            a.vm(f'buffer_load_dwordx4 v{vW}, s[{SW1}:{SW1+3}], s{sOA} offen lds', ('w1', i >> 3))
    for i in range(48, 52): a(f'v_mov_b32 v{i}, 0')
    a('s_mov_b32 vcc_lo, 0xaaaa5555'); a('s_mov_b32 vcc_hi, vcc_lo'); a(f'v_mov_b32 v60, s{sK+4}')
    for i in range(63, 59, -1): a(f'v_cndmask_b32 v{i}, 0, v60, vcc')
    a('s_setprio 2')
    LT1, LTE = a.label('TH'), a.label('TH')
    a(f's_cmp_eq_u32 s{sTH}, 1'); a(f's_cbranch_scc1 {LT1}')
    saved = (list(a.vmq), list(a.lgq))
    for var in range(2):
        if var:
            a(f'{LT1}:'); a.vmq, a.lgq = list(saved[0]), list(saved[1]); nq[0] = 0
        for ph in range(2):
            own = (ph == var); B_ = XF if own else RG; acc_ = 48 if own else 50
            a.wvm(('x', 8*ph + 7))
            if ph: signal('XA1')
            for ks in range(8): a.lg(f'ds_read_b128 {vr(B_ + 4*ks, 4)}, v{B_ + 4*ks}', ('xs', ph, ks))
            for ks in range(8):
                pump()
                a.wlg(('xs', ph, ks))
                for d in range(4):
                    r = B_ + 4*ks + d
                    a(f'v_dot2c_f32_bf16 v{acc_}, s{sK+4}, v{r}'); a(f'v_dot2c_f32_bf16 v{acc_+1}, v{r}, v{r}')
                if ph and ks == 4: chk_issue('XA1', vCK)
        if var == 0: a(f's_branch {LTE}')
    a(f'{LTE}:')
    a('s_nop 2')
    chk_wait('XA1', vCK, 4)
    rest = [n for n in range(8, 32) if (n & 7) < 4] + [n for n in range(8, 32) if (n & 7) >= 4]
    for n in rest[:8]: a.lg(f'ds_read_b128 {vr(XF + 4*n, 4)}, v{XF + 4*n}')
    a('v_permlane32_swap_b32 v48, v49'); a('v_permlane32_swap_b32 v50, v51'); a('v_add_f32 v48, v48, v49'); a('v_add_f32 v50, v50, v51')
    a.lg(f'ds_write_b32 v{vXA}, v48 offset:{S0 + S_STP}'); a.lg(f'ds_write_b32 v16, v50 offset:{S0 + S_STP}')
    signal('S')
    st.put('A', 'S')
    if cfg.hx == '' and cfg.ptouch == 's': ptouch()
    if cfg.w4s:
        a('s_mov_b64 exec, 0x7ff'); a.vm(f'buffer_load_dword v47, v5, s[{SW3}:{SW3+3}], s45 offen', 'tw4'); a('s_mov_b64 exec, -1')
    if cfg.w2l2:
        a('s_mov_b32 exec_hi, 0'); a.vm(f'buffer_load_dword v55, v5, s[{SW2}:{SW2+3}], s{sOB} offen', 'tw2'); a('s_mov_b32 exec_hi, -1')
    for n in rest[8:]: a.lg(f'ds_read_b128 {vr(XF + 4*n, 4)}, v{XF + 4*n}')
    a.wvm(('w1', 0)); signal('WC0')
    st.put('A', 'g1_go')
    seq = [8*c_ + ks for c_ in range(4) for ks in range(4)] + [8*c_ + ks for c_ in range(4) for ks in range(4, 8)]
    RS = [RG + 4*i for i in range(8)] + [116, 120, 124]
    nrd = [0]
    def rdw(upto):
        while nrd[0] < min(upto, 32):
            pos = nrd[0]; n = seq[pos]; nrd[0] += 1
            for p in range(2):
                a.lg(f'ds_read_b64_tr_b16 {vr(RS[pos % 11] + 2*p, 2)}, v{vW1[n >> 3]} offset:{W0 + 2048*(n & 7) + 512*p}', ('wf', pos))
    LA = cfg.la1
    rdw(4)
    chk_issue('WC0', vCK)
    mark = len(a.L)
    padd(8, 8, 12, 4, False); padd(52, 8, 10, 2, False)
    finstat(52)
    a('v_mul_f32 v8, v53, v53'); a(f'v_mov_b32 v9, {hx(1 + EPS)}'); a(f'v_fmac_f32 v9, {hx(-EPS)}, v8')
    a('v_rsq_f32 v9, v9')
    a(f'v_mul_f32 v53, s{sK+2}, v53'); a('v_mul_f32 v53, v53, v9')
    a(f's_add_u32 s{sEP}, s{sEP}, 1'); a(f's_mov_b32 s{sEP+1}, s{sEP}')
    a(f's_getreg_b32 s{sXC}, hwreg(HW_REG_XCC_ID, 0, 4)')
    if cfg.force_slow: a(f's_mov_b32 s{sXC}, s{sJ}')
    a(f's_lshl_b32 s{sXC}, s{sXC}, 28'); a(f's_add_u32 s{sXC}, s{sXC}, s{sEP}')
    side = a.L[mark:]; del a.L[mark:]
    for pos in range(32):
        n = seq[pos]
        if pos == 2:
            chk_wait('WC0', vCK, 4)
        if pos == 5:
            for w2 in range(4): a.lg(f'ds_read2_b32 v[{8+2*w2}:{9+2*w2}], v{vSR} offset0:{64*w2} offset1:{64*w2+32}', 'sp')
        if pos == 16 - LA: a.wvm(('w1', 1)); signal('WC1')
        if pos == 18 - LA: chk_issue('WC1', vCK)
        if pos == 20 - LA: chk_wait('WC1', vCK, 4)
        if pos == 20:
            a('s_mov_b64 exec, 0xff'); a.vm(f'buffer_load_dword v54, v{vL4}, {WS}, s{sFL} offen offset:768 sc1', 'md'); a('s_mov_b64 exec, -1')
        if pos >= 2: rdw(min(pos + LA + 1, nrd[0] + 3))
        a.wlg(('wf', pos))
        M32(ACC, RS[pos % 11], XF + 4*n, None if pos == 0 else ACC)
        if n < 16: M16(CSA, 60, RS[pos % 11], None if pos == 0 else CSA)
        if pos == 14: a.wlg('sp')
        if pos >= 14:
            for _ in range(2):
                if side: a(side.pop(0))
        if pos == 25:
            assert nrd[0] == 32
            a('s_mov_b64 exec, 0xffff'); a.lg(f'ds_write2_b32 v20, v{CSA}, v{CSA+1} offset0:0 offset1:16'); a('s_mov_b64 exec, -1')
            signal('G1')
        if pos == 29: chk_issue('G1', vCK)
        if pos == cfg.w2pos: signal('W2I')
    assert not side
    st.put('A', 'g1_mfma')
    chk_wait('G1', vCK, 4)
    CSR = XF
    for q in range(4):
        for s_ in range(2): a.lg(f'ds_read_b128 {vr(CSR + 16*s_ + 4*q, 4)}, v{vCR} offset:{S0 + S_CS1 + 512*s_ + 32*q}', ('cs', q >> 1))
    for hf in range(2):
        a.wlg(('cs', hf))
        padd(CSR + 8*hf, CSR + 8*hf, CSR + 16 + 8*hf, 8)
        chains = []
        for i in range(0, 8, 2):
            o = ACC + 8*hf + i; c = CSR + 8*hf + i
            ch = [f'v_pk_fma_f32 v[{o}:{o+1}], v[{c}:{c+1}], v[52:53], v[{o}:{o+1}] op_sel_hi:[1,0,1] neg_lo:[0,1,0] neg_hi:[0,1,0]',
                  f'v_pk_mul_f32 v[{o}:{o+1}], v[52:53], v[{o}:{o+1}] op_sel:[1,0] op_sel_hi:[1,1]']
            ch += gelu_ops(o, RG + i, 56 + 4*hf + i // 2, True)
            chains.append(ch)
        for x in interleave(chains): a(x)
        a.vm(f'buffer_store_dwordx4 {vr(56 + 4*hf, 4)}, v{vL16}, {WS}, s{sH} offen offset:{1024*hf} {cfg.hx}', 'hst')
    st.put('A', 'h_stored')
    LMP, LME = a.label('MD'), a.label('MD')
    a.wvm('md')
    a(f's_mov_b32 s{sT+9}, {cfg.gbound}')
    a('s_mov_b64 exec, 0xff')
    a(f'{LMP}:')
    a(f'v_subrev_u32 v8, s{sEP}, v54'); a('v_and_b32 v8, 0x0fffffff, v8')
    a('v_cmp_ne_u32 vcc, 0, v8')
    a(f's_cbranch_vccz {LME}')
    a(f's_sleep {cfg.csleep}')
    a(f'buffer_load_dword v54, v{vL4}, {WS}, s{sFL} offen offset:768 sc1')
    a('s_waitcnt vmcnt(0)')
    a(f's_sub_u32 s{sT+9}, s{sT+9}, 1'); a(f's_cbranch_scc0 {LMP}')
    a(f'{LME}:')
    a(f'v_cmp_ne_u32 vcc, s{sXC}, v54')
    a('s_cmp_eq_u64 vcc, 0'); a(f's_cselect_b32 s{sMODE}, 1, 2')
    a(f'v_mov_b32 v8, s{sMODE}')
    a('s_mov_b64 exec, 1'); a.lg(f'ds_write_b32 v{vS}, v8 offset:{CN["MODE"]}'); a('s_mov_b64 exec, -1')
    a(f's_mov_b32 s{sT}, {X0}')
    for g in range(8): a(f'v_xor_b32 v{RG + g}, {8192*g}, v{vW2}'); a(f'v_add_u32 v{RG + g}, s{sT}, v{RG + g}')
    if cfg.w2pre == 0:
        flag(sFO, 0, 'hst', cfg.hx == '')
        st.put('A', 'h_flag')
    spin('W2L', 4)
    def rdw2(n):
        for p in range(2):
            a.lg(f'ds_read_b64_tr_b16 {vr(XF + 4*n + 2*p, 2)}, v{RG + (n >> 2)} offset:{2048*(n & 3) + 1024*p}', 'w2f')
    for q in range(4): a.lg(f'ds_read_b64 v[{8+2*q}:{9+2*q}], v{vXT} offset:{S0 + S_XT + 16*q}', 'xt')
    a.lg(f'ds_read_b64 v[50:51], v{vST} offset:{S0 + S_ST + 16}', 'xt')
    for n in range(cfg.w2pre): rdw2(n)
    if cfg.w2pre:
        flag(sFO, 0, 'hst', cfg.hx == '')
        st.put('A', 'h_flag')
    for n in range(cfg.w2pre, 32): rdw2(n)
    signal('W')
    a.wlg('xt')
    unpack(ACC, 8, 8)
    for i in range(16): a(f'v_sub_f32 v{ACC+i}, v{ACC+i}, v50')
    for i in range(16): a(f'v_mul_f32 v{ACC+i}, v{ACC+i}, v51')
    st.put('A', 'rdy')
    def image(sbase, tag, c):
        pp, rh = c >> 1, c & 1
        if c == 2: a(f's_xor_b32 s{sbase}, s{sbase}, 8192')
        if rh == 0: a(f's_add_u32 s{sOB}, s{sbase}, 4096')
        for th in range(2):
            a(f's_add_u32 m0, s{s16W}, {W0 + 8192*pp + 4096*th}')
            for r in range(2*rh, 2*rh + 2):
                a.vm(f'buffer_load_dwordx4 v{vL16}, {WS}, s{sOB if th else sbase} offen offset:{1024*r} sc1 lds', (tag, c))
    pollc(sFP, 0, 8, vL4, 48)
    st.put('A', 'h_seen')
    for c in range(3): image(sHL, 'h', c)
    vH4 = [vHF, 21, 22, 23]
    seq2 = [8*w2 + 4*pp + r for pp in range(2) for w2 in range(4) for r in range(4)]
    RS2 = [RG + 4*i for i in range(8)] + [112, 116, 120, 124]
    nr2 = [0]
    def rdh(upto):
        while nr2[0] < min(upto, 32):
            pos = nr2[0]; n = seq2[pos]; nr2[0] += 1
            a.lg(f'ds_read_b128 {vr(RS2[pos % 12], 4)}, v{vH4[n >> 3]} offset:{W0 + 8192*((n >> 2) & 1) + 1024*(n & 3)}', ('hf', pos))
    a.lg0()
    a.wvm(('h', 0)); rdh(2); image(sHL, 'h', 3)
    a.wvm(('h', 1)); signal('HC0'); rdh(4); chk_issue('HC0', vCK)
    st.put('A', 'g2_go')
    LA2 = cfg.la2
    for pos in range(32):
        if pos == 3: chk_wait('HC0', vCK, 4)
        if pos == 16 - LA2: a.wvm(('h', 3)); signal('HC1')
        if pos == 18 - LA2: chk_issue('HC1', vCK)
        if pos == 20 - LA2: chk_wait('HC1', vCK, 4)
        if pos >= 3: rdh(pos + LA2 + 1)
        a.wlg(('hf', pos))
        M32(ACC, XF + 4*seq2[pos], RS2[pos % 12], ACC)
    st.put('A', 'g2_mfma')
    for hf in range(2):
        for i in range(4): a(f'v_cvt_pk_bf16_f32 v{56+4*hf+i}, v{ACC+8*hf+2*i}, v{ACC+8*hf+2*i+1}')
        a.vm(f'buffer_store_dwordx4 {vr(56 + 4*hf, 4)}, v{vL16}, {WS}, s{sX1} offen offset:{1024*hf} {cfg.hx}', 'x1st')
    for k in range(2):
        a(f'v_add_f32 v{8+2*k}, v{ACC+8*k}, v{ACC+8*k+1}'); a(f'v_mul_f32 v{9+2*k}, v{ACC+8*k}, v{ACC+8*k}')
    for i in range(1, 8):
        for k in range(2):
            if i > 1: a(f'v_add_f32 v{8+2*k}, v{8+2*k}, v{ACC+8*k+i}')
            a(f'v_fmac_f32 v{9+2*k}, v{ACC+8*k+i}, v{ACC+8*k+i}')
    a('v_add_f32 v8, v8, v10'); a('v_add_f32 v9, v9, v11')
    a('v_permlane32_swap_b32 v8, v9'); a('v_add_f32 v8, v8, v9')
    for q in range(1, 4): a(f'v_mov_b32_dpp v{8+q}, v8 quad_perm:[{q},{q},{q},{q}] row_mask:0xf bank_mask:0xf')
    a('s_mov_b32 exec_lo, 0x11111111'); a('s_mov_b32 exec_hi, 0x11111111')
    a.vm(f'buffer_store_dwordx4 v[8:11], v{vL4}, {WS}, s{sXS} offen {cfg.hx}', 'x1st')
    a('s_mov_b64 exec, -1')
    st.put('A', 'x1_stored')
    a(f'v_mov_b32 v{vCP}, v41')
    a(f's_add_u32 s{sT}, s{s16W}, {X0}'); a(f'v_add_u32 v{vDW}, s{sT}, v{vL16}')
    W4F, ACC4, RING = 80, 48, 16
    flag(sFO, 128, 'x1st', cfg.hx == '')
    st.put('A', 'x1_flag')
    pollc(sFL, 128, 32, vL4, 48)
    st.put('A', 'x1_seen')
    for c in range(3): image(sX1L, 'x1', c)
    chk_issue('W3I', vCK)
    a.wvm(('x1', 0)); signal('X0')
    image(sX1L, 'x1', 3)
    a.wvm(('x1', 1)); signal('XA0')
    for q in range(8):
        if q == 4: a(f's_addk_i32 s{sXSL}, 4096')
        a.vm(f'buffer_load_dword v{48+q}, v{vXS}, {WS}, s{sXSL} offen offset:{1024*(q & 3)} sc1', 'xs')
    chk_wait('W3I', vCK, 4)
    a.wvm(('x1', 3)); signal('XA')
    st.put('A', 'x1_in')
    def w4issue(ks):
        for nt_ in range(2):
            a.vm(f'buffer_load_dwordx4 {vr(W4F + 8*ks + 4*nt_, 4)}, v{vL16}, {WS}, s{sW4} offen offset:{2048*(ks & 1) + 1024*nt_} sc1', ('w4', ks))
        if ks & 1: a(f's_addk_i32 s{sW4}, 4096')
    if cfg.now4: a(f's_mov_b32 s{sW4}, 0x80000000')
    nw = [0]
    def w4more(n=1):
        for _ in range(n):
            ks = nw[0]
            if ks >= 22: return
            nw[0] += 1
            if ks >= cfg.la4: a.wvm(('w4', ks - cfg.la4))
            w4issue(ks)
    w4more(cfg.la4)
    a(f's_setprio {cfg.aprio}')
    a.wvm('xs')
    padd(48, 48, 52, 4, False); padd(48, 48, 50, 2, False)
    a('v_add_f32 v48, v48, v49')
    a('v_mov_b32 v49, v48')
    a('v_permlane16_swap_b32 v48, v49'); a('v_add_f32 v48, v48, v49')
    a('v_mov_b32 v49, v48')
    a('v_permlane32_swap_b32 v48, v49')
    finstat(48)
    a(f'v_mul_f32 v49, s{sK+2}, v49')
    a.lg(f'ds_write_b64 v{vS3}, v[48:49] offset:{S0 + S_ST3}')
    signal('ST')
    a('v_xor_b32 v8, 0x2000, v43')
    for pr in range(2):
        for h in range(2):
            a.lg(f'ds_read_b128 {vr(48 + 8*pr + 4*h, 4)}, v43 offset:{2048*pr + 256*h}', ('c', pr))
            a.lg(f'ds_read_b128 {vr(64 + 8*pr + 4*h, 4)}, v8 offset:{2048*pr + 256*h}', ('c', pr))
    for pr in range(2):
        a.wlg(('c', pr))
        padd(48 + 8*pr, 48 + 8*pr, 64 + 8*pr, 8, False)
        for d in range(4): a(f'v_cvt_pk_bf16_f32 v{64+8*pr+d}, v{48+8*pr+2*d}, v{48+8*pr+2*d+1}')
        a.vm(f'buffer_store_dwordx4 {vr(64 + 8*pr, 4)}, v{vL16}, {WS}, s{sSS} offen offset:{1024*pr} sc1', 'sst')
    EA, EB, EC, ED = 48, 64, 16, 32
    a('v_mov_b32 v9, v44'); a('v_mov_b32 v10, v45')
    S(sT, [(sW, 8192)], E30); a(f'v_add_u32 v8, s{sT}, v{vL16}'); a('v_xor_b32 v11, 0x3000, v8')
    for q in range(4):
        a.lg(f'ds_read_b128 {vr(EC + 4*q, 4)}, v9 offset:{32*q}', 'e0'); a.lg(f'ds_read_b128 {vr(ED + 4*q, 4)}, v9 offset:{256 + 32*q}', 'e0')
    w4more(cfg.w4a)
    spin('ST', 4)
    padd(EC, EC, ED, 16, False)
    a.lg(f'ds_read_b64 v[38:39], v10 offset:{S0 + S_ST3}', 'e2')
    w4more(cfg.w4b)
    if cfg.fsearly: publish_col('FS', 1024, 'sst')
    spin('E3', 4)
    st.put('A', 'e3')
    EA, EB = 48, 240
    for q in range(4):
        a.lg(f'ds_read_b128 {vr(EA + 4*q, 4)}, v8 offset:{1024*q}', ('e1', q)); a.lg(f'ds_read_b128 {vr(EB + 4*q, 4)}, v11 offset:{1024*q}', ('e1', q))
    signal('E3')
    for q in range(4):
        a.wlg(('e1', q)); padd(EA + 4*q, EA + 4*q, EB + 4*q, 4, False)
    for k, x in enumerate(gelu16(EA, EC, 32, 38, [(sHS, 0, 'h2s'), (sHS + 1, 1024, 'h2s')], zero=sZ)):
        if isinstance(x, tuple): a.vm(x[1], x[2])
        else: a(x)
        if k % cfg.w4ev == cfg.w4ev - 1 and k < cfg.w4stop: w4more()
    st.put('A', 'gs')
    a('s_setprio 0')
    if not cfg.fsearly: publish_col('FS', 1024, 'sst')
    w4more(cfg.la4)
    a('v_lshlrev_b32 v9, 7, v0')
    flag(sFO, 256, 'h2s', False, (f's{sTM}', f'buffer_load_dword v9, v9, {WS}, s{sHS} offen sc1'))
    st.put('A', 'hs_flag')
    w4more(22)
    st.put('A', 'w4_issued')
    spin('E3', 8)
    pollc(sFP, 256, 16, vCP, 6)
    st.put('A', 'h2a_seen')
    a(f's_setprio {cfg.g4prio}')
    def h2issue(f):
        th, ks = divmod(f, 22)
        if ks % 4 == 0: a(f's_add_u32 s{sT+1}, s{sH2}, {88*1024*th + 1024*ks}')
        a.vm(f'buffer_load_dwordx4 {vr(RING + 4*(f % 8), 4)}, v{vL16}, {WS}, s{sT+1} offen offset:{1024*(ks % 4)} sc1', ('h2', f))
    for f in range(8): h2issue(f)
    for f in range(44):
        th, ks = divmod(f, 22)
        if f == 14:
            LOK = a.label('HB')
            a.wvm('pb')
            a('s_mov_b64 exec, 0xff'); a(f'v_cmp_ne_u32 vcc, s{sEP}, v6'); a('s_mov_b64 exec, -1')
            a(f's_cmp_eq_u32 s{sMODE}, 1'); a('s_cselect_b64 vcc, vcc, -1')
            a(f's_cbranch_vccz {LOK}')
            saved = list(a.vmq)
            pollc(sFP, 512, 8, vCP, 6)
            a.vmq = saved
            a(f'{LOK}:')
            st.put('A', 'h2b_seen')
        a.wvm(('h2', f))
        if f == 22: a.wlg(('d', 0))
        M32(ACC4, W4F + 8*ks, RING + 4*(f % 8), None if ks == 0 else ACC4)
        if f == 22: a.wlg(('d', 1))
        M32(ACC4 + 16, W4F + 8*ks + 4, RING + 4*(f % 8), None if ks == 0 else ACC4 + 16)
        if f + 8 < 44: h2issue(f + 8)
        if f == cfg.pbf:
            a('s_mov_b64 exec, 0xff'); a.vm(f'buffer_load_dword v6, v{vCP}, {WS}, s{sFP} offen offset:512 sc1', 'pb'); a('s_mov_b64 exec, -1')
        if ks == 21:
            for q in range(8): a.lg(f'ds_write_b128 v{vDW}, {vr(ACC4 + 4*q, 4)} offset:{8192*th + 1024*q}', ('d', q >> 2))
            signal('D4a' if th == 0 else 'D4b')
            st.put('A', f'g4_{th}')
    st.flush('A')
    a('s_endpgm')

class BBar:
    n = 0
def bbar(sleep=0):
    BBar.n += 1
    signal('B'); spin('B', 4 * BBar.n, sleep=sleep)

def role_B():
    vKE, vKT, vFW, vFT, vXV, vF4, vPA, vXT, vMS, vUS, tZP, vKX, vKY = range(28, 41)
    a('L_B:')
    a.reset()
    vLs, vCU, vCT, CACC, UF, W3F = 5, 6, 8, 28, 224, 64
    TR = lambda i: 12 + 4*i if i < 4 else 192 + 4*i
    vCP, vUD, vCW, vCR = 60, 62, 63, 7
    sXC, sFD, sXR, sW3, sUS, sUL, sF4, sSS, sFO, sZ, sH2, sM0U, sJP = 36, 37, 40, 41, 42, 43, 44, 45, 46, 47, 48, 72, 73
    sCH, sPT, sKF = 75, 76, 60
    a(f's_lshr_b32 s{sCH}, s{sW}, 1'); a(f's_and_b32 s{sPT}, s{sW}, 1')
    L = Lane(12)
    SL = 224
    a('v_and_b32 v8, 1, v0'); a('v_lshlrev_b32 v8, 4, v8'); a('v_mov_b32 v9, 0x3f80'); a('v_lshlrev_b32 v8, v8, v9')
    for jh in range(2):
        for d in range(4):
            lo = (3 << (2*d)) << (16*jh)
            a(f's_mov_b32 vcc_lo, {hex(lo)}'); a(f's_mov_b32 vcc_hi, {hex(lo << 8)}')
            a(f'v_cndmask_b32 v{SL + 4*jh + d}, 0, v8, vcc')
    YV = 64
    srd(SWS, sWSP, 268435456); srd(SOUT, 58, 524288); a('s_mov_b64 s[0:1], s[64:65]'); a('s_mov_b64 s[86:87], s[62:63]')
    consts()
    a(f's_lshr_b32 s{sT}, s{sC}, 3'); a(f's_and_b32 s{sT+1}, s{sC}, 7'); S(sCFO, [(sT, 128), (sT + 1, 4), (sCPB, 1)])
    a(f's_and_b32 s{sJP}, s{sJ}, 1')
    a(f's_cmp_lt_i32 s{sDEL}, 0'); a(f's_cselect_b32 s{sXR}, 64, -2'); a(f's_add_u32 s{sXR}, s{sXR}, s{sDEL}')
    S(sW3, [(sJ, FMT), (sW, 49152)], WS_W3)
    S(sFD, [(sJ, FMT), (sC, 1024), (sW, 3*49152)], WS_W3 + 16384)
    a(f's_lshr_b32 s{sT}, s{sC}, 4'); a(f's_and_b32 s{sT+1}, s{sC}, 15'); S(sT, [(sT, 49152), (sT + 1, 1024), (sJ, FMT)], WS_W3)
    a(f's_add_u32 s{sFD+1}, s{sFD}, 49152'); a(f's_add_u32 s{sFD+2}, s{sFD}, {2*49152}'); a(f's_add_u32 s{sT+1}, s{sT}, {2*49152}')
    a(f's_cmp_eq_u32 s{sW}, 1'); a(f's_cselect_b32 s{sFD+1}, s{sT}, s{sFD+1}'); a(f's_cselect_b32 s{sFD+2}, s{sT+1}, s{sFD+2}')
    S(sT, [(sW, 1024), (sJ, FMT), (sC, 6144)], WS_W4 - 2048)
    a(f's_cmp_ge_u32 s{sW}, 2'); a(f's_cselect_b32 s{sFD}, s{sT}, s{sFD}')
    a(f's_add_u32 s{sT}, s{sT}, 2048'); a(f's_add_u32 s{sT+1}, s{sT}, 2048')
    a(f's_cmp_ge_u32 s{sW}, 2'); a(f's_cselect_b32 s{sFD+1}, s{sT}, s{sFD+1}'); a(f's_cselect_b32 s{sFD+2}, s{sT+1}, s{sFD+2}')
    S(sUS, [(sJ, 32*UPS), (sC, UPS)], WS_UT)
    a(f's_lshr_b32 s{sT}, s{sC}, 3'); a(f's_and_b32 s{sT+1}, s{sC}, 7'); S(sUL, [(sT, 2048), (sT + 1, 128), (sJ, 32*UPS)], WS_UT)
    a(f's_and_b32 s{sT+1}, s{sW}, 1'); a(f's_lshr_b32 s{sT}, s{sW}, 1')
    S(sM0U, [(sT, USZ), (sT + 1, 2048)], U0 + 512)
    S(sFO, [(sJ, 16), (sW, 4), (sFL, 1)])
    S(sH2 + 4, [(sC, H2C), (sJ, 11*1024)], WS_H2)
    S(sH2, [(sW, 2048), (sH2 + 4, 1)]); a(f's_add_u32 s{sH2+1}, s{sH2}, {88*1024}')
    a('s_waitcnt vmcnt(5)')
    st.put('B', 'par')
    kpre(48, 4, {8: YV + 2, 1: 44, 256: 46}, 192)
    XV = 128
    xi = {h: XV + 2 * i for i, h in enumerate(his)}
    a(f'v_mov_b32 v{YV}, 1.0'); a(f'v_mov_b32 v{YV+1}, 0')
    for x in swp(YV+2, 16) + swp(44, 18) + swp(46, 20) + swp(50, 22): a(x)
    ych = cmul(YV+4, YV+2, YV+2) + cmul(YV+6, YV+4, YV+2) + cmul(YV+8, YV+6, YV+2) + swp(YV+8, 24)
    for g in range(5, 32, 4):
        blk = []
        for j in range(g, min(g + 4, 32)): blk += cmul(YV + 2*j, YV + 2*(j-4), YV + 8)
        ych += blk[0::2] + blk[1::2]
    xch = cmul(xi[0], 52, 50)
    for h in range(1, 9): xch += cmul(xi[h], xi[h-1], 44)
    for lvl in ([256, 258, 260, 262, 264], [512, 516, 520], [768, 772, 776], [1024, 1032], [1280, 1288], [1536, 1544], [1792, 1800]):
        blk = []
        for h in lvl: blk += cmul(xi[h], xi[h-256], 46)
        xch += blk[0::2] + blk[1::2]
    for x in interleave([ych, xch]): a(x)
    st.put('B', 'k1')
    src = {'Y': [YV + 2*j for j in range(32)], 'X': [None] * 32}
    for h in his:
        for row in xrows[h]: src['X'][row] = xi[h]
    PB = [192, 208]
    TL = [12, 28]
    groups = [('Y', 0), ('Y', 1), ('X', 0), ('X', 1)]
    FRK = {'Y': 64, 'X': 128}
    def pack(gi):
        op, part = groups[gi]; P = PB[gi & 1]; ng = '-' if (op == 'X' and part) else ''
        o = [f'v_cvt_pk_bf16_f32 v{P+i}, {ng}v{src[op][2*i]+part}, {ng}v{src[op][2*i+1]+part}' for i in range(16)]
        o += [f'v_permlane32_swap_b32 v{P+8*jh+d}, v{P+8*jh+4+d}' for jh in range(2) for d in range(4)]
        return o
    def tr(gi, T):
        P = PB[gi & 1]
        return [(T + 16*nh, P + 8*jh + 4*nh, SL + 4*jh, jh) for nh in range(2) for jh in range(2)]
    def repack(gi, T):
        op, part = groups[gi]
        return [f'v_cvt_pk_bf16_f32 v{FRK[op] + 16*part + i}, v{T+2*i}, v{T+2*i+1}' for i in range(16)]
    for x in pack(0) + pack(1): a(x)
    TA, TB = 96, 16
    def mm(lst, fill):
        per = -(-len(fill) // 4) if fill else 0
        for (d, x, y, jh) in lst:
            M32(d, x, y, d if jh else None)
            for _ in range(per):
                if fill: a(fill.pop(0))
    mm(tr(0, TA), [])
    mm(tr(1, TB), pack(2))
    f = repack(0, TA)
    for x in f: a(x)
    mm(tr(2, TA), pack(3) + repack(1, TB))
    mm(tr(3, TB), [])
    for x in repack(2, TA) + repack(3, TB): a(x)
    FY, FX, KD, KP, ET = 64, 128, 192, 96, 208
    st.put('B', 'k2')
    mark = len(a.L)
    vEX = vKX
    S(sT, [(sW, 4096)], S0 + S_KF); a(f'v_add_u32 v{vEX}, s{sT}, v{vL16}'); a(f'v_xor_b32 v{vEX+1}, 0x1000, v{vEX}')
    S(sT, [(sDEL, 8)], S0 + S_ST + 16); a(f'v_lshl_add_u32 v43, v0, 3, s{sT}')
    S(sKF, [(sCH, 2*KCOPY)], S0 + S_KF)
    a(f's_add_u32 s{sT}, s{sKF}, {4080 - 3072}'); a(f'v_sub_u32 v{vKE}, s{sT}, v{vL16}')
    a(f's_add_u32 s{sT}, s{sKF}, {KCOPY}'); L(vKT, [(3, 1, KCOPY)]); a(f'v_sub_u32 v{vKT}, s{sT}, v{vKT}'); L(vKT, [(0, 3, 4)], f'v{vKT}')
    S(sT, [(sW, 4096)], S0 + S_KF); L(vFT, [(5, 1, 256), (2, 2, 64), (4, 1, 32), (0, 2, 8)], f's{sT}')
    L(vPA, [(5, 1, 1024), (0, 5, 4)], S0 + S_STP)
    L(46, [(4, 1, 64)]); a('v_xor_b32 v41, v60, v46')
    a(f's_lshl_b32 s{sT}, s{sW}, 5'); L(vXT, [(4, 2, 1024), (2, 2, 128), (0, 2, 8)], f's{sT}')
    L(vMS, [(4, 2, 64)])
    a(f's_lshl_b32 s{sT}, s{sW}, 11'); L(vUS, [(0, 4, 64), (4, 2, 16)], f's{sT}')
    side = a.L[mark:]; del a.L[mark:]
    per = -(-len(side) // 8)
    for ks in range(8):
        M32(KD, FX + 4*ks, FY + 4*ks, None if ks == 0 else KD)
        for _ in range(per):
            if side: a(side.pop(0))
    a(f's_add_u32 s{sEP}, s{sEP}, 1'); a(f's_mov_b32 s{sEP+1}, s{sEP}')
    a(f's_getreg_b32 s{sXC}, hwreg(HW_REG_XCC_ID, 0, 4)')
    if cfg.force_slow: a(f's_mov_b32 s{sXC}, s{sJ}')
    a(f's_lshl_b32 s{sXC}, s{sXC}, 28'); a(f's_add_u32 s{sXC}, s{sXC}, s{sEP}')
    st.put('B', 'kmfma')
    a.vm0()
    LG, LGE = a.label('FM'), a.label('FM')
    a(f's_cmp_ge_u32 s{sW}, 2'); a(f's_cbranch_scc1 {LG}')
    for m in range(3): a(f'ds_write_b128 v{vEX}, {vr(240 + 4*m, 4)} offset:{1024*m}')
    for m in range(3):
        for p in range(2): a(f'ds_read_b64_tr_b16 v[{112+4*m+2*p}:{113+4*m+2*p}], v{vFT} offset:{1024*m + 512*p}')
    a('s_waitcnt lgkmcnt(0)')
    for m in range(3): a(f'buffer_store_dwordx4 {vr(112 + 4*m, 4)}, v{vL16}, {WS}, s{sFD+m} offen sc1')
    a(f's_branch {LGE}')
    a(f'{LG}:')
    a(f's_cmp_lg_u32 s{sW}, 3'); a(f's_cbranch_scc1 {LGE}')
    S(sT, [(sJ, 4), (sFL, 1)])
    a(f'v_mov_b32 v{vT}, s{sXC}')
    a('s_mov_b64 exec, 1'); a(f'buffer_store_dword v{vT}, off, {WS}, s{sT} offset:768 sc1'); a('s_mov_b64 exec, -1')
    for k in range(4): a(f'v_mov_b32 v{12+k}, 0')
    for d in range(8):
        a(f'v_lshlrev_b32 v16, 16, v{232+d}'); a(f'v_and_b32 v17, 0xffff0000, v{232+d}')
        a('v_add_f32 v12, v12, v16'); a('v_fmac_f32 v13, v16, v16'); a('v_add_f32 v14, v14, v17'); a('v_fmac_f32 v15, v17, v17')
    a('v_add_f32 v12, v12, v14'); a('v_add_f32 v13, v13, v15')
    a('v_permlane16_swap_b32 v12, v13'); a('v_add_f32 v12, v12, v13')
    for sh in (8, 4, 2, 1): a(f'v_add_f32_dpp v12, v12, v12 row_ror:{sh} row_mask:0xf bank_mask:0xf')
    a('v_mov_b32 v13, v12'); a('v_permlane16_swap_b32 v12, v13')
    finstat(12)
    S(sT, [(sXR, 8)], S0 + S_ST + 16); a('v_lshrrev_b32 v14, 5, v0'); a(f'v_lshl_add_u32 v14, v14, 3, s{sT}')
    a('s_mov_b32 exec_lo, 1'); a('s_mov_b32 exec_hi, 1'); a('ds_write_b64 v14, v[12:13]'); a('s_mov_b64 exec, -1')
    a(f'{LGE}:')
    st.put('B', 'fmt_st')
    a(f's_setprio {cfg.uprio}')
    a.vmq = []
    signal('S')
    LFF = a.label('FF')
    a(f's_cmp_ge_u32 s{sW}, 2'); a(f's_cbranch_scc1 {LFF}')
    publish_col('FF', 0, None, 1)
    a(f'{LFF}:')
    spin('S', 8)
    st.put('B', 'S_seen')
    sW2 = 77
    S(sW2, [(sW, 131072), (sJ, 128)]); S(sT + 1, [(sW, 16384)], X0); a(f's_mov_b32 m0, s{sT+1}')
    def w2i(lo, hi):
        for i in range(lo, hi):
            if i: a('s_addk_i32 m0, 1024'); a(f's_addk_i32 s{sW2}, 8192')
            a.vm(f'buffer_load_dwordx4 v41, s[{SOUT}:{SOUT+3}], s{sW2} offen lds', 'w2')
    XT, MSR, UT, UP = 128, 136, 168, 176
    for w2 in range(4): a.lg(f'ds_read2_b32 v[{12+2*w2}:{13+2*w2}], v{vPA} offset0:{64*w2} offset1:{64*w2 + 32}', 'sp')
    for o in range(2):
        for p in range(2): a.lg(f'ds_read_b64_tr_b16 v[{XT+4*o+2*p}:{XT+1+4*o+2*p}], v{vXT} offset:{S0 + S_XT + 4096*o + 512*p}', 'xr')
    a.wlg('sp')
    padd(12, 12, 16, 4, False); padd(12, 12, 14, 2, False)
    finstat(12)
    a.lg('ds_write_b64 v43, v[12:13]')
    for o in range(2):
        for k in range(4): a.lg(f'ds_read_b128 {vr(MSR + 16*o + 4*k, 4)}, v{vMS} offset:{S0 + S_ST + 16 + 256*o + 16*k}', ('ms', o))
    a.wlg('xr')
    for o in range(2):
        unpack(UT, XT + 4*o, 4)
        a.wlg(('ms', o))
        for i in range(8): a(f'v_sub_f32 v{UT+i}, v{UT+i}, v{MSR+16*o+2*i}')
        for i in range(8): a(f'v_mul_f32 v{UT+i}, v{UT+i}, v{MSR+1+16*o+2*i}')
        for d in range(4): a(f'v_cvt_pk_bf16_f32 v{UP+4*o+d}, v{UT+2*d}, v{UT+1+2*d}')
        a.vm(f'buffer_store_dwordx4 {vr(UP + 4*o, 4)}, v{vUS}, {WS}, s{sUS} offen offset:{1024*o} sc1', 'ust')
    a(f's_setprio {cfg.bprio}')
    st.put('B', 'u_stored')
    LE1, LE2_ = a.label('EX'), a.label('EX')
    a(f's_bitcmp1_b32 s{sW}, 0'); a(f's_cbranch_scc1 {LE1}')
    a(f'ds_write_b128 v{vEX}, {vr(KD + 12, 4)}')
    a(f's_branch {LE2_}')
    a(f'{LE1}:')
    for q in range(3): a(f'ds_write_b128 v{vEX}, {vr(KD + 4*q, 4)} offset:{1024*q}')
    a(f'{LE2_}:')
    signal('KY')
    chk_issue('KY', vT)
    L = Lane(12)
    S(sT, [(sPT, 16*UPS), (sCH, 64)]); L(vUD, [(3, 3, UPS), (2, 1, 1024), (0, 2, 16)], f's{sT}')
    S(sT, [(sCH, USZ)], U0); L(tZP, [(0, 5, 16)], f's{sT}')
    a(f's_lshl_b32 s{sT+1}, s{sPT}, 8'); a(f's_sub_u32 s{sT}, s{sT}, s{sT+1}'); a(f's_add_u32 s{sT}, s{sT}, 480'); L(vCU, [(0, 4, 32), (4, 2, 16)], f's{sT}')
    L(vCT, [(0, 1, KCOPY + 4), (1, 3, 4)]); a(f's_sub_u32 s{sT}, s{sKF}, s{sT+1}'); a(f's_add_u32 s{sT}, s{sT}, {4064 - 512 - 64 + KCOPY}')
    a(f'v_sub_u32 v{vCT}, s{sT}, v{vCT}'); L(vCT, [(4, 2, 16)], f'v{vCT}')
    for m in range(1, 4): a(f'v_subrev_u32 v{vCT+m}, {1024*m}, v{vCT}')
    a(f's_lshl_b32 s{sT}, s{sCH}, 4'); a(f'v_and_b32 v{vLs}, s{sT}, v0'); a(f'v_lshl_add_u32 v{vLs}, v{vLs}, 27, v{vL16}')
    S(sT, [(sW, 8192)], CX0); a(f'v_add_u32 v{vCW}, s{sT}, v{vL16}')
    chk_wait('KY', vT, 4)
    for q in range(3): a.lg(f'ds_read_b128 {vr(KP + 4*q, 4)}, v{vEX+1} offset:{1024*q}')
    signal('KQ')
    publish_col('FU', 512, 'ust')
    st.put('B', 'u_flag')
    if cfg.cfpos == 0: spoll(0, 'CF', 3)
    spin('W2I', 4)
    w2i(0, 11)
    spin('KQ', 4)
    def expand(sp, vals, tmp):
        for i in range(4): a(f'v_cvt_pk_bf16_f32 v{tmp+i}, v{vals[7-2*i]}, v{vals[6-2*i]}')
        for i in range(4): a(f'v_cvt_pk_bf16_f32 v{tmp+4+i}, v{vals[8-2*i]}, v{vals[7-2*i]}')
        a(f'ds_write_b128 v{vKE}, {vr(tmp, 4)} offset:{1024*(3-sp)}')
        a(f'ds_write_b128 v{vKE}, {vr(tmp+4, 4)} offset:{1024*(3-sp) + KCOPY}')
    LX1, LXE = a.label('EX'), a.label('EX')
    a(f's_bitcmp1_b32 s{sW}, 0'); a(f's_cbranch_scc1 {LX1}')
    a('v_mov_b32 v12, 0')
    padd(KD, KD, KP, 12, False)
    a('s_mov_b64 exec, 1'); a(f'v_add_f32 v{KD}, s67, v{KD}'); a(f'v_cvt_pk_bf16_f32 v12, v{KD}, v12')
    a('s_mov_b64 exec, 0xffff'); a(f'ds_write_b32 v{vKT}, v12 offset:4096'); a('s_mov_b64 exec, -1')
    expand(0, [KD + i for i in range(9)], ET)
    expand(1, [KD + 9 + k for k in (0, 0, 0, 1, 1, 1, 2, 2, 2)], ET + 8)
    a(f's_branch {LXE}')
    a(f'{LX1}:')
    a('s_mov_b32 vcc_lo, 0xaaaaaaaa'); a('s_mov_b32 vcc_hi, vcc_lo')
    padd(KD + 12, KD + 12, KP, 4, False)
    for s_ in range(2):
        lo, hi = KD + 12 + 2*s_, KD + 13 + 2*s_
        a(f'v_cndmask_b32 v12, v{lo}, v{hi}, vcc')
        expand(2 + s_, [lo, lo, lo, lo, 12, hi, hi, hi, hi], ET + 8*s_)
    a(f'{LXE}:')
    st.put('B', 'kexp')
    w2i(11, 16)
    srd(SOUT, 86, 1409024)
    a(f's_lshl_b32 s{sT}, s{sPT}, 6'); a(f's_cmp_ge_u32 s{sW}, 2'); a(f's_cselect_b32 s{sT}, s{sT}, 0x80000000')
    a('v_lshrrev_b32 v25, 2, v0'); a('v_mul_u32_u24 v25, 960, v25'); a(f'v_add3_u32 v25, v25, v{vL16}, s{sT}')
    S(sT, [(sC, 48*1024), (sJ, 128)])
    for m in range(3):
        if m: a(f's_addk_i32 s{sT}, 16384')
        a.vm(f'buffer_load_dwordx4 {vr(240 + 4*m, 4)}, v25, s[{SOUT}:{SOUT+3}], s{sT} offen {cfg.f4fl}', 'f4')
    S(sT, [(sW, 4096)], S0 + S_KF - FSCR); a(f's_lshl_b32 s{sT+1}, s{sPT}, 10'); a(f's_sub_u32 s{sT}, s{sT}, s{sT+1}')
    a(f'v_subrev_u32 v26, s{sT}, v{vEX}'); a(f'v_subrev_u32 v27, s{sT}, v{vFT}')
    a.wvm('w2'); signal('W2L')
    st.put('B', 'w2l')
    def ldT(i, nxt):
        t = TR(i); o = (128 if i % 2 == 0 else 0) + (0 if nxt else 16)
        a.lg(f'ds_read2_b32 v[{t}:{t+1}], v{vCT + i//2} offset0:{o} offset1:{o+1}', ('T', i))
        a.lg(f'ds_read2_b32 v[{t+2}:{t+3}], v{vCT + i//2} offset0:{o+2} offset1:{o+3}', ('T', i))
    def ldU(jq): a.lg(f'ds_read_b128 {vr(UF + 4*jq, 4)}, v{vCU} offset:{512*jq}', ('U', jq))
    a(f's_lshl_b32 s{sT}, s{sJP}, 12'); a(f's_add_u32 s{sW3}, s{sW3}, s{sT}')
    if cfg.now3: a(f's_mov_b32 s{sW3}, 0x80000000')
    iss = [0]
    NFR = 36
    G, SEL, CSS, CSF = 8, 12, 16, 20
    def mksel():
        a('s_mov_b32 vcc_lo, 0xaaaa5555'); a('s_mov_b32 vcc_hi, vcc_lo'); a(f'v_mov_b32 v{SEL}, s{sK+4}')
        for i in range(3, -1, -1): a(f'v_cndmask_b32 v{SEL+i}, 0, v{SEL}, vcc')
    def csm(f): M16(CSS if f < 16 else CSF, SEL, W3F + 4*f, None if f in (0, 16) else (CSS if f < 16 else CSF))
    csd = [0]
    def csupto(n):
        while csd[0] < n:
            a.wvm(('w3', csd[0])); csm(csd[0]); csd[0] += 1
    def w3more(n=1, thr=False):
        for _ in range(n):
            f = iss[0]; iss[0] += 1
            if thr and f >= cfg.la3: csupto(f - cfg.la3 + 1)
            if f and f % 4 == 0:
                a(f's_xor_b32 s{sW3}, s{sW3}, 4096')
                if f % 8 == 0: a(f's_addk_i32 s{sW3}, 8192')
            a.vm(f'buffer_load_dwordx4 {vr(W3F + 4*f, 4)}, v{vLs if f < 16 else vL16}, {WS}, s{sW3} offen offset:{1024*(f % 4)} sc1', ('w3', f))
    signal('KE')
    a(f'v_mov_b32 v24, v{tZP}')
    S(sT, [(sW, 256)], S0 + S_CS3); a(f'v_lshl_add_u32 v7, v0, 2, s{sT}')
    for i in range(32): a(f'v_mov_b32 v{CACC+i}, 0')
    a(f's_mov_b32 m0, s{sM0U}')
    mksel()
    spin('CF', 1)
    st.put('B', 'fmt_seen')
    w3more(cfg.la3)
    LG4 = a.label('FM')
    a.wvm('f4')
    a(f's_cmp_lt_u32 s{sW}, 2'); a(f's_cbranch_scc1 {LG4}')
    for m in range(3):
        a(f'ds_write_b128 v26, {vr(240 + 4*m, 4)}')
        for p in range(2): a(f'ds_read_b64_tr_b16 v[{228+4*m+2*p}:{229+4*m+2*p}], v27 offset:{512*p}')
    a('s_waitcnt lgkmcnt(0)')
    for m in range(3): a(f'buffer_store_dwordx4 {vr(228 + 4*m, 4)}, v{vL16}, {WS}, s{sFD+m} offen sc1')
    a(f'{LG4}:')
    w3more(cfg.w3a - cfg.la3, True)
    spoll(512, 'CU', 1)
    w3more(cfg.w3b, True)
    spin('W', 4)
    a.lg(f'ds_write_b128 v24, {vr(CACC, 4)}')
    st.put('B', 'u_poll')
    spin('CU', 1)
    st.put('B', 'u_seen')
    a.vm(f'buffer_load_dwordx4 v{vUD}, {WS}, s{sUL} offen sc1 lds', 'u')
    a('s_addk_i32 m0, 1024'); a(f's_add_u32 s{sUL}, s{sUL}, {8*UPS}')
    a.vm(f'buffer_load_dwordx4 v{vUD}, {WS}, s{sUL} offen sc1 lds', 'u')
    assert iss[0] >= 17
    spin('KE', 4)
    for q in range(4): ldT(7 - q, False)
    csupto(iss[0])
    a('s_mov_b64 exec, 0xffff'); a.lg(f'ds_write2_b32 v7, v{CSS}, v{CSS+1} offset0:0 offset1:16'); a('s_mov_b64 exec, -1')
    a(f'v_mov_b32 v60, v{CSF}'); a(f'v_mov_b32 v61, v{CSF+1}')
    for q in range(4, 8): ldT(7 - q, False)
    publish_col('F4', 1536, 'u'); bbar()
    st.put('B', 'conv_go')
    a(f's_setprio {cfg.cprio}')
    for q in range(8): ldU(q)
    a(f'v_subrev_u32 v{vCU}, 64, v{vCU}')
    a('s_waitcnt lgkmcnt(4)')
    for it in range(4):
        w3more(min(cfg.w3d, NFR - iss[0]))
        if it == 3:
            a('v_lshrrev_b32 v62, 3, v0'); a('v_mul_u32_u24 v62, 96, v62'); a('v_lshl_add_u32 v62, v0, 2, v62')
            cp_issue(1536, 5, 62, 'c4')
        if not cfg.noconv or it == 0: a(f's_call_b64 s[{sRET}:{sRET+1}], L_conv')
    st.put('B', 'conv_done')
    nconv = iss[0]
    a('s_nop 1')
    for q in range(8): a.lg(f'ds_write_b128 v{vCW}, {vr(CACC + 4*q, 4)} offset:{1024*q}')
    cp_check(1536, 5, 62, 'c4')
    signal('W3I')
    a.lg(f'ds_read_b32 v5, v{vS} offset:{CN["MODE"]}')
    vGK, vGO, vGE, vGS, vGF, vGC = 8, 9, 10, 11, 6, 7
    S(sT, [(sPT, 32768 + 4096)], W0); a(f'v_add_u32 v{vGK}, s{sT}, v{vL16}'); a(f'v_xor_b32 v{vGO}, 0x1000, v{vGK}')
    S(sT, [(sW, 8192)], E30); a(f'v_add_u32 v{vGE}, s{sT}, v{vL16}')
    a(f'v_and_b32 v{vGS}, 31, v0'); a(f'v_lshlrev_b32 v{vGS}, 3, v{vGS}')
    a(f'v_add_u32 v{vGF}, {W0}, v{vL16}')
    a.lg0()
    w3more(cfg.w3e)
    a(f'v_readfirstlane_b32 s{sMODE}, v5')
    mksel()
    a(f'v_lshrrev_b32 v5, 5, v0'); S(sT, [(sW, 256)], S0 + S_CS3 + 128); a(f'v_lshl_add_u32 v5, v5, 4, s{sT}')
    a(f'v_mov_b32 v{CSF}, v60'); a(f'v_mov_b32 v{CSF+1}, v61')
    csupto(nconv)
    st.put('B', 'b_rdy')
    AK, AO, FR = 28, 44, [16, 24, 60]
    spin('X0', 4)
    a('s_setprio 2')
    st.put('B', 'g3_start')
    so = [8*a_ + 4*(c >> 1) + 2*(c & 1) + r for c in range(4) for a_ in range(2) for r in range(2)]
    AF, CSV, GT, MS = 64, 80, 96, 102
    items = [('S', f, o) for f in so for o in range(2)] + [('F', n, th) for th in range(2) for n in range(32)]
    pool = list(FR); slot = {}; nr = [0]
    def rd(cur):
        while pool and nr[0] < 96 and nr[0] <= cur + cfg.lag:
            n = nr[0]
            if n == 8: chk_wait('XA0', vT, 4); chk_issue('XA', vT)
            if n == 16: chk_wait('XA', vT, 4)
            k_, f, o = items[n]; slot[n] = pool.pop(0); nr[0] += 1
            if k_ == 'S': a.lg(f'ds_read_b128 {vr(slot[n], 4)}, v{vGO if o else vGK} offset:{8192*(f >> 2) + 1024*(f & 3)}', ('s', n))
            else: a.lg(f'ds_read_b128 {vr(slot[n], 4)}, v{vGF} offset:{8192*(f >> 2) + 4096*o + 1024*(f & 3)}', ('s', n))
    def emit(x):
        if isinstance(x, tuple):
            if x[0] == 'vm': a.vm(x[1], x[2])
            elif x[0] == 'lg': a.lg(x[1], x[2])
            elif x[0] == 'wlg': a.wlg(x[1])
            else: x[1]()
        else: a(x)
    cost = lambda x: 1 if isinstance(x, tuple) or x.startswith('s_') else (2 if x.startswith(TRANS) else 1)
    dump = [f'ds_write_b128 v{vGE}, {vr(AK + 4*q, 4)} offset:{1024*q}' for q in range(8)]
    pend = gelu16(AF, CSV, GT, MS, [(sH2, 0, 'h2a'), (sH2, 1024, 'h2a')]); per = sum(cost(x) for x in pend) / cfg.f1span; credit = 0
    rd(0)
    for n in range(96):
        k_, f, o = items[n]
        if n == 1: chk_issue('XA0', vT)
        if n == 56: chk_issue('ST', vT)
        if n == 62: chk_wait('ST', vT, 4)
        if k_ == 'F' and o == 0: a.wvm(('w3', 16 + f))
        a.wlg(('s', min(n + 1, nr[0] - 1) if (n >= 8 and n % 2 == 0) else n))
        if k_ == 'S':
            acc_ = AO if o else AK
            M32(acc_, W3F + 4*f, slot[n], None if n < 2 else acc_)
            if slot[n] < 64 or slot[n] >= 104 or n < 22: pool.append(slot[n])
            if o and (f >= 10 or n < 12): pool.append(W3F + 4*f)
            if n == 22: pool[:] = [p_ for p_ in pool if p_ < 64 or p_ >= 104]
            if n % 3 == 2 and iss[0] < 48: w3more()
        else:
            acc_ = AO if o else AF
            M32(acc_, W3F + 64 + 4*f, slot[n], None if f == 0 else acc_)
            pool.append(slot[n])
            if o == 0 and 16 + f >= nconv: csm(16 + f)
            if o == 0 and f >= 1 and dump:
                for _ in range(cfg.dper): a.lg(dump.pop(0))
                if not dump: signal('E3')
            if o == 1 and f == 1:
                a('s_mov_b64 exec, 0xffff'); a.lg(f'ds_write2_b32 v{vGC}, v{CSF}, v{CSF+1} offset0:32 offset1:48'); a('s_mov_b64 exec, -1')
                for q in range(4): a.lg(f'ds_read_b128 {vr(CSV + 4*q, 4)}, v5 offset:{32*q}', 'ex3')
                a.lg(f'ds_read_b64 v[{MS}:{MS+1}], v{vGS} offset:{S0 + S_ST3}', 'ex3')
            if o == 1 and f == 4: a.wlg('ex3')
            if o == 1 and f >= 4:
                credit += per
                while pend and credit >= cost(pend[0]) - 0.5:
                    credit -= cost(pend[0]); emit(pend.pop(0))
        rd(n + 1)
        if n % 32 == 31:
            if n == 95:
                while pend: emit(pend.pop(0))
            st.put('B', f'p{n // 32}')
    assert iss[0] == 48
    for n in range(31, 96): assert slot[n] < 64 or slot[n] >= 104, (n, slot[n])
    a.lg(f'ds_read_b64 v[{MS}:{MS+1}], v{vGS} offset:{S0 + S_ST3 + 256}'); a.lg0()
    a('v_lshlrev_b32 v27, 7, v0')
    tail = gelu16(AO, CSV, GT, MS, [(sH2 + 1, 0, 'h2b'), (sH2 + 1, 1024, 'h2b')], pk=cfg.tailpk)
    k = int(len(tail) * cfg.aflag)
    for x in tail[:k]: emit(x)
    flag(sFO, 384, 'h2a', False, (0xffff, f'buffer_load_dword v25, v27, {WS}, s{sH2} offen sc1'))
    st.put('B', 'h2a_flag')
    for x in tail[k:]: emit(x)
    st.put('B', 'h2_stored')
    X1R, XR, SR_, Z = 128, 144, 160, 176
    sTB, sNT, sO = sT, sT + 1, sT + 2
    a(f's_and_b32 s{sTB}, s{sW}, 1'); a(f's_lshr_b32 s{sNT}, s{sW}, 1')
    a('v_and_b32 v20, 15, v0'); a('v_lshrrev_b32 v21, 4, v0')
    a('v_lshrrev_b32 v22, 5, v0'); a('v_lshlrev_b32 v22, 10, v22'); a('v_lshl_add_u32 v22, v20, 4, v22')
    a('v_and_b32 v23, 1, v21'); a('v_lshl_add_u32 v22, v23, 3, v22')
    a(f's_andn2_b32 s{sT+8}, s{sJ}, 1')
    S(sT + 8, [(sT + 8, 8192), (sNT, 2048), (sTB, 256)], W0); a(f'v_add_u32 v22, s{sT+8}, v22')
    for th in range(2):
        for h in range(2): a.lg(f'ds_read_b64 v[{64+4*th+2*h}:{65+4*th+2*h}], v22 offset:{4096*th + 512*h}', 'pr')
    a('v_lshlrev_b32 v23, 7, v20'); a('v_lshl_add_u32 v23, v21, 4, v23')
    S(sT + 8, [(sTB, 2048), (sNT, 64)]); a(f'v_add_u32 v23, s{sT+8}, v23')
    for th in range(2): a.lg(f'ds_read_b128 {vr(72 + 4*th, 4)}, v23 offset:{S0 + S_XT + 4096*th}', 'pr')
    a('v_bfe_u32 v24, v0, 2, 2'); a('v_lshl_add_u32 v24, v21, 3, v24'); a('v_lshlrev_b32 v24, 7, v24')
    a('v_and_b32 v16, 3, v0'); a('v_lshl_add_u32 v24, v16, 3, v24')
    S(sT + 8, [(sNT, 4096), (sTB, 32)]); a(f'v_add_u32 v24, s{sT+8}, v24')
    a('v_lshlrev_b32 v16, 4, v20'); a('v_lshl_add_u32 v16, v21, 10, v16')
    S(sT + 8, [(sNT, 4096), (sTB, 256)], X0); a(f'v_add_u32 v16, s{sT+8}, v16')
    a('v_lshlrev_b32 v17, 10, v20'); a('v_lshl_add_u32 v17, v21, 4, v17')
    S(sO, [(sC, 65536), (sTB, 16384), (sJ, 128), (sNT, 64)])
    srd(SOUT, 0, 2097152)
    flag(sFO, 512, 'h2b', False, (0xffff, f'buffer_load_dword v26, v27, {WS}, s{sH2+1} offen sc1'))
    a('s_setprio 0')
    st.put('B', 'h2_flag')
    spoll(1024, 'CS')
    a('v_lshrrev_b32 v18, 3, v0'); a(f'v_mul_u32_u24 v18, {SRS - 128}, v18'); a(f'v_add_u32 v18, v18, v{vL16}')
    S(sT + 3, [(sJ, 64*SRS), (sC, 128), (sW, 16*SRS)], WS_ST)
    a(f's_lshl_b32 s{sT+8}, s{sW}, 11'); a(f's_add_u32 m0, s{sT+8}, {S0 + S_KF}')
    spin('CS', 1)
    st.put('B', 's_seen')
    a.vm(f'buffer_load_dwordx4 v18, {WS}, s{sT+3} offen sc1 lds', 'sd')
    a('s_addk_i32 m0, 1024'); a(f's_add_u32 s{sT+3}, s{sT+3}, {8*SRS}')
    a.vm(f'buffer_load_dwordx4 v18, {WS}, s{sT+3} offen sc1 lds', 'sd')
    unpack(X1R, 64, 8); unpack(XR, 72, 8)
    a.vm0(); bbar()
    for th in range(2):
        for p in range(2): a.lg(f'ds_read_b64_tr_b16 v[{80+4*th+2*p}:{81+4*th+2*p}], v24 offset:{S0 + S_KF + 512*p + 64*th}')
    a.lg0()
    unpack(SR_, 80, 8)
    a(f's_mov_b32 s{sK+6}, {hx(-LOG2E)}'); a(f's_mov_b32 s{sK+7}, {hx(-LOG2E)}')
    st.put('B', 'prep')
    a(f's_setprio {cfg.oprio}')
    for th in range(2):
        spin('D4a' if th == 0 else 'D4b', 4)
        for w2 in range(4):
            for h in range(2): a.lg(f'ds_read_b128 {vr(Z + 8*w2 + 4*h, 4)}, v16 offset:{8192*th + 16384*w2 + 512*h}', ('z', w2))
        z = X1R + 8 * th
        pk = th == 1
        for w2 in range(4):
            a.wlg(('z', w2)); padd(z, z, Z + 8*w2, 8, pk)
        t = Z
        if pk:
            for i in range(0, 8, 2): a(f'v_pk_mul_f32 v[{t+i}:{t+i+1}], v[{z+i}:{z+i+1}], s[{sK+6}:{sK+7}]')
            for i in range(8): a(f'v_exp_f32 v{t+i}, v{t+i}')
            for i in range(0, 8, 2): a(f'v_pk_add_f32 v[{t+i}:{t+i+1}], v[{t+i}:{t+i+1}], 1.0 op_sel_hi:[1,0]')
            for i in range(0, 8, 2): a(f'v_pk_mul_f32 v[{z+i}:{z+i+1}], v[{z+i}:{z+i+1}], v[{SR_+8*th+i}:{SR_+8*th+i+1}]')
            for i in range(8): a(f'v_rcp_f32 v{t+i}, v{t+i}')
            for i in range(0, 8, 2): a(f'v_pk_fma_f32 v[{z+i}:{z+i+1}], v[{z+i}:{z+i+1}], v[{t+i}:{t+i+1}], v[{XR+8*th+i}:{XR+8*th+i+1}]')
        else:
            for i in range(8): a(f'v_mul_f32 v{t+i}, s{sK+6}, v{z+i}')
            for i in range(8): a(f'v_exp_f32 v{t+i}, v{t+i}')
            for i in range(8): a(f'v_add_f32 v{t+i}, 1.0, v{t+i}')
            for i in range(8): a(f'v_mul_f32 v{z+i}, v{z+i}, v{SR_+8*th+i}')
            for i in range(8): a(f'v_rcp_f32 v{t+i}, v{t+i}')
            for i in range(8): a(f'v_fma_f32 v{z+i}, v{z+i}, v{t+i}, v{XR+8*th+i}')
        for i in range(4): a(f'v_cvt_pk_bf16_f32 v{88+4*th+i}, v{z+2*i}, v{z+2*i+1}')
        if th == 1: a(f's_add_u32 s{sO}, s{sO}, 0x8000')
        a.vm(f'buffer_store_dwordx4 {vr(88 + 4*th, 4)}, v17, s[{SOUT}:{SOUT+3}], s{sO} offen {cfg.out_fl}')
        st.put('B', f'out{th}')
    LE2 = a.label('EP')
    a(f's_add_u32 s{sT}, s2, s{sW}'); a(f's_cmp_lg_u32 s{sT}, 0'); a(f's_cbranch_scc1 {LE2}')
    a('s_mov_b64 exec, 1'); a(f'v_mov_b32 v{vT}, s{sEP}')
    a(f'buffer_store_dword v{vT}, off, {WS}, 0 sc1')
    a('s_mov_b64 exec, -1')
    a(f'{LE2}:')
    st.flush('B')
    a('s_endpgm')
    a('L_conv:')
    a.reset()
    a('s_waitcnt lgkmcnt(12)')
    for i in range(7, 3, -1):
        for jq in range(0, 8 - i): M16(CACC + 4*(i + jq), TR(i), UF + 4*jq, CACC + 4*(i + jq))
        ldT(i, True)
    a(f's_waitcnt lgkmcnt({len(a.lgq)})')
    for jq in range(8):
        for i in range(3, -1, -1):
            if i + jq <= 7: M16(CACC + 4*(i + jq), TR(i), UF + 4*jq, CACC + 4*(i + jq))
        ldU(jq)
        if jq >= 4: ldT(7 - jq, True)
    a(f'v_subrev_u32 v{vCU}, 64, v{vCU}')
    for m in range(4): a(f'v_subrev_u32 v{vCT+m}, 64, v{vCT+m}')
    a(f's_setpc_b64 s[{sRET}:{sRET+1}]')
    a('L_codeend:')

def build(path):
    prologue(); role_A(); role_B()
    body, npad = a.finalize()
    K = NAME + '_kernel'
    hdr = open('cdna_kernels/' + NAME + '.s.ref').read().split('; Override launch geometry')[0]
    o = hdr + '; @launch grid=(256,1,1) block=(512,1,1) lds=163840\n'
    o += f'.amdgcn_target "amdgcn-amd-amdhsa--gfx950"\n.text\n.globl {K}\n.p2align 8\n.type {K},@function\n{K}:\n'
    o += '\n'.join(('' if l.endswith(':') else '  ') + l for l in body) + '\n'
    o += f""".section .rodata,"a"
.p2align 6
.amdhsa_kernel {K}
  .amdhsa_next_free_vgpr 256
  .amdhsa_next_free_sgpr 102
  .amdhsa_accum_offset 256
  .amdhsa_group_segment_fixed_size 0
  .amdhsa_kernarg_size 136
  .amdhsa_user_sgpr_count 2
  .amdhsa_user_sgpr_kernarg_segment_ptr 1
  .amdhsa_system_sgpr_workgroup_id_x 1
.end_amdhsa_kernel
"""
    open(path, 'w').write(o)
    json.dump(st.names, open(path + '.stamps.json', 'w'))
    print('instrs', len(body), 'pads', npad)

if __name__ == '__main__':
    out = sys.argv[1]
    for kv in sys.argv[2:]:
        k, v = kv.split('=', 1); setattr(cfg, k, eval(v))
    build(out)
```
